```python
import torch

def _softmax(x, axis=-1):
    return torch.softmax(x, dim=axis)
def _gelu(x):
    return torch.nn.functional.gelu(x, approximate="tanh")
def _silu(x):
    return torch.nn.functional.silu(x)
def _sigmoid(x):
    return torch.sigmoid(x)
def _layernorm(x, axis=-1, eps=1e-5):
    m = x.mean(dim=axis, keepdim=True)
    v = x.var(dim=axis, keepdim=True, unbiased=False)
    return (x - m) / torch.sqrt(v + eps)
def _scatter_add(tgt, idx, src, axis=0):
    return tgt.clone().index_add_(axis, idx, src)
def _segment_sum(src, seg, n):
    out = torch.zeros((n,) + src.shape[1:], dtype=src.dtype)
    return out.index_add_(0, seg, src)
def _pad(x, pw):
    flat = tuple(v for pair in reversed(pw) for v in pair)
    return torch.nn.functional.pad(x, flat)

kernel_name = 'sequential_preLN__sliding_block_cached__glu_gated_geglu__decode'

def setup_inputs():

    _w = (lambda a: (lambda t: t.to(torch.bfloat16) if t.is_floating_point() else t)(torch.as_tensor(a)))
    def _A_setup():
        B, Sq, D = 1, 1, 576
        Hq, Hkv, Sk, Dh = 32, 16, 8192, 128
        assert Hq % Hkv == 0, (Hq, Hkv)
        return {
            "x": _w((lambda *s: torch.randn(*s, dtype=torch.bfloat16) * 0.05)(B, Sq, D)),
            "k_cache": _w((lambda *s: torch.randn(*s, dtype=torch.bfloat16) * 1.6)(B, Hkv, Sk, Dh)),
            "v_cache": _w((lambda *s: torch.randn(*s, dtype=torch.bfloat16) * 0.8)(B, Hkv, Sk, Dh)),
            "wq": _w((lambda *s: torch.randn(*s, dtype=torch.bfloat16) * 1.6)(D, Hq * Dh) * (D ** -0.5)),
            "wo": _w((lambda *s: torch.randn(*s, dtype=torch.bfloat16) * 0.8)(Hq * Dh, D) * ((Hq * Dh) ** -0.5)),
        }
    _A_in = _A_setup()

    def _B_setup():
        B, S, Dm, Df = 1, 1, 576, 4608
        return {
            "x": _w((lambda *s: torch.randn(*s, dtype=torch.bfloat16) * 0.05)(B, S, Dm)),
            "w_gate": _w((lambda *s: torch.randn(*s, dtype=torch.bfloat16) * 0.4)(Dm, Df) * (Dm ** -0.5)),
            "w_up": _w((lambda *s: torch.randn(*s, dtype=torch.bfloat16) * 0.4)(Dm, Df) * (Dm ** -0.5)),
            "w_down": _w((lambda *s: torch.randn(*s, dtype=torch.bfloat16) * 0.4)(Df, Dm) * (Df ** -0.5)),
        }
    _B_in = _B_setup()

    return {
        "A_x": _A_in["x"],
        "A_k_cache": _A_in["k_cache"],
        "A_v_cache": _A_in["v_cache"],
        "A_wq": _A_in["wq"],
        "A_wo": _A_in["wo"],
        "B_x": _B_in["x"],
        "B_w_gate": _B_in["w_gate"],
        "B_w_up": _B_in["w_up"],
        "B_w_down": _B_in["w_down"],
    }

def reference(A_x, A_k_cache, A_v_cache, A_wq, A_wo, B_x, B_w_gate, B_w_up, B_w_down):
    def _A_ref(x, k_cache, v_cache, wq, wo):
        B, Sq, D = x.shape
        Hq, Dh = 32, 128
        Hkv, Sk = k_cache.shape[1], k_cache.shape[2]
        W = min(4096, max(256, Sk // 4))
        rep = Hq // Hkv
        q = (lambda x, *d: x.permute(*d))((x @ wq).reshape(B, Sq, Hq, Dh), 0, 2, 1, 3)
        k = (lambda x, n, axis: torch.repeat_interleave(x, n, dim=axis))(k_cache[:, :, Sk - W:, :], rep, axis=1)
        v = (lambda x, n, axis: torch.repeat_interleave(x, n, dim=axis))(v_cache[:, :, Sk - W:, :], rep, axis=1)
        scores = torch.einsum("bhqd,bhkd->bhqk", q, k) * (Dh ** -0.5)
        p = _softmax(scores, axis=-1)
        o = torch.einsum("bhqk,bhkd->bhqd", p, v)
        return (lambda x, *d: x.permute(*d))(o, 0, 2, 1, 3).reshape(B, Sq, Hq * Dh) @ wo

    def _B_ref(x, w_gate, w_up, w_down):
        g = torch.einsum("bsd,df->bsf", x, w_gate)
        u = torch.einsum("bsd,df->bsf", x, w_up)
        h = _gelu(g) * u
        return torch.einsum("bsf,fd->bsd", h, w_down)

    x = A_x
    h = x + _A_ref(_layernorm(x, axis=-1), A_k_cache, A_v_cache, A_wq, A_wo)
    h2 = h + _B_ref(_layernorm(h, axis=-1), B_w_gate, B_w_up, B_w_down)
    return h2
```

```python
import re
TRANS = ("v_exp_f32", "v_log_f32", "v_rcp_f32", "v_rsq_f32", "v_sqrt_f32", "v_sin_f32", "v_cos_f32")

def regs_of(tok):
    tok = tok.strip()
    tok = tok.lstrip("-")
    m = re.fullmatch(r"abs\((.*)\)", tok)
    if m: tok = m.group(1)
    m = re.fullmatch(r"\|(.*)\|", tok)
    if m: tok = m.group(1)
    m = re.fullmatch(r"([vsa])(\d+)", tok)
    if m: return {(m.group(1), int(m.group(2)))}
    m = re.fullmatch(r"([vsa])\[(\d+):(\d+)\]", tok)
    if m: return {(m.group(1), i) for i in range(int(m.group(2)), int(m.group(3)) + 1)}
    if tok == "vcc": return {("s", "vcc")}
    if tok in ("vcc_lo", "vcc_hi"): return {("s", "vcc")}
    if tok in ("exec", "exec_lo", "exec_hi"): return {("s", "exec")}
    if tok == "m0": return {("s", "m0")}
    return set()

class Ins:
    def __init__(self, text):
        self.text = text
        t = text.split(";")[0].strip()
        self.op = t.split()[0] if t else ""
        rest = t[len(self.op):].strip()
        ops = []
        for part in rest.split(","):
            part = part.strip()
            if part: ops.append(part.split()[0])
        self.ops = ops
        op = self.op
        self.is_valu = op.startswith("v_") and not op.startswith("v_mfma")
        self.is_mfma = op.startswith("v_mfma")
        self.is_vmem = op.startswith(("global_", "buffer_"))
        self.is_ds = op.startswith("ds_")
        self.is_salu = op.startswith("s_")
        self.dpp = "_dpp" in op
        self.perml = op.startswith("v_permlane")
        self.trans = op.startswith(TRANS)
        self.rdlane = op.startswith(("v_readlane", "v_readfirstlane"))
        R = [regs_of(o) for o in ops]
        w, r = set(), set()
        if self.is_valu or self.is_mfma:
            if R: w |= R[0]
            srcs = R[1:]
            if op.startswith(("v_add_co", "v_addc_co", "v_sub_co")):
                w |= R[1]; srcs = R[2:]
            for x in srcs: r |= x
            if op.startswith(("v_fmac", "v_dot2c")) or self.dpp or op.startswith("v_writelane"): r |= R[0]
            if self.perml: w |= R[1]; r |= R[0]
            if op.startswith("v_cndmask") and len(ops) == 3: r |= {("s", "vcc")}
        elif self.is_vmem:
            if "_load_lds" in op or " lds" in t:
                for x in R: r |= x
                r |= {("s", "m0")}
            elif "load" in op:
                w |= R[0]
                for x in R[1:]: r |= x
            else:
                for x in R: r |= x
        elif self.is_ds:
            if op.startswith(("ds_read", "ds_bpermute", "ds_swizzle")) or "_rtn" in op:
                w |= R[0]
                for x in R[1:]: r |= x
            else:
                for x in R: r |= x
        elif self.is_salu:
            if op.startswith(("s_cmp", "s_bitcmp", "s_cbranch", "s_branch", "s_waitcnt", "s_nop", "s_barrier", "s_endpgm", "s_sleep", "s_setprio")):
                for x in R: r |= x
            else:
                if R: w |= R[0]
                for x in R[1:]: r |= x
        self.w, self.r = w, r
        self.srcC = R[3] if self.is_mfma and len(R) > 3 else set()
        self.srcAB = (R[1] | R[2]) if self.is_mfma else set()
        self.wide_store = self.is_vmem and "store" in op and ("x4" in op or "x3" in op)
        if self.wide_store:
            self.sdata = R[1] if op.startswith("global_") else R[0]
        self.states = 1
        if op == "s_nop": self.states = int(ops[0]) + 1

def need(p, c):
    n = 0
    pv = {x for x in p.w if x[0] in "va"}
    ps = {x for x in p.w if x[0] == "s"}
    if p.is_valu:
        if c.dpp and (pv & c.r): n = max(n, 2)
        if c.perml and (pv & c.r): n = max(n, 2)
        if c.is_mfma and (pv & c.r): n = max(n, 2)
        if c.rdlane and (pv & c.r): n = max(n, 1)
        if p.trans and c.is_valu and not c.trans and (pv & c.r): n = max(n, 1)
        if p.trans and c.trans and (pv & c.r): n = max(n, 1)
        if ps:
            if c.is_valu and (ps & c.r): n = max(n, 4 if c.rdlane else 2)
            if c.is_vmem and (ps & c.r): n = max(n, 5)
            if c.is_salu and (ps & c.r): n = max(n, 1)
    if p.is_mfma:
        if c.is_mfma:
            if pv & c.srcAB: n = max(n, 8)
            if (pv & c.srcC) and pv != c.srcC: n = max(n, 6)
            if (pv & c.w) and not (pv == c.srcC): n = max(n, 8)
        elif (c.is_valu and (pv & (c.r | c.w))) or ((c.is_vmem or c.is_ds) and (pv & (c.r | c.w))):
            n = max(n, 8)
        if c.is_valu and (p.srcC & c.w): n = max(n, 3)
    if p.wide_store and (p.sdata & c.w): n = max(n, 2)
    if p.is_salu and ("s", "m0") in p.w and ("s", "m0") in c.r and c.is_vmem: n = max(n, 1)
    return n

class Asm:
    def __init__(self):
        self.lines = []
        self.hist = []
        self.nops = 0
    def raw(self, s): self.lines.append(s)
    def label(self, s):
        self.lines.append(f"{s}:")
    def __call__(self, text):
        for t in text.strip().split("\n"):
            t = t.strip()
            if not t: continue
            if t.startswith(";"):
                self.lines.append("    " + t); continue
            if t.endswith(":"):
                self.lines.append(t); continue
            c = Ins(t)
            dist = 0; pad = 0
            for p in reversed(self.hist):
                nd = need(p, c)
                if nd > dist: pad = max(pad, nd - dist)
                dist += p.states
                if dist >= 12: break
            if pad:
                nop = Ins(f"s_nop {pad-1}")
                self.lines.append(f"    s_nop {pad-1}")
                self.hist.append(nop); self.nops += 1
            self.lines.append("    " + t)
            self.hist.append(c)
            if c.op in ("s_branch", "s_endpgm"): self.hist = []
    def text(self): return "\n".join(self.lines) + "\n"

class Regs:
    def __init__(self, kind, start, limit):
        self.kind, self.next, self.limit = kind, start, limit
        self.hi = start
    def alloc(self, n=1, align=1):
        a = (self.next + align - 1) // align * align
        self.next = a + n
        assert self.next <= self.limit, f"out of {self.kind} regs"
        self.hi = max(self.hi, self.next)
        return a
def vr(a, n=1): return f"v{a}" if n == 1 else f"v[{a}:{a+n-1}]"
def sr(a, n=1): return f"s{a}" if n == 1 else f"s[{a}:{a+n-1}]"
```

```python
import sys, struct
from asmlib import *

NAME = "sequential_preLN__sliding_block_cached__glu_gated_geglu__decode"
HEADER = open("cdna_kernels/%s.s.ref" % NAME).read().split("; Override launch")[0]

def f2u(x): return struct.unpack("<I", struct.pack("<f", x))[0]

QOFF, OOFF, HOFF, YOFF, DIAGOFF = 0x1000, 0x20000, 0x80000, 0x90000, 0x100000
QACC, OACC, LACC, GACC, STAT, YACC = 0, 256, 1280, 1536, 1792, 1920
QB, WM, HV, KL = 2560, 3072, 3328, 8192

def gen(diag=False, nt="nt", nV_pre=2, nV_mid=1, wo_pre=4, spin_cap=True, codepf=True):
    A = Asm()
    V = Regs("v", 1, 168); S = Regs("s", 32, 100)
    nV_post = 4 - nV_pre - nV_mid
    pX, pK, pV, pWQ, pWO, pG, pU, pD, pOUT, pWS = 8, 10, 12, 14, 16, 20, 22, 24, 26, 30
    sX, sI, sLI, sH, sS, sW, sT, sE = [S.alloc() for _ in range(8)]
    sRole, sC, sF = S.alloc(), S.alloc(), S.alloc()
    st0, st1, st2, st3 = [S.alloc() for _ in range(4)]
    sSelIns = [S.alloc() for _ in range(4)]
    sSelChk = S.alloc()
    sp0 = S.alloc(2, 2); sp1 = S.alloc(2, 2); sStr = S.alloc(2, 2)
    sCnt = S.alloc()
    sHi = S.alloc()
    stamps = []
    def stamp(name):
        if diag:
            r = S.alloc(2, 2); stamps.append((name, r)); A(f"s_memrealtime {sr(r,2)}")
    def restamp(name):
        if diag:
            r = dict(stamps)[name]; A(f"s_memrealtime {sr(r,2)}")

    vL, vG, vN, vC8, vT = [V.alloc() for _ in range(5)]
    vMk = V.alloc(4, 2)
    vAcc = V.alloc()
    vt = [V.alloc() for _ in range(10)]
    vAd = V.alloc(2, 2)
    vKV = V.alloc()
    vXh = V.alloc()
    vA = V.alloc(8, 2)
    vD = V.alloc(4, 2)
    vP = V.alloc(4, 2)
    vWq = V.alloc(8, 2)
    vXa = V.alloc(4, 2); vXu = V.alloc(); vXm = V.alloc()
    vKf = V.alloc(16, 2)
    vQf = V.alloc(16, 2)
    vVv = V.alloc(16, 2)
    vBig = V.alloc(32, 2)
    vDn = V.alloc(16, 2)
    vGa = vKf
    vML = vQf

    def bar(): A("s_barrier")
    def tag_insert(base):
        for k in range(4): A(f"v_perm_b32 {vr(base+k)}, {vr(base+k)}, {vr(vT)}, {sr(sSelIns[k])}")
    def tag_check(base, acc_first):
        A(f"v_perm_b32 {vr(vt[8])}, {vr(base+1)}, {vr(base)}, {sr(sSelChk)}")
        A(f"v_perm_b32 {vr(vt[9])}, {vr(base+3)}, {vr(base+2)}, {sr(sSelChk)}")
        A(f"v_lshl_or_b32 {vr(vt[8])}, {vr(vt[9])}, 16, {vr(vt[8])}")
        if acc_first:
            A(f"v_cmp_ne_u32 {sr(sp0,2)}, {vr(vt[8])}, {vr(vT)}")
        else:
            A(f"v_cmp_ne_u32 vcc, {vr(vt[8])}, {vr(vT)}")
            A(f"s_or_b64 {sr(sp0,2)}, {sr(sp0,2)}, vcc")
    def halve4(a, dst):
        A(f"v_permlane32_swap_b32 {vr(a)}, {vr(a+2)}")
        A(f"v_permlane32_swap_b32 {vr(a+1)}, {vr(a+3)}")
        A(f"v_add_f32 {vr(a)}, {vr(a)}, {vr(a+2)}")
        A(f"v_add_f32 {vr(a+1)}, {vr(a+1)}, {vr(a+3)}")
        A(f"v_permlane16_swap_b32 {vr(a)}, {vr(a+1)}")
        A(f"v_add_f32 {vr(dst)}, {vr(a)}, {vr(a+1)}")
    def afrag(dst, src):
        for k in range(4): A(f"v_and_b32 {vr(dst+k)}, {vr(src)}, {vr(vMk+k)}")
    def bcast_pair(dst, src, i):
        A(f"v_mov_b32_dpp {vr(dst)}, {vr(src)} row_newbcast:{2*i} row_mask:0xf bank_mask:0x3")
        A(f"v_mov_b32_dpp {vr(dst)}, {vr(src)} row_newbcast:{2*i+1} row_mask:0xf bank_mask:0xc")
    def mfma(d, a, b, first):
        A(f"v_mfma_f32_16x16x32_bf16 {vr(d,4)}, {vr(a,4)}, {vr(b,4)}, {'0' if first else vr(d,4)}")
    def valid_exec():
        A("s_mov_b32 exec_lo, 0x00ff00ff"); A("s_mov_b32 exec_hi, 0xff00ff00")
    def full_exec(): A("s_mov_b64 exec, -1")
    def ds_add_tile(base):
        valid_exec()
        for r in range(4): A(f"ds_add_f32 {vr(vAcc)}, {vr(vD+r)} offset:{base+4*r}")
        full_exec()
    def bf16r(dst, src):
        A(f"v_cvt_pk_bf16_f32 {vr(dst)}, {vr(src)}, {vr(src)}")
        A(f"v_and_b32 {vr(dst)}, {sr(sHi)}, {vr(dst)}")
    def wave_sum2(a, b, tmp):
        A(f"v_permlane32_swap_b32 {vr(a)}, {vr(b)}")
        A(f"v_add_f32 {vr(a)}, {vr(a)}, {vr(b)}")
        A(f"v_mov_b32 {vr(tmp)}, {vr(a)}")
        A(f"v_permlane16_swap_b32 {vr(a)}, {vr(tmp)}")
        A(f"v_add_f32 {vr(a)}, {vr(a)}, {vr(tmp)}")
        for sh in (8, 4, 2, 1):
            A(f"v_add_f32_dpp {vr(a)}, {vr(a)}, {vr(a)} row_ror:{sh} row_mask:0xf bank_mask:0xf")
    def spin_tail(lbl):
        A(f"s_cmp_eq_u64 {sr(sp0,2)}, 0")
        if spin_cap:
            A(f"s_cbranch_scc1 {lbl}_ok")
            A(f"s_add_u32 {sr(sCnt)}, {sr(sCnt)}, 1")
            A(f"s_cmp_lt_u32 {sr(sCnt)}, 0x40000")
            A(f"s_cbranch_scc1 {lbl}")
            A(f"{lbl}_ok:")
        else:
            A(f"s_cbranch_scc0 {lbl}")

    stamp("start")
    A("s_cmp_ge_u32 s2, 256")
    A("s_cbranch_scc1 L_end")
    A("s_load_dwordx16 s[8:23], s[0:1], 0")
    A("s_load_dwordx8 s[24:31], s[0:1], 64")
    A(f"v_lshlrev_b32 {vr(vt[0])}, 2, v0")
    A(f"v_mov_b32 {vr(vt[1])}, 0")
    A(f"ds_write_b32 {vr(vt[0])}, {vr(vt[1])}")
    A(f"v_lshrrev_b32 {vr(vt[2])}, 6, v0")
    A(f"s_and_b32 {sr(sX)}, s2, 7")
    A(f"s_lshr_b32 {sr(sI)}, s2, 3")
    A(f"v_readfirstlane_b32 {sr(sW)}, {vr(vt[2])}")
    if codepf:
        A(f"s_lshl_b32 {sr(st0)}, {sr(sW)}, 5")
        A(f"s_add_u32 {sr(st0)}, {sr(st0)}, {sr(sI)}")
        A(f"s_cmp_eq_u32 {sr(st0)}, {8*32+31}")
        A("s_cbranch_scc0 L_nopf")
        A(f"s_getpc_b64 {sr(sp1,2)}")
        A(f"v_and_b32 {vr(vt[0])}, 63, v0")
        A(f"v_lshlrev_b32 {vr(vt[0])}, 7, {vr(vt[0])}")
        A(f"v_min_u32 {vr(vt[0])}, L_code_end-.-16, {vr(vt[0])}")
        A(f"global_load_dword {vr(vBig)}, {vr(vt[0])}, {sr(sp1,2)}")
        A("L_nopf:")
    A(f"s_lshl_b32 {sr(sLI)}, {sr(sX)}, 5")
    A(f"s_add_u32 {sr(sLI)}, {sr(sLI)}, {sr(sI)}")
    A(f"s_lshr_b32 {sr(sH)}, {sr(sLI)}, 4")
    A(f"s_and_b32 {sr(sS)}, {sr(sI)}, 15")
    A(f"v_and_b32 {vr(vL)}, 63, v0")
    A(f"v_bfe_u32 {vr(vG)}, v0, 4, 2")
    A(f"v_and_b32 {vr(vN)}, 15, v0")
    A(f"v_and_b32 {vr(vC8)}, 7, v0")
    A(f"s_lshr_b32 {sr(st0)}, {sr(sS)}, 2")
    A(f"s_mul_i32 {sr(st0)}, {sr(st0)}, 144")
    A(f"s_and_b32 {sr(st1)}, {sr(sS)}, 3")
    A(f"s_lshl_b32 {sr(st1)}, {sr(st1)}, 7")
    A(f"s_lshl_b32 {sr(st2)}, {sr(sH)}, 9")
    A(f"s_add_u32 {sr(st1)}, {sr(st1)}, {sr(st2)}")
    A(f"v_lshrrev_b32 {vr(vt[3])}, 3, v0")
    A(f"v_lshl_add_u32 {vr(vt[3])}, {vr(vt[3])}, 1, {sr(st0)}")
    A(f"v_lshl_add_u32 {vr(vt[4])}, {vr(vC8)}, 4, {sr(st1)}")
    A(f"v_lshl_add_u32 {vr(vt[4])}, {vr(vt[3])}, 13, {vr(vt[4])}")
    A(f"v_add_u32 {vr(vt[5])}, 0x2000, {vr(vt[4])}")
    A(f"v_lshlrev_b32 {vr(vt[3])}, 1, {vr(vt[3])}")
    A(f"v_lshlrev_b32 {vr(vt[6])}, 4, {vr(vL)}")
    A(f"v_lshlrev_b32 {vr(vt[7])}, 1, {vr(vL)}")
    A(f"s_lshl_b32 {sr(st2)}, {sr(sH)}, 21")
    A(f"s_lshl_b32 {sr(st3)}, {sr(sS)}, 15")
    A(f"s_add_u32 {sr(st2)}, {sr(st2)}, {sr(st3)}")
    A(f"s_lshl_b32 {sr(st3)}, {sr(sW)}, 12")
    A(f"s_add_u32 {sr(st2)}, {sr(st2)}, {sr(st3)}")
    A(f"s_add_u32 {sr(st2)}, {sr(st2)}, 0x180000")
    A(f"s_add_u32 m0, {sr(st3)}, {KL}")
    A("s_waitcnt lgkmcnt(0)")
    A(f"global_load_dwordx4 {vr(vXa,4)}, {vr(vt[6])}, {sr(pX,2)}")
    A(f"global_load_ushort {vr(vXu)}, {vr(vt[7])}, {sr(pX,2)} offset:1024")
    A(f"global_load_dword {vr(vXm)}, {vr(vt[3])}, {sr(pX,2)}")
    A(f"global_load_dwordx4 {vr(vWq,4)}, {vr(vt[4])}, {sr(pWQ,2)} {nt}")
    A(f"global_load_dwordx4 {vr(vWq+4,4)}, {vr(vt[5])}, {sr(pWQ,2)} {nt}")
    A(f"s_load_dword {sr(sE)}, {sr(pWS,2)}, 0")
    A(f"v_xor_b32 {vr(vt[0])}, {vr(vN)}, {vr(vG)}")
    A(f"v_lshl_add_u32 {vr(vt[1])}, {vr(vt[0])}, 4, {sr(st2)}")
    A(f"v_lshl_add_u32 {vr(vt[1])}, {vr(vG)}, 8, {vr(vt[1])}")
    A(f"v_xor_b32 {vr(vt[2])}, 64, {vr(vt[1])}")
    A(f"v_xor_b32 {vr(vt[3])}, 0x80, {vr(vt[1])}")
    A(f"v_xor_b32 {vr(vt[4])}, 0xc0, {vr(vt[1])}")
    A(f"v_lshl_add_u32 {vr(vKV)}, {vr(vN)}, 4, {sr(st2)}")
    A(f"v_lshl_add_u32 {vr(vKV)}, {vr(vG)}, 10, {vr(vKV)}")
    bar()
    A(f"s_cmp_eq_u32 {sr(sW)}, 8")
    A("s_cbranch_scc1 L_nokv")
    for t in range(4):
        A(f"global_load_lds_dwordx4 {vr(vt[1+t])}, {sr(pK,2)} offset:{t*1024} {nt}")
    A("L_nokv:")
    bar()
    A("s_cbranch_scc1 L_nokv2")
    for r in range(nV_pre):
        A(f"global_load_dwordx4 {vr(vVv+4*r,4)}, {vr(vKV)}, {sr(pV,2)} offset:{r*256} {nt}")
    A("L_nokv2:")
    stamp("issued1")
    A(f"s_lshr_b32 {sr(st0)}, {sr(sI)}, 4")
    A(f"s_mul_i32 {sr(st0)}, {sr(st0)}, 7")
    A(f"s_add_u32 {sr(st0)}, {sr(st0)}, {sr(sS)}")
    A(f"s_sub_u32 {sr(sC)}, {sr(st0)}, 9")
    A(f"s_mul_i32 {sr(sF)}, {sr(sH)}, 9")
    A(f"s_add_u32 {sr(sF)}, {sr(sF)}, {sr(sS)}")
    A(f"s_cmp_lt_u32 {sr(sC)}, 9")
    A(f"s_cselect_b32 {sr(sRole)}, 1, 2")
    A(f"s_cmp_lt_u32 {sr(sS)}, 9")
    A(f"s_cselect_b32 {sr(sRole)}, 0, {sr(sRole)}")
    A(f"s_mov_b32 {sr(sCnt)}, 0")
    A(f"s_mov_b32 {sr(sHi)}, 0xffff0000")
    for k in range(4): A(f"s_mov_b32 {sr(sSelIns[k])}, {hex(0x07060500 + k)}")
    A(f"s_mov_b32 {sr(sSelChk)}, 0x0c0c0400")
    A(f"v_and_b32 {vr(vt[0])}, 1, v0")
    A(f"v_lshlrev_b32 {vr(vt[0])}, 4, {vr(vt[0])}")
    A(f"v_mov_b32 {vr(vt[1])}, 0xffff")
    A(f"v_lshlrev_b32 {vr(vt[0])}, {vr(vt[0])}, {vr(vt[1])}")
    A(f"v_bfe_u32 {vr(vt[1])}, v0, 1, 2")
    for k in range(4):
        A(f"v_cmp_eq_u32 vcc, {k}, {vr(vt[1])}")
        A(f"v_cndmask_b32 {vr(vMk+k)}, 0, {vr(vt[0])}, vcc")
    A(f"v_and_b32 {vr(vt[0])}, 1, {vr(vG)}")
    A(f"v_lshlrev_b32 {vr(vt[0])}, 4, {vr(vt[0])}")
    A(f"v_lshl_add_u32 {vr(vAcc)}, {vr(vC8)}, 5, {vr(vt[0])}")
    nafter = 4 + nV_pre
    A(f"s_cmp_eq_u32 {sr(sW)}, 8")
    A("s_cbranch_scc0 L_w07a")
    A("s_waitcnt vmcnt(2)")
    A("L_w07a:")
    A(f"s_waitcnt vmcnt({nafter+2})")
    e = vKf
    for k in range(4):
        A(f"v_lshlrev_b32 {vr(e+2*k)}, 16, {vr(vXa+k)}")
        A(f"v_and_b32 {vr(e+2*k+1)}, {sr(sHi)}, {vr(vXa+k)}")
    A(f"v_lshlrev_b32 {vr(e+8)}, 16, {vr(vXu)}")
    A(f"v_add_f32 {vr(vt[0])}, {vr(e)}, {vr(e+1)}")
    A(f"v_mul_f32 {vr(vt[1])}, {vr(e)}, {vr(e)}")
    for k in range(1, 9):
        if k >= 2: A(f"v_add_f32 {vr(vt[0])}, {vr(vt[0])}, {vr(e+k)}")
        A(f"v_fmac_f32 {vr(vt[1])}, {vr(e+k)}, {vr(e+k)}")
    wave_sum2(vt[0], vt[1], vt[2])
    A(f"v_mul_f32 {vr(vt[0])}, {hex(f2u(1.0/576))}, {vr(vt[0])}")
    A(f"v_readlane_b32 {sr(st0)}, {vr(vt[0])}, 0        ; mean")
    A(f"v_readlane_b32 {sr(st1)}, {vr(vt[0])}, 32       ; E[x^2]")
    A(f"v_mov_b32 {vr(vt[0])}, {sr(st0)}")
    A(f"v_fma_f32 {vr(vt[1])}, -{vr(vt[0])}, {vr(vt[0])}, {sr(st1)}   ; var")
    A(f"v_max_f32 {vr(vt[1])}, 0, {vr(vt[1])}")
    bf16r(vt[0], vt[0]); bf16r(vt[1], vt[1])
    A(f"v_add_f32 {vr(vt[1])}, {hex(f2u(1e-5))}, {vr(vt[1])}")
    bf16r(vt[1], vt[1])
    A(f"v_sqrt_f32 {vr(vt[1])}, {vr(vt[1])}")
    bf16r(vt[1], vt[1])
    A(f"v_rcp_f32 {vr(vt[1])}, {vr(vt[1])}")
    A(f"v_lshlrev_b32 {vr(vt[2])}, 16, {vr(vXm)}")
    A(f"v_and_b32 {vr(vt[3])}, {sr(sHi)}, {vr(vXm)}")
    A(f"v_sub_f32 {vr(vt[2])}, {vr(vt[2])}, {vr(vt[0])}")
    A(f"v_sub_f32 {vr(vt[3])}, {vr(vt[3])}, {vr(vt[0])}")
    bf16r(vt[2], vt[2]); bf16r(vt[3], vt[3])
    A(f"v_mul_f32 {vr(vt[2])}, {vr(vt[2])}, {vr(vt[1])}")
    A(f"v_mul_f32 {vr(vt[3])}, {vr(vt[3])}, {vr(vt[1])}")
    A(f"v_cvt_pk_bf16_f32 {vr(vt[2])}, {vr(vt[2])}, {vr(vt[2])}")
    A(f"v_cvt_pk_bf16_f32 {vr(vt[3])}, {vr(vt[3])}, {vr(vt[3])}")
    afrag(vA, vt[2]); afrag(vA+4, vt[3])
    A("s_waitcnt lgkmcnt(0)")
    A(f"s_add_u32 {sr(sT)}, {sr(sE)}, 0x01010101")
    A(f"v_mov_b32 {vr(vT)}, {sr(sT)}")
    A(f"s_cmp_eq_u32 {sr(sW)}, 8")
    A("s_cbranch_scc0 L_w07b")
    A("s_waitcnt vmcnt(0)")
    A("L_w07b:")
    A(f"s_waitcnt vmcnt({nafter})")
    stamp("wq_landed")
    mfma(vD, vA, vWq, True); mfma(vD, vA+4, vWq+4, False)
    ds_add_tile(QACC)
    A("s_waitcnt lgkmcnt(0)")
    bar()
    A(f"s_cmp_eq_u32 {sr(sW)}, 8")
    A("s_cbranch_scc0 L_w07c")
    A(f"v_lshlrev_b32 {vr(vt[0])}, 4, {vr(vN)}")
    A(f"ds_read_b128 {vr(vD,4)}, {vr(vt[0])} offset:{QACC}")
    A(f"s_lshl_b32 {sr(st0)}, {sr(sLI)}, 8")
    A(f"s_add_u32 {sr(st0)}, {sr(st0)}, {QOFF}")
    A(f"v_add_u32 {vr(vt[0])}, {sr(st0)}, {vr(vt[0])}")
    A("s_waitcnt lgkmcnt(0)")
    tag_insert(vD)
    A("s_mov_b64 exec, 0xffff")
    A(f"global_store_dwordx4 {vr(vt[0])}, {vr(vD,4)}, {sr(pWS,2)} sc1")
    full_exec()
    A("s_branch L_mid")
    A("L_w07c:")
    for r in range(nV_pre, nV_pre + nV_mid):
        A(f"global_load_dwordx4 {vr(vVv+4*r,4)}, {vr(vKV)}, {sr(pV,2)} offset:{r*256} {nt}")
    A("L_mid:")
    stamp("q_pub")
    A(f"v_bfe_u32 {vr(vt[0])}, v0, 3, 1")
    A(f"v_lshl_add_u32 {vr(vt[0])}, {vr(vt[0])}, 2, {vr(vG)}       ; 4s'+g")
    A(f"s_lshl_b32 {sr(st0)}, {sr(sF)}, 5")
    A(f"s_lshl_b32 {sr(st1)}, {sr(sX)}, 9")
    A(f"s_lshl_b32 {sr(st2)}, {sr(sW)}, 6")
    A(f"s_add_u32 {sr(st1)}, {sr(st1)}, {sr(st2)}")
    A(f"s_cmp_eq_u32 {sr(sRole)}, 0")
    A(f"s_cselect_b32 {sr(st0)}, {sr(st0)}, {sr(st1)}")
    A(f"s_cselect_b32 {sr(st1)}, {sr(sW)}, {sr(sC)}")
    A(f"s_mul_i32 {sr(st0)}, {sr(st0)}, 1152")
    A(f"s_lshl_b32 {sr(st1)}, {sr(st1)}, 7")
    A(f"s_add_u32 {sr(st0)}, {sr(st0)}, {sr(st1)}")
    A(f"s_movk_i32 {sr(st1)}, 1152")
    A(f"v_lshl_add_u32 {vr(vt[6])}, {vr(vC8)}, 4, {sr(st0)}")
    A(f"v_mad_u32_u24 {vr(vt[6])}, {vr(vt[0])}, {sr(st1)}, {vr(vt[6])}")
    A(f"v_add_u32 {vr(vt[0])}, {sr(st2)}, {vr(vt[0])}")
    A(f"s_movk_i32 {sr(st1)}, 9216")
    A(f"s_lshl_b32 {sr(st0)}, {sr(sF)}, 6")
    A(f"v_and_b32 {vr(vt[1])}, 3, v0")
    A(f"v_lshl_add_u32 {vr(vt[1])}, {vr(vt[1])}, 4, {sr(st0)}")
    A(f"v_mad_u32_u24 {vr(vt[1])}, {vr(vt[0])}, {sr(st1)}, {vr(vt[1])}")
    A(f"v_and_b32 {vr(vt[2])}, 4, v0")
    A(f"v_cmp_eq_u32 vcc, 0, {vr(vt[2])}")
    A(f"v_mov_b32 {vr(vt[2])}, {sr(pU)}")
    A(f"v_mov_b32 {vr(vt[3])}, {sr(pU+1)}")
    A(f"v_mov_b32 {vr(vt[4])}, {sr(pG)}")
    A(f"v_mov_b32 {vr(vt[5])}, {sr(pG+1)}")
    A(f"v_cndmask_b32 {vr(vAd)}, {vr(vt[2])}, {vr(vt[4])}, vcc")
    A(f"v_cndmask_b32 {vr(vAd+1)}, {vr(vt[3])}, {vr(vt[5])}, vcc")
    A(f"v_add_co_u32 {vr(vAd)}, vcc, {vr(vAd)}, {vr(vt[1])}")
    A(f"v_addc_co_u32 {vr(vAd+1)}, vcc, 0, {vr(vAd+1)}, vcc")
    A(f"s_mov_b32 {sr(sStr)}, {8*9216}")
    A(f"s_mov_b32 {sr(sStr+1)}, 0")
    A(f"v_lshl_add_u32 {vr(vt[7])}, {vr(vN)}, 2, {vr(vG)}")
    A(f"v_add_u32 {vr(vt[7])}, {sr(st2)}, {vr(vt[7])}")
    A(f"v_lshlrev_b32 {vr(vt[7])}, 1, {vr(vt[7])}")
    A(f"s_and_b32 {sr(st0)}, {sr(sW)}, 3")
    A(f"s_lshl_b32 {sr(st1)}, {sr(sH)}, 4")
    A(f"s_add_u32 {sr(st1)}, {sr(st1)}, {sr(st0)}")
    A(f"s_lshl_b32 {sr(st1)}, {sr(st1)}, 8")
    A(f"s_add_u32 {sr(st1)}, {sr(st1)}, {QOFF}")
    A(f"v_lshl_add_u32 {vr(vt[5])}, {vr(vN)}, 4, {sr(st1)}")
    A(f"v_lshl_add_u32 {vr(vt[5])}, {vr(vG)}, 10, {vr(vt[5])}")
    A(f"s_cmp_eq_u32 {sr(sW)}, 8")
    A("s_cbranch_scc1 L_w8d")
    A(f"s_waitcnt vmcnt({nV_pre + nV_mid})")
    A("L_w8d:")
    bar()
    stamp("k_landed")
    A(f"s_cmp_lt_u32 {sr(sW)}, 4")
    A("s_cbranch_scc0 L_nopoll")
    A(f"global_load_dwordx4 {vr(vWq,4)}, {vr(vt[5])}, {sr(pWS,2)} sc1")
    A("L_nopoll:")
    A(f"s_cmp_eq_u32 {sr(sW)}, 8")
    A("s_cbranch_scc1 L_nov2")
    for r in range(nV_pre + nV_mid, 4):
        A(f"global_load_dwordx4 {vr(vVv+4*r,4)}, {vr(vKV)}, {sr(pV,2)} offset:{r*256} {nt}")
    A(f"v_xor_b32 {vr(vt[0])}, {vr(vN)}, {vr(vG)}")
    A(f"v_lshlrev_b32 {vr(vt[0])}, 4, {vr(vt[0])}")
    A(f"v_lshl_add_u32 {vr(vt[0])}, {vr(vN)}, 8, {vr(vt[0])}")
    A(f"v_add_u32 {vr(vt[0])}, m0, {vr(vt[0])}")
    A(f"v_xor_b32 {vr(vt[1])}, 64, {vr(vt[0])}")
    A(f"v_xor_b32 {vr(vt[2])}, 0x80, {vr(vt[0])}")
    A(f"v_xor_b32 {vr(vt[3])}, 0xc0, {vr(vt[0])}")
    for i in range(4): A(f"ds_read_b128 {vr(vKf+4*i,4)}, {vr(vt[i])}")
    A("L_nov2:")
    bar()
    NE = 5
    A(f"s_cmp_eq_u32 {sr(sRole)}, 0")
    A("s_cbranch_scc0 L_notF1")
    for i in range(4):
        A(f"global_load_dwordx4 {vr(vDn+4*i,4)}, {vr(vt[6])}, {sr(pD,2)} {nt}")
        if i < 3: A(f"v_add_u32 {vr(vt[6])}, {8*1152}, {vr(vt[6])}")
    A(f"global_load_ushort {vr(vXh)}, {vr(vt[7])}, {sr(pX,2)}")
    A("s_branch L_e1done")
    A("L_notF1:")
    A(f"s_cmp_eq_u32 {sr(sRole)}, 1")
    A("s_cbranch_scc0 L_roleS1")
    A(f"s_cmp_eq_u32 {sr(sW)}, 8")
    A("s_cbranch_scc1 L_e1done")
    assert wo_pre <= NE
    for i in range(wo_pre):
        A(f"global_load_dwordx4 {vr(vBig+4*i,4)}, {vr(vt[6])}, {sr(pWO,2)} {nt}")
        A(f"v_add_u32 {vr(vt[6])}, {8*1152}, {vr(vt[6])}")
    for i in range(NE - wo_pre):
        A(f"global_load_ushort {vr(vXh)}, {vr(vt[7])}, {sr(pX,2)}")
    A("s_branch L_e1done")
    A("L_roleS1:")
    for i in range(NE):
        A(f"global_load_ushort {vr(vXh)}, {vr(vt[7])}, {sr(pX,2)}")
    A("L_e1done:")
    A(f"s_cmp_lt_u32 {sr(sW)}, 4")
    A("s_cbranch_scc0 L_qdone")
    A(f"s_waitcnt vmcnt({nV_post + NE})")
    tag_check(vWq, True)
    A(f"s_cmp_eq_u64 {sr(sp0,2)}, 0")
    A("s_cbranch_scc1 L_qspin_ok")
    A("L_qspin:")
    A(f"global_load_dwordx4 {vr(vWq,4)}, {vr(vt[5])}, {sr(pWS,2)} sc1")
    A("s_waitcnt vmcnt(0)")
    tag_check(vWq, True)
    if spin_cap: spin_tail("L_qspin")
    else:
        spin_tail("L_qspin"); A("L_qspin_ok:")
    halve4(vWq, vt[0])
    A(f"v_cvt_pk_bf16_f32 {vr(vt[0])}, {vr(vt[0])}, {vr(vt[0])}")
    A(f"ds_write_b16 {vr(vt[7])}, {vr(vt[0])} offset:{QB}      ; (64w+4n+g)*2")
    A("L_qdone:")
    A("s_waitcnt lgkmcnt(0)")
    bar()
    stamp("q_ready")
    A(f"s_cmp_eq_u32 {sr(sW)}, 8")
    A("s_cbranch_scc1 L_w8att")
    A(f"v_bfe_u32 {vr(vt[0])}, v0, 3, 1                        ; head")
    A(f"v_lshlrev_b32 {vr(vt[1])}, 4, {vr(vG)}")
    A(f"v_lshl_add_u32 {vr(vt[1])}, {vr(vt[0])}, 8, {vr(vt[1])}")
    for i in range(4): A(f"ds_read_b128 {vr(vQf+4*i,4)}, {vr(vt[1])} offset:{QB+64*i}")
    A(f"s_lshl_b32 {sr(st0)}, {sr(sW)}, 2")
    A(f"v_lshlrev_b32 {vr(vt[4])}, 5, {vr(vt[0])}              ; head*32")
    A(f"v_add_u32 {vr(vt[5])}, {sr(st0)}, {vr(vt[4])}")
    for i in range(4):
        A(f"s_waitcnt lgkmcnt({3-i})")
        mfma(vD, vKf+4*i, vQf+4*i, i == 0)
    A(f"s_mov_b32 {sr(st1)}, {hex(f2u(128**-0.5))}")
    A(f"v_cvt_pk_bf16_f32 {vr(vt[1])}, {vr(vD)}, {vr(vD+1)}")
    A(f"v_cvt_pk_bf16_f32 {vr(vt[2])}, {vr(vD+2)}, {vr(vD+3)}")
    A(f"v_lshlrev_b32 {vr(vP)}, 16, {vr(vt[1])}")
    A(f"v_and_b32 {vr(vP+1)}, {sr(sHi)}, {vr(vt[1])}")
    A(f"v_lshlrev_b32 {vr(vP+2)}, 16, {vr(vt[2])}")
    A(f"v_and_b32 {vr(vP+3)}, {sr(sHi)}, {vr(vt[2])}")
    for r in range(4): A(f"v_mul_f32 {vr(vP+r)}, {sr(st1)}, {vr(vP+r)}")
    A(f"v_cvt_pk_bf16_f32 {vr(vt[1])}, {vr(vP)}, {vr(vP+1)}")
    A(f"v_cvt_pk_bf16_f32 {vr(vt[2])}, {vr(vP+2)}, {vr(vP+3)}")
    A(f"v_lshlrev_b32 {vr(vP)}, 16, {vr(vt[1])}")
    A(f"v_and_b32 {vr(vP+1)}, {sr(sHi)}, {vr(vt[1])}")
    A(f"v_lshlrev_b32 {vr(vP+2)}, 16, {vr(vt[2])}")
    A(f"v_and_b32 {vr(vP+3)}, {sr(sHi)}, {vr(vt[2])}")
    A(f"v_max_f32 {vr(vt[1])}, {vr(vP)}, {vr(vP+1)}")
    A(f"v_max3_f32 {vr(vt[1])}, {vr(vP+2)}, {vr(vP+3)}, {vr(vt[1])}")
    A(f"v_mov_b32 {vr(vt[2])}, {vr(vt[1])}")
    A(f"v_permlane32_swap_b32 {vr(vt[1])}, {vr(vt[2])}")
    A(f"v_max_f32 {vr(vt[1])}, {vr(vt[1])}, {vr(vt[2])}")
    A(f"v_mov_b32 {vr(vt[2])}, {vr(vt[1])}")
    A(f"v_permlane16_swap_b32 {vr(vt[1])}, {vr(vt[2])}")
    A(f"v_max_f32 {vr(vt[1])}, {vr(vt[1])}, {vr(vt[2])}")
    A(f"ds_write_b32 {vr(vt[5])}, {vr(vt[1])} offset:{WM}")
    A("s_waitcnt lgkmcnt(0)")
    bar()
    A(f"ds_read_b128 {vr(vQf,4)}, {vr(vt[4])} offset:{WM}")
    A(f"ds_read_b128 {vr(vQf+4,4)}, {vr(vt[4])} offset:{WM+16}")
    A(f"s_mov_b32 {sr(st1)}, {hex(f2u(1.4426950408889634))}")
    A(f"v_lshlrev_b32 {vr(vt[3])}, 2, {vr(vt[0])}              ; head*4")
    A(f"v_lshlrev_b32 {vr(vt[5])}, 2, {vr(vL)}")
    A("s_waitcnt lgkmcnt(0)")
    A(f"v_max3_f32 {vr(vt[1])}, {vr(vQf)}, {vr(vQf+1)}, {vr(vQf+2)}")
    A(f"v_max3_f32 {vr(vt[2])}, {vr(vQf+3)}, {vr(vQf+4)}, {vr(vQf+5)}")
    A(f"v_max3_f32 {vr(vt[1])}, {vr(vQf+6)}, {vr(vQf+7)}, {vr(vt[1])}")
    A(f"v_max_f32 {vr(vt[1])}, {vr(vt[1])}, {vr(vt[2])}")
    for r in range(4): A(f"v_sub_f32 {vr(vP+r)}, {vr(vP+r)}, {vr(vt[1])}")
    for r in range(4): A(f"v_mul_f32 {vr(vP+r)}, {sr(st1)}, {vr(vP+r)}")
    for r in range(4): A(f"v_exp_f32 {vr(vP+r)}, {vr(vP+r)}")
    A(f"v_add_f32 {vr(vt[1])}, {vr(vP)}, {vr(vP+1)}")
    A(f"v_add_f32 {vr(vt[2])}, {vr(vP+2)}, {vr(vP+3)}")
    A(f"v_add_f32 {vr(vt[1])}, {vr(vt[1])}, {vr(vt[2])}")
    A("s_mov_b32 exec_lo, 0x01010101"); A("s_mov_b32 exec_hi, 0x01010101")
    A(f"ds_add_f32 {vr(vt[3])}, {vr(vt[1])} offset:{LACC}")
    full_exec()
    for r in range(4): A(f"v_cvt_pk_bf16_f32 {vr(vP+r)}, {vr(vP+r)}, {vr(vP+r)}")
    for r in range(4): afrag(vKf+4*r, vP+r)
    for r in range(4):
        rem = NE + (3 - r) if r >= nV_pre + nV_mid else NE + nV_post
        if r == 0 or r >= nV_pre + nV_mid: A(f"s_waitcnt vmcnt({rem})")
        mfma(vD, vKf+4*r, vVv+4*r, r == 0)
    stamp("v_landed")
    for r in range(4): A(f"ds_add_f32 {vr(vt[5])}, {vr(vD+r)} offset:{OACC+256*r}")
    A("s_waitcnt lgkmcnt(0)")
    bar()
    A("s_branch L_attdone")
    A("L_w8att:")
    A(f"v_lshlrev_b32 {vr(vt[5])}, 2, {vr(vL)}")
    A(f"v_and_b32 {vr(vt[0])}, 1, v0")
    A(f"v_lshlrev_b32 {vr(vt[4])}, 5, {vr(vt[0])}")
    A(f"v_lshlrev_b32 {vr(vt[3])}, 2, {vr(vt[0])}")
    A(f"s_mul_i32 {sr(st0)}, {sr(sLI)}, 1152")
    A(f"s_add_u32 {sr(st0)}, {sr(st0)}, {OOFF}")
    A(f"v_lshl_add_u32 {vr(vt[8])}, {vr(vt[0])}, 4, {sr(st0)}")
    A(f"v_lshrrev_b32 {vr(vt[1])}, 1, {vr(vG)}")
    A(f"v_and_b32 {vr(vt[2])}, 1, {vr(vG)}")
    A(f"v_lshl_add_u32 {vr(vt[2])}, {vr(vN)}, 1, {vr(vt[2])}")
    A(f"v_lshl_add_u32 {vr(vt[2])}, {vr(vt[1])}, 5, {vr(vt[2])}")
    A(f"v_lshl_add_u32 {vr(vt[9])}, {vr(vt[2])}, 4, {sr(st0)}")
    bar()
    A(f"ds_read_b128 {vr(vQf,4)}, {vr(vt[4])} offset:{WM}")
    A(f"ds_read_b128 {vr(vQf+4,4)}, {vr(vt[4])} offset:{WM+16}")
    A("s_waitcnt lgkmcnt(0)")
    A(f"v_max3_f32 {vr(vt[1])}, {vr(vQf)}, {vr(vQf+1)}, {vr(vQf+2)}")
    A(f"v_max3_f32 {vr(vt[2])}, {vr(vQf+3)}, {vr(vQf+4)}, {vr(vQf+5)}")
    A(f"v_max3_f32 {vr(vt[1])}, {vr(vQf+6)}, {vr(vQf+7)}, {vr(vt[1])}")
    A(f"v_max_f32 {vr(vP)}, {vr(vt[1])}, {vr(vt[2])}")
    A(f"v_mov_b32 {vr(vP+2)}, 0")
    A(f"v_mov_b32 {vr(vP+3)}, {vr(vT)}")
    restamp("v_landed")
    bar()
    A(f"ds_read2st64_b32 {vr(vD,2)}, {vr(vt[5])} offset0:{OACC//256} offset1:{OACC//256+1}")
    A(f"ds_read2st64_b32 {vr(vD+2,2)}, {vr(vt[5])} offset0:{OACC//256+2} offset1:{OACC//256+3}")
    A(f"ds_read_b32 {vr(vP+1)}, {vr(vt[3])} offset:{LACC}")
    A("s_waitcnt lgkmcnt(1)")
    tag_insert(vD)
    A(f"global_store_dwordx4 {vr(vt[9])}, {vr(vD,4)}, {sr(pWS,2)} sc1")
    A("s_waitcnt lgkmcnt(0)")
    A("s_mov_b64 exec, 3")
    A(f"global_store_dwordx4 {vr(vt[8])}, {vr(vP,4)}, {sr(pWS,2)} offset:1024 sc1")
    full_exec()
    A("L_attdone:")
    bar()
    stamp("o_pub")
    A(f"s_cmp_eq_u32 {sr(sRole)}, 0")
    A("s_cbranch_scc1 L_roleF")
    A(f"s_cmp_eq_u32 {sr(sRole)}, 2")
    A("s_cbranch_scc1 L_fin")
    A(f"s_cmp_eq_u32 {sr(sW)}, 8")
    A("s_cbranch_scc1 L_W8")
    for i in range(wo_pre, 8):
        A(f"global_load_dwordx4 {vr(vBig+4*i,4)}, {vr(vt[6])}, {sr(pWO,2)} {nt}")
        if i < 7: A(f"v_add_u32 {vr(vt[6])}, {8*1152}, {vr(vt[6])}")
    A(f"s_lshr_b32 {sr(st0)}, {sr(sW)}, 2")
    A(f"s_lshl_b32 {sr(st0)}, {sr(st0)}, 4")
    A(f"s_lshl_b32 {sr(st1)}, {sr(sX)}, 5")
    A(f"s_add_u32 {sr(st0)}, {sr(st0)}, {sr(st1)}")
    A(f"s_mul_i32 {sr(st0)}, {sr(st0)}, 1152")
    A(f"s_add_u32 {sr(st0)}, {sr(st0)}, {OOFF}")
    A(f"s_and_b32 {sr(st1)}, {sr(sW)}, 3")
    A(f"s_lshl_b32 {sr(st2)}, {sr(st1)}, 8")
    A(f"s_add_u32 {sr(st2)}, {sr(st2)}, {sr(st0)}")
    A(f"s_lshr_b32 {sr(st1)}, {sr(st1)}, 1")
    A(f"s_lshl_b32 {sr(st1)}, {sr(st1)}, 4")
    A(f"s_add_u32 {sr(st1)}, {sr(st1)}, {sr(st0)}")
    A(f"s_movk_i32 {sr(st3)}, 1152")
    A(f"v_lshl_add_u32 {vr(vt[0])}, {vr(vN)}, 4, {sr(st2)}")
    A(f"v_mad_u32_u24 {vr(vt[0])}, {vr(vG)}, {sr(st3)}, {vr(vt[0])}")
    for u in range(1, 4): A(f"v_add_u32 {vr(vt[u])}, {u*4*1152}, {vr(vt[0])}")
    A(f"v_xor_b32 {vr(vt[4])}, {vr(vN)}, {vr(vG)}")
    A(f"v_mov_b32 {vr(vt[5])}, {sr(st1)}")
    A(f"v_mad_u32_u24 {vr(vt[4])}, {vr(vt[4])}, {sr(st3)}, {vr(vt[5])}")
    A(f"s_mov_b32 {sr(st1)}, {hex(f2u(1.4426950408889634))}")
    A("s_waitcnt vmcnt(0)")
    stamp("ph2_landed")
    A("L_wspin:")
    A(f"global_load_dwordx4 {vr(vML,4)}, {vr(vt[4])}, {sr(pWS,2)} offset:1024 sc1")
    for u in range(4): A(f"global_load_dwordx4 {vr(vGa+4*u,4)}, {vr(vt[u])}, {sr(pWS,2)} sc1")
    A("s_waitcnt vmcnt(4)")
    A(f"v_cmp_ne_u32 {sr(sp0,2)}, {vr(vML+3)}, {vr(vT)}")
    A(f"v_mov_b32 {vr(vt[5])}, {vr(vML)}")
    for sh in (8, 4, 2, 1):
        A(f"v_max_f32_dpp {vr(vt[5])}, {vr(vt[5])}, {vr(vt[5])} row_ror:{sh} row_mask:0xf bank_mask:0xf")
    A(f"v_sub_f32 {vr(vt[5])}, {vr(vML)}, {vr(vt[5])}")
    A(f"v_mul_f32 {vr(vt[5])}, {sr(st1)}, {vr(vt[5])}")
    A(f"v_exp_f32 {vr(vt[5])}, {vr(vt[5])}")
    A(f"v_mul_f32 {vr(vt[6])}, {vr(vt[5])}, {vr(vML+1)}")
    for sh in (8, 4, 2, 1):
        A(f"v_add_f32_dpp {vr(vt[6])}, {vr(vt[6])}, {vr(vt[6])} row_ror:{sh} row_mask:0xf bank_mask:0xf")
    A(f"v_rcp_f32 {vr(vt[6])}, {vr(vt[6])}")
    A(f"v_mul_f32 {vr(vt[5])}, {vr(vt[5])}, {vr(vt[6])}")
    for u in range(4):
        A(f"s_waitcnt vmcnt({3-u})")
        tag_check(vGa+4*u, False)
        for k in range(4):
            op = "v_mul_f32_dpp" if u == 0 else "v_fmac_f32_dpp"
            A(f"{op} {vr(vP+k)}, {vr(vt[5])}, {vr(vGa+4*u+k)} row_newbcast:{4*u} row_mask:0xf bank_mask:0xf")
    spin_tail("L_wspin")
    stamp("gath")
    halve4(vP, vt[0])
    A(f"v_cvt_pk_bf16_f32 {vr(vt[0])}, {vr(vt[0])}, {vr(vt[0])}")
    for i in range(8):
        bcast_pair(vt[1+i%2], vt[0], i)
        afrag(vA+4*(i%2), vt[1+i%2])
        mfma(vD, vA+4*(i%2), vBig+4*i, i == 0)
    ds_add_tile(GACC)
    A("s_waitcnt lgkmcnt(0)")
    bar()
    A("s_branch L_fin")
    A("L_W8:")
    A(f"v_lshlrev_b32 {vr(vt[0])}, 4, {vr(vN)}")
    A(f"s_lshl_b32 {sr(st0)}, {sr(sC)}, 3")
    A(f"s_add_u32 {sr(st0)}, {sr(st0)}, {sr(sX)}")
    A(f"s_lshl_b32 {sr(st0)}, {sr(st0)}, 8")
    A(f"s_add_u32 {sr(st0)}, {sr(st0)}, {HOFF}")
    A(f"v_add_u32 {vr(vt[1])}, {sr(st0)}, {vr(vt[0])}")
    bar()
    A(f"ds_read_b128 {vr(vD,4)}, {vr(vt[0])} offset:{GACC}")
    A("s_waitcnt lgkmcnt(0)")
    tag_insert(vD)
    A("s_mov_b64 exec, 0xffff")
    A(f"global_store_dwordx4 {vr(vt[1])}, {vr(vD,4)}, {sr(pWS,2)} sc1")
    full_exec()
    restamp("gath")
    A("s_branch L_fin")
    A("L_roleF:")
    for i in range(8):
        A(f"global_load_dwordx4 {vr(vBig+4*i,4)}, {vr(vAd,2)}, off {nt}")
        if i < 7: A(f"v_lshl_add_u64 {vr(vAd,2)}, {sr(sStr,2)}, 0, {vr(vAd,2)}")
    A(f"s_lshl_b32 {sr(st0)}, {sr(sW)}, 11")
    A(f"s_add_u32 {sr(st0)}, {sr(st0)}, {HOFF}")
    A(f"v_lshl_add_u32 {vr(vt[0])}, {vr(vL)}, 4, {sr(st0)}        ; H[w][g (+4)][n]")
    A(f"v_lshlrev_b32 {vr(vt[7])}, 1, {vr(vt[7])}")
    A(f"v_lshrrev_b32 {vr(vt[6])}, 5, {vr(vL)}")
    A(f"v_lshlrev_b32 {vr(vt[6])}, 2, {vr(vt[6])}")
    A("s_waitcnt vmcnt(0)")
    restamp("ph2_landed")
    A(f"v_lshlrev_b32 {vr(vXh)}, 16, {vr(vXh)}")
    A("L_fspin:")
    A(f"global_load_dwordx4 {vr(vGa,4)}, {vr(vt[0])}, {sr(pWS,2)} sc1")
    A(f"global_load_dwordx4 {vr(vGa+4,4)}, {vr(vt[0])}, {sr(pWS,2)} offset:1024 sc1")
    A("s_waitcnt vmcnt(1)")
    tag_check(vGa, True)
    A("s_waitcnt vmcnt(0)")
    tag_check(vGa+4, False)
    for k in range(4): A(f"v_add_f32 {vr(vP+k)}, {vr(vGa+k)}, {vr(vGa+4+k)}")
    spin_tail("L_fspin")
    restamp("gath")
    halve4(vP, vt[1])
    bf16r(vt[1], vt[1])
    A(f"v_add_f32 {vr(vt[1])}, {vr(vt[1])}, {vr(vXh)}")
    bf16r(vt[1], vt[1])
    A(f"ds_write_b32 {vr(vt[7])}, {vr(vt[1])} offset:{HV}")
    A(f"v_mov_b32 {vr(vt[2])}, {vr(vt[1])}")
    A(f"v_mul_f32 {vr(vt[3])}, {vr(vt[1])}, {vr(vt[1])}")
    wave_sum2(vt[2], vt[3], vt[4])
    A("s_mov_b32 exec_lo, 1"); A("s_mov_b32 exec_hi, 1")
    A(f"ds_add_f32 {vr(vt[6])}, {vr(vt[2])} offset:{STAT}")
    full_exec()
    A(f"v_mov_b32 {vr(vt[5])}, 0")
    A("s_waitcnt lgkmcnt(0)")
    bar()
    A(f"ds_read_b64 {vr(vP,2)}, {vr(vt[5])} offset:{STAT}")
    A(f"s_mov_b32 {sr(st0)}, {hex(f2u(1.0/576))}")
    A(f"v_mov_b32 {vr(vt[4])}, {hex(f2u(1e-5))}")
    A("s_waitcnt lgkmcnt(0)")
    A(f"v_mul_f32 {vr(vP)}, {sr(st0)}, {vr(vP)}                   ; mean")
    A(f"v_mul_f32 {vr(vP+1)}, {sr(st0)}, {vr(vP+1)}")
    A(f"v_fma_f32 {vr(vP+1)}, -{vr(vP)}, {vr(vP)}, {vr(vP+1)}")
    A(f"v_max_f32 {vr(vP+1)}, 0, {vr(vP+1)}")
    A(f"v_add_f32 {vr(vP+1)}, {vr(vP+1)}, {vr(vt[4])}")
    A(f"v_rsq_f32 {vr(vP+1)}, {vr(vP+1)}")
    A(f"v_sub_f32 {vr(vt[1])}, {vr(vt[1])}, {vr(vP)}")
    A(f"v_mul_f32 {vr(vt[1])}, {vr(vt[1])}, {vr(vP+1)}")
    A(f"v_cvt_pk_bf16_f32 {vr(vt[0])}, {vr(vt[1])}, {vr(vt[1])}")
    for i in range(8):
        bcast_pair(vt[1+i%2], vt[0], i)
        afrag(vA+4*(i%2), vt[1+i%2])
        mfma(vD, vA+4*(i%2), vBig+4*i, i == 0)
    A(f"v_lshlrev_b32 {vr(vt[0])}, 2, {vr(vG)}")
    A(f"v_lshl_add_u32 {vr(vt[0])}, {vr(vC8)}, 4, {vr(vt[0])}      ; (4*(n&7)+g)*4")
    ds_add_tile(GACC)
    A("s_waitcnt lgkmcnt(0)")
    bar()
    A(f"ds_read_b32 {vr(vP)}, {vr(vt[0])} offset:{GACC}")
    A(f"ds_read_b32 {vr(vP+1)}, {vr(vt[0])} offset:{GACC+128}")
    c0 = -2.0 * 0.7978845608028654 * 1.4426950408889634
    A(f"s_mov_b32 {sr(st0)}, {hex(f2u(c0*0.044715))}")
    A(f"v_mov_b32 {vr(vt[4])}, {hex(f2u(c0))}")
    A(f"s_mul_i32 {sr(st1)}, {sr(sW)}, {2*144*128}")
    A(f"s_lshl_b32 {sr(st2)}, {sr(sF)}, 7")
    A(f"s_add_u32 {sr(st1)}, {sr(st1)}, {sr(st2)}")
    A(f"s_add_u32 {sr(st1)}, {sr(st1)}, {YOFF}")
    A(f"s_movk_i32 {sr(st2)}, {144*128}")
    A(f"v_and_b32 {vr(vt[5])}, 0x7f, {vr(vAcc)}")
    A(f"v_add_u32 {vr(vt[5])}, {sr(st1)}, {vr(vt[5])}")
    A(f"v_lshrrev_b32 {vr(vt[6])}, 2, {vr(vC8)}")
    A(f"v_mad_u32_u24 {vr(vt[5])}, {vr(vt[6])}, {sr(st2)}, {vr(vt[5])}")
    A("s_waitcnt lgkmcnt(0)")
    A(f"v_mul_f32 {vr(vt[1])}, {vr(vP)}, {vr(vP)}")
    A(f"v_fma_f32 {vr(vt[1])}, {vr(vt[1])}, {sr(st0)}, {vr(vt[4])}")
    A(f"v_mul_f32 {vr(vt[1])}, {vr(vt[1])}, {vr(vP)}")
    A(f"v_exp_f32 {vr(vt[1])}, {vr(vt[1])}")
    A(f"v_mul_f32 {vr(vt[2])}, {vr(vP)}, {vr(vP+1)}            ; g*u")
    A(f"v_add_f32 {vr(vt[1])}, 1.0, {vr(vt[1])}")
    A(f"v_rcp_f32 {vr(vt[1])}, {vr(vt[1])}")
    A(f"v_mul_f32 {vr(vt[1])}, {vr(vt[1])}, {vr(vt[2])}")
    A(f"v_cvt_pk_bf16_f32 {vr(vt[0])}, {vr(vt[1])}, {vr(vt[1])}")
    for i in range(4):
        bcast_pair(vt[1+i%2], vt[0], i)
        afrag(vA+4*(i%2), vt[1+i%2])
        mfma(vD, vA+4*(i%2), vDn+4*i, i == 0)
    for r in range(4): A(f"v_permlane32_swap_b32 {vr(vD+r)}, {vr(vP+r)}")
    for r in range(4): A(f"v_add_f32_dpp {vr(vD+r)}, {vr(vP+r)}, {vr(vD+r)} row_ror:8 row_mask:0xf bank_mask:0xf")
    tag_insert(vD)
    A("s_mov_b64 exec, 0x00ff00ff")
    A(f"global_store_dwordx4 {vr(vt[5])}, {vr(vD,4)}, {sr(pWS,2)} sc1")
    full_exec()
    stamp("y_pub")
    A(f"s_and_b32 {sr(st0)}, {sr(sF)}, 7")
    A(f"s_cmp_eq_u32 {sr(st0)}, 0")
    A("s_cbranch_scc0 L_fin")
    A(f"s_lshr_b32 {sr(sC)}, {sr(sF)}, 3")
    A(f"s_mul_i32 {sr(st0)}, {sr(sC)}, {144*128}")
    A(f"s_lshl_b32 {sr(st1)}, {sr(sW)}, 11")
    A(f"s_add_u32 {sr(st0)}, {sr(st0)}, {sr(st1)}")
    A(f"s_add_u32 {sr(st0)}, {sr(st0)}, {YOFF}")
    A(f"v_lshl_add_u32 {vr(vt[0])}, {vr(vL)}, 4, {sr(st0)}")
    A(f"v_lshlrev_b32 {vr(vt[1])}, 2, {vr(vG)}")
    A(f"v_lshl_add_u32 {vr(vt[1])}, {vr(vC8)}, 4, {vr(vt[1])}      ; ((n&7)*4+g)*4")
    A(f"s_lshl_b32 {sr(st1)}, {sr(sC)}, 7")
    A(f"v_lshlrev_b32 {vr(vt[2])}, 3, {vr(vN)}")
    A(f"v_add_u32 {vr(vt[3])}, {sr(st1)}, {vr(vt[2])}")
    A(f"ds_read_b64 {vr(vQf,2)}, {vr(vt[3])} offset:{HV}")
    A(f"v_lshrrev_b32 {vr(vt[3])}, 1, {vr(vt[3])}")
    A("s_waitcnt vmcnt(0)")
    A("L_rspin:")
    A(f"global_load_dwordx4 {vr(vGa,4)}, {vr(vt[0])}, {sr(pWS,2)} sc1")
    A(f"global_load_dwordx4 {vr(vGa+4,4)}, {vr(vt[0])}, {sr(pWS,2)} offset:1024 sc1")
    A("s_waitcnt vmcnt(1)")
    tag_check(vGa, True)
    A("s_waitcnt vmcnt(0)")
    tag_check(vGa+4, False)
    for k in range(4): A(f"v_add_f32 {vr(vP+k)}, {vr(vGa+k)}, {vr(vGa+4+k)}")
    spin_tail("L_rspin")
    stamp("y_gath")
    halve4(vP, vt[4])
    A(f"ds_add_f32 {vr(vt[1])}, {vr(vt[4])} offset:{YACC}")
    A("s_waitcnt lgkmcnt(0)")
    bar()
    A(f"s_cmp_eq_u32 {sr(sW)}, 0")
    A("s_cbranch_scc0 L_fin")
    A(f"ds_read_b64 {vr(vP,2)}, {vr(vt[2])} offset:{YACC}")
    A("s_waitcnt lgkmcnt(0)")
    A(f"v_cvt_pk_bf16_f32 {vr(vt[4])}, {vr(vP)}, {vr(vP+1)}")
    A(f"v_lshlrev_b32 {vr(vP)}, 16, {vr(vt[4])}")
    A(f"v_and_b32 {vr(vP+1)}, {sr(sHi)}, {vr(vt[4])}")
    A(f"v_add_f32 {vr(vP)}, {vr(vP)}, {vr(vQf)}")
    A(f"v_add_f32 {vr(vP+1)}, {vr(vP+1)}, {vr(vQf+1)}")
    A(f"v_cvt_pk_bf16_f32 {vr(vt[4])}, {vr(vP)}, {vr(vP+1)}")
    A("s_mov_b64 exec, 0xffff")
    A(f"global_store_dword {vr(vt[3])}, {vr(vt[4])}, {sr(pOUT,2)}")
    A(f"s_cmp_eq_u32 {sr(sC)}, 0")
    A("s_cbranch_scc0 L_fin0")
    A("s_mov_b64 exec, 1")
    A(f"v_mov_b32 {vr(vt[0])}, 0")
    A(f"global_store_dword {vr(vt[0])}, {vr(vT)}, {sr(pWS,2)}")
    A("L_fin0:")
    full_exec()
    A("L_fin:")
    if diag:
        stamp("end")
        A("s_waitcnt lgkmcnt(0)")
        A(f"s_mul_i32 {sr(st0)}, s2, 9")
        A(f"s_add_u32 {sr(st0)}, {sr(st0)}, {sr(sW)}")
        A(f"s_lshl_b32 {sr(st0)}, {sr(st0)}, 6")
        A(f"s_add_u32 {sr(st0)}, {sr(st0)}, {DIAGOFF}")
        A(f"v_mov_b32 {vr(vt[0])}, {sr(st0)}")
        A("s_mov_b64 exec, 1")
        for j, (nm, r) in enumerate(stamps + [("cnt", sCnt), ("role", sRole)]):
            A(f"v_mov_b32 {vr(vt[1])}, {sr(r)}")
            A(f"global_store_dword {vr(vt[0])}, {vr(vt[1])}, {sr(pWS,2)} offset:{4*j}")
    A("L_end:")
    A("s_endpgm")
    A("L_code_end:")
    body = A.text()
    nv = V.hi
    out = HEADER
    out += "; @launch grid=(256,1,1) block=(576,1,1) lds=98304\n"
    out += '.amdgcn_target "amdgcn-amd-amdhsa--gfx950"\n.text\n'
    out += f".globl {NAME}_kernel\n.p2align 8\n.type {NAME}_kernel,@function\n{NAME}_kernel:\n"
    out += body
    out += '.section .rodata,"a"\n.p2align 6\n'
    out += f".amdhsa_kernel {NAME}_kernel\n"
    out += f"  .amdhsa_next_free_vgpr {nv}\n  .amdhsa_next_free_sgpr {S.hi}\n  .amdhsa_accum_offset {(nv+3)//4*4}\n"
    out += "  .amdhsa_group_segment_fixed_size 0\n  .amdhsa_kernarg_size 96\n  .amdhsa_user_sgpr_count 2\n"
    out += "  .amdhsa_user_sgpr_kernarg_segment_ptr 1\n  .amdhsa_system_sgpr_workgroup_id_x 1\n"
    out += "  .amdhsa_float_denorm_mode_32 3\n"
    out += ".end_amdhsa_kernel\n"
    names = [n for n, _ in stamps] + ["cnt", "role"]
    return out, names

if __name__ == "__main__":
    kw = {}
    for a in sys.argv[2:]:
        k, v = a.split("="); kw[k] = eval(v)
    txt, names = gen(**kw)
    open(sys.argv[1], "w").write(txt)
    print("written", sys.argv[1], names)
```

```python
import sys, struct
from asmlib import *

NAME = "sequential_preLN__sliding_block_cached__glu_gated_geglu__decode"
HEADER = open("cdna_kernels/%s.s.ref" % NAME).read().split("; Override launch")[0]

def f2u(x): return struct.unpack("<I", struct.pack("<f", x))[0]

QOFF, OOFF, HOFF, YOFF, DIAGOFF = 0x1000, 0x20000, 0x80000, 0x90000, 0x100000
PART, ZERO0, STAT, YP = 0, 4608, 5120, 5248
QB, WM, WL, HV, OW, KL = 7936, 8448, 8512, 8704, 12288, 20480

def gen(diag=False, nt="nt", nV_pre=2, nV_mid=1, wo_pre=4, spin_cap=True, codepf=True):
    A = Asm()
    V = Regs("v", 1, 168); S = Regs("s", 32, 100)
    nV_post = 4 - nV_pre - nV_mid
    pX, pK, pV, pWQ, pWO, pG, pU, pD, pOUT, pWS = 8, 10, 12, 14, 16, 20, 22, 24, 26, 30
    sX, sI, sLI, sH, sS, sW, sT, sE = [S.alloc() for _ in range(8)]
    sRole, sC, sF = S.alloc(), S.alloc(), S.alloc()
    st0, st1, st2, st3 = [S.alloc() for _ in range(4)]
    sSelIns = [S.alloc() for _ in range(4)]
    sSelChk = S.alloc()
    sp0 = S.alloc(2, 2); sp1 = S.alloc(2, 2); sStr = S.alloc(2, 2)
    sCnt = S.alloc()
    sHi = S.alloc()
    stamps = []
    def stamp(name):
        if diag:
            r = S.alloc(2, 2); stamps.append((name, r)); A(f"s_memrealtime {sr(r,2)}")
    def restamp(name):
        if diag:
            r = dict(stamps)[name]; A(f"s_memrealtime {sr(r,2)}")

    vL, vG, vN, vC8, vT = [V.alloc() for _ in range(5)]
    vMk = V.alloc(4, 2)
    vAcc = V.alloc()
    vPw = V.alloc()
    vL16 = V.alloc()
    vt = [V.alloc() for _ in range(10)]
    vAd = V.alloc(2, 2)
    vKV = V.alloc()
    vXh = V.alloc()
    vA = V.alloc(8, 2)
    vD = V.alloc(4, 2)
    vP = V.alloc(4, 2)
    vWq = V.alloc(8, 2)
    vXa = V.alloc(4, 2); vXu = V.alloc(); vXm = V.alloc()
    vKf = V.alloc(16, 2)
    vQf = V.alloc(16, 2)
    vVv = V.alloc(16, 2)
    vBig = V.alloc(32, 2)
    vDn = V.alloc(16, 2)
    vGa = vKf
    vML = vQf

    def bar(): A("s_barrier")
    def tag_insert(base):
        for k in range(4): A(f"v_perm_b32 {vr(base+k)}, {vr(base+k)}, {vr(vT)}, {sr(sSelIns[k])}")
    def tag_check(base, acc_first):
        A(f"v_perm_b32 {vr(vt[8])}, {vr(base+1)}, {vr(base)}, {sr(sSelChk)}")
        A(f"v_perm_b32 {vr(vt[9])}, {vr(base+3)}, {vr(base+2)}, {sr(sSelChk)}")
        A(f"v_lshl_or_b32 {vr(vt[8])}, {vr(vt[9])}, 16, {vr(vt[8])}")
        if acc_first:
            A(f"v_cmp_ne_u32 {sr(sp0,2)}, {vr(vt[8])}, {vr(vT)}")
        else:
            A(f"v_cmp_ne_u32 vcc, {vr(vt[8])}, {vr(vT)}")
            A(f"s_or_b64 {sr(sp0,2)}, {sr(sp0,2)}, vcc")
    def halve4(a, dst):
        A(f"v_permlane32_swap_b32 {vr(a)}, {vr(a+2)}")
        A(f"v_permlane32_swap_b32 {vr(a+1)}, {vr(a+3)}")
        A(f"v_add_f32 {vr(a)}, {vr(a)}, {vr(a+2)}")
        A(f"v_add_f32 {vr(a+1)}, {vr(a+1)}, {vr(a+3)}")
        A(f"v_permlane16_swap_b32 {vr(a)}, {vr(a+1)}")
        A(f"v_add_f32 {vr(dst)}, {vr(a)}, {vr(a+1)}")
    def afrag(dst, src):
        for k in range(4): A(f"v_and_b32 {vr(dst+k)}, {vr(src)}, {vr(vMk+k)}")
    def bcast_pair(dst, src, i):
        A(f"v_mov_b32_dpp {vr(dst)}, {vr(src)} row_newbcast:{2*i} row_mask:0xf bank_mask:0x3")
        A(f"v_mov_b32_dpp {vr(dst)}, {vr(src)} row_newbcast:{2*i+1} row_mask:0xf bank_mask:0xc")
    def mfma(d, a, b, first):
        A(f"v_mfma_f32_16x16x32_bf16 {vr(d,4)}, {vr(a,4)}, {vr(b,4)}, {'0' if first else vr(d,4)}")
    def valid_exec():
        A("s_mov_b32 exec_lo, 0x00ff00ff"); A("s_mov_b32 exec_hi, 0xff00ff00")
    def full_exec(): A("s_mov_b64 exec, -1")
    def tile_write():
        valid_exec()
        A(f"ds_write_b128 {vr(vPw)}, {vr(vD,4)} offset:{PART}")
        full_exec()
    def part_sum(nrd, buf, dst4, base=PART, stride=1024):
        for u in range(nrd): A(f"ds_read_b128 {vr(buf+4*u,4)}, {vr(vL16)} offset:{base+stride*u}")
        for u in range(1, nrd):
            A(f"s_waitcnt lgkmcnt({nrd-1-u})")
            a = buf if u == 1 else dst4
            A(f"v_pk_add_f32 {vr(dst4,2)}, {vr(a,2)}, {vr(buf+4*u,2)}")
            A(f"v_pk_add_f32 {vr(dst4+2,2)}, {vr(a+2,2)}, {vr(buf+4*u+2,2)}")
    def regather(c):
        A(f"v_permlane16_swap_b32 {vr(c)}, {vr(c+1)}")
        A(f"v_permlane32_swap_b32 {vr(c)}, {vr(c+2)}")
        A(f"v_permlane32_swap_b32 {vr(c+1)}, {vr(c+3)}")
    def bf16r(dst, src):
        A(f"v_cvt_pk_bf16_f32 {vr(dst)}, {vr(src)}, {vr(src)}")
        A(f"v_and_b32 {vr(dst)}, {sr(sHi)}, {vr(dst)}")
    def wave_sum2(a, b, tmp):
        A(f"v_permlane32_swap_b32 {vr(a)}, {vr(b)}")
        A(f"v_add_f32 {vr(a)}, {vr(a)}, {vr(b)}")
        A(f"v_mov_b32 {vr(tmp)}, {vr(a)}")
        A(f"v_permlane16_swap_b32 {vr(a)}, {vr(tmp)}")
        A(f"v_add_f32 {vr(a)}, {vr(a)}, {vr(tmp)}")
        for sh in (8, 4, 2, 1):
            A(f"v_add_f32_dpp {vr(a)}, {vr(a)}, {vr(a)} row_ror:{sh} row_mask:0xf bank_mask:0xf")
    def spin_tail(lbl):
        A(f"s_cmp_eq_u64 {sr(sp0,2)}, 0")
        if spin_cap:
            A(f"s_cbranch_scc1 {lbl}_ok")
            A(f"s_add_u32 {sr(sCnt)}, {sr(sCnt)}, 1")
            A(f"s_cmp_lt_u32 {sr(sCnt)}, 0x40000")
            A(f"s_cbranch_scc1 {lbl}")
            A(f"{lbl}_ok:")
        else:
            A(f"s_cbranch_scc0 {lbl}")

    stamp("start")
    A("s_cmp_ge_u32 s2, 256")
    A("s_cbranch_scc1 L_end")
    A("s_load_dwordx16 s[8:23], s[0:1], 0")
    A("s_load_dwordx8 s[24:31], s[0:1], 64")
    A(f"v_lshlrev_b32 {vr(vt[0])}, 2, v0")
    A(f"v_mov_b32 {vr(vt[1])}, 0")
    A(f"ds_write_b32 {vr(vt[0])}, {vr(vt[1])} offset:{ZERO0}")
    A(f"v_lshrrev_b32 {vr(vt[2])}, 6, v0")
    A(f"s_and_b32 {sr(sX)}, s2, 7")
    A(f"s_lshr_b32 {sr(sI)}, s2, 3")
    A(f"v_readfirstlane_b32 {sr(sW)}, {vr(vt[2])}")
    if codepf:
        A(f"s_lshl_b32 {sr(st0)}, {sr(sW)}, 5")
        A(f"s_add_u32 {sr(st0)}, {sr(st0)}, {sr(sI)}")
        A(f"s_cmp_eq_u32 {sr(st0)}, {8*32+31}")
        A("s_cbranch_scc0 L_nopf")
        A(f"s_getpc_b64 {sr(sp1,2)}")
        A(f"v_and_b32 {vr(vt[0])}, 63, v0")
        A(f"v_lshlrev_b32 {vr(vt[0])}, 7, {vr(vt[0])}")
        A(f"v_min_u32 {vr(vt[0])}, L_code_end-.-16, {vr(vt[0])}")
        A(f"global_load_dword {vr(vBig)}, {vr(vt[0])}, {sr(sp1,2)}")
        A("L_nopf:")
    A(f"s_lshl_b32 {sr(sLI)}, {sr(sX)}, 5")
    A(f"s_add_u32 {sr(sLI)}, {sr(sLI)}, {sr(sI)}")
    A(f"s_lshr_b32 {sr(sH)}, {sr(sLI)}, 4")
    A(f"s_and_b32 {sr(sS)}, {sr(sI)}, 15")
    A(f"v_and_b32 {vr(vL)}, 63, v0")
    A(f"v_bfe_u32 {vr(vG)}, v0, 4, 2")
    A(f"v_and_b32 {vr(vN)}, 15, v0")
    A(f"v_and_b32 {vr(vC8)}, 7, v0")
    A(f"s_lshr_b32 {sr(st0)}, {sr(sS)}, 2")
    A(f"s_mul_i32 {sr(st0)}, {sr(st0)}, 144")
    A(f"s_and_b32 {sr(st1)}, {sr(sS)}, 3")
    A(f"s_lshl_b32 {sr(st1)}, {sr(st1)}, 7")
    A(f"s_lshl_b32 {sr(st2)}, {sr(sH)}, 9")
    A(f"s_add_u32 {sr(st1)}, {sr(st1)}, {sr(st2)}")
    A(f"v_lshrrev_b32 {vr(vt[3])}, 3, v0")
    A(f"v_lshl_add_u32 {vr(vt[3])}, {vr(vt[3])}, 1, {sr(st0)}")
    A(f"v_lshl_add_u32 {vr(vt[4])}, {vr(vC8)}, 4, {sr(st1)}")
    A(f"v_lshl_add_u32 {vr(vt[4])}, {vr(vt[3])}, 13, {vr(vt[4])}")
    A(f"v_add_u32 {vr(vt[5])}, 0x2000, {vr(vt[4])}")
    A(f"v_lshlrev_b32 {vr(vt[3])}, 1, {vr(vt[3])}")
    A(f"v_lshlrev_b32 {vr(vt[6])}, 4, {vr(vL)}")
    A(f"v_lshlrev_b32 {vr(vt[7])}, 1, {vr(vL)}")
    A(f"s_lshl_b32 {sr(st2)}, {sr(sH)}, 21")
    A(f"s_lshl_b32 {sr(st3)}, {sr(sS)}, 15")
    A(f"s_add_u32 {sr(st2)}, {sr(st2)}, {sr(st3)}")
    A(f"s_lshl_b32 {sr(st3)}, {sr(sW)}, 12")
    A(f"s_add_u32 {sr(st2)}, {sr(st2)}, {sr(st3)}")
    A(f"s_add_u32 {sr(st2)}, {sr(st2)}, 0x180000")
    A(f"s_add_u32 m0, {sr(st3)}, {KL}")
    A("s_waitcnt lgkmcnt(0)")
    A(f"global_load_dwordx4 {vr(vXa,4)}, {vr(vt[6])}, {sr(pX,2)}")
    A(f"global_load_ushort {vr(vXu)}, {vr(vt[7])}, {sr(pX,2)} offset:1024")
    A(f"global_load_dword {vr(vXm)}, {vr(vt[3])}, {sr(pX,2)}")
    A(f"global_load_dwordx4 {vr(vWq,4)}, {vr(vt[4])}, {sr(pWQ,2)} {nt}")
    A(f"global_load_dwordx4 {vr(vWq+4,4)}, {vr(vt[5])}, {sr(pWQ,2)} {nt}")
    A(f"s_load_dword {sr(sE)}, {sr(pWS,2)}, 0")
    A(f"v_xor_b32 {vr(vt[0])}, {vr(vN)}, {vr(vG)}")
    A(f"v_lshl_add_u32 {vr(vt[1])}, {vr(vt[0])}, 4, {sr(st2)}")
    A(f"v_lshl_add_u32 {vr(vt[1])}, {vr(vG)}, 8, {vr(vt[1])}")
    A(f"v_xor_b32 {vr(vt[2])}, 64, {vr(vt[1])}")
    A(f"v_xor_b32 {vr(vt[3])}, 0x80, {vr(vt[1])}")
    A(f"v_xor_b32 {vr(vt[4])}, 0xc0, {vr(vt[1])}")
    A(f"v_lshl_add_u32 {vr(vKV)}, {vr(vN)}, 4, {sr(st2)}")
    A(f"v_lshl_add_u32 {vr(vKV)}, {vr(vG)}, 10, {vr(vKV)}")
    bar()
    A(f"s_cmp_eq_u32 {sr(sW)}, 8")
    A("s_cbranch_scc1 L_nokv")
    for t in range(4):
        A(f"global_load_lds_dwordx4 {vr(vt[1+t])}, {sr(pK,2)} offset:{t*1024} {nt}")
    A("L_nokv:")
    bar()
    A("s_cbranch_scc1 L_nokv2")
    for r in range(nV_pre):
        A(f"global_load_dwordx4 {vr(vVv+4*r,4)}, {vr(vKV)}, {sr(pV,2)} offset:{r*256} {nt}")
    A("L_nokv2:")
    stamp("issued1")
    A(f"s_lshr_b32 {sr(st0)}, {sr(sI)}, 4")
    A(f"s_mul_i32 {sr(st0)}, {sr(st0)}, 7")
    A(f"s_add_u32 {sr(st0)}, {sr(st0)}, {sr(sS)}")
    A(f"s_sub_u32 {sr(sC)}, {sr(st0)}, 9")
    A(f"s_mul_i32 {sr(sF)}, {sr(sH)}, 9")
    A(f"s_add_u32 {sr(sF)}, {sr(sF)}, {sr(sS)}")
    A(f"s_cmp_lt_u32 {sr(sC)}, 9")
    A(f"s_cselect_b32 {sr(sRole)}, 1, 2")
    A(f"s_cmp_lt_u32 {sr(sS)}, 9")
    A(f"s_cselect_b32 {sr(sRole)}, 0, {sr(sRole)}")
    A(f"s_mov_b32 {sr(sCnt)}, 0")
    A(f"s_mov_b32 {sr(sHi)}, 0xffff0000")
    for k in range(4): A(f"s_mov_b32 {sr(sSelIns[k])}, {hex(0x07060500 + k)}")
    A(f"s_mov_b32 {sr(sSelChk)}, 0x0c0c0400")
    A(f"v_and_b32 {vr(vt[0])}, 1, v0")
    A(f"v_lshlrev_b32 {vr(vt[0])}, 4, {vr(vt[0])}")
    A(f"v_mov_b32 {vr(vt[1])}, 0xffff")
    A(f"v_lshlrev_b32 {vr(vt[0])}, {vr(vt[0])}, {vr(vt[1])}")
    A(f"v_bfe_u32 {vr(vt[1])}, v0, 1, 2")
    for k in range(4):
        A(f"v_cmp_eq_u32 vcc, {k}, {vr(vt[1])}")
        A(f"v_cndmask_b32 {vr(vMk+k)}, 0, {vr(vt[0])}, vcc")
    A(f"v_and_b32 {vr(vt[0])}, 1, {vr(vG)}")
    A(f"v_lshlrev_b32 {vr(vt[0])}, 4, {vr(vt[0])}")
    A(f"v_lshl_add_u32 {vr(vAcc)}, {vr(vC8)}, 5, {vr(vt[0])}")
    A(f"v_lshrrev_b32 {vr(vt[0])}, 5, v0                          ; 2w + s")
    A(f"v_lshl_add_u32 {vr(vPw)}, {vr(vt[0])}, 8, {vr(vAcc)}")
    A(f"v_lshlrev_b32 {vr(vL16)}, 4, {vr(vL)}")
    nafter = 4 + nV_pre
    A(f"s_cmp_eq_u32 {sr(sW)}, 8")
    A("s_cbranch_scc0 L_w07a")
    A("s_waitcnt vmcnt(2)")
    A("L_w07a:")
    A(f"s_waitcnt vmcnt({nafter+2})")
    e = vKf
    for k in range(4):
        A(f"v_lshlrev_b32 {vr(e+2*k)}, 16, {vr(vXa+k)}")
        A(f"v_and_b32 {vr(e+2*k+1)}, {sr(sHi)}, {vr(vXa+k)}")
    A(f"v_lshlrev_b32 {vr(e+8)}, 16, {vr(vXu)}")
    A(f"v_add_f32 {vr(vt[0])}, {vr(e)}, {vr(e+1)}")
    A(f"v_mul_f32 {vr(vt[1])}, {vr(e)}, {vr(e)}")
    for k in range(1, 9):
        if k >= 2: A(f"v_add_f32 {vr(vt[0])}, {vr(vt[0])}, {vr(e+k)}")
        A(f"v_fmac_f32 {vr(vt[1])}, {vr(e+k)}, {vr(e+k)}")
    wave_sum2(vt[0], vt[1], vt[2])
    A(f"v_mul_f32 {vr(vt[0])}, {hex(f2u(1.0/576))}, {vr(vt[0])}")
    A(f"v_readlane_b32 {sr(st0)}, {vr(vt[0])}, 0        ; mean")
    A(f"v_readlane_b32 {sr(st1)}, {vr(vt[0])}, 32       ; E[x^2]")
    A(f"v_mov_b32 {vr(vt[0])}, {sr(st0)}")
    A(f"v_fma_f32 {vr(vt[1])}, -{vr(vt[0])}, {vr(vt[0])}, {sr(st1)}   ; var")
    A(f"v_max_f32 {vr(vt[1])}, 0, {vr(vt[1])}")
    bf16r(vt[0], vt[0]); bf16r(vt[1], vt[1])
    A(f"v_add_f32 {vr(vt[1])}, {hex(f2u(1e-5))}, {vr(vt[1])}")
    bf16r(vt[1], vt[1])
    A(f"v_sqrt_f32 {vr(vt[1])}, {vr(vt[1])}")
    bf16r(vt[1], vt[1])
    A(f"v_rcp_f32 {vr(vt[1])}, {vr(vt[1])}")
    A(f"v_lshlrev_b32 {vr(vt[2])}, 16, {vr(vXm)}")
    A(f"v_and_b32 {vr(vt[3])}, {sr(sHi)}, {vr(vXm)}")
    A(f"v_sub_f32 {vr(vt[2])}, {vr(vt[2])}, {vr(vt[0])}")
    A(f"v_sub_f32 {vr(vt[3])}, {vr(vt[3])}, {vr(vt[0])}")
    bf16r(vt[2], vt[2]); bf16r(vt[3], vt[3])
    A(f"v_mul_f32 {vr(vt[2])}, {vr(vt[2])}, {vr(vt[1])}")
    A(f"v_mul_f32 {vr(vt[3])}, {vr(vt[3])}, {vr(vt[1])}")
    A(f"v_cvt_pk_bf16_f32 {vr(vt[2])}, {vr(vt[2])}, {vr(vt[2])}")
    A(f"v_cvt_pk_bf16_f32 {vr(vt[3])}, {vr(vt[3])}, {vr(vt[3])}")
    afrag(vA, vt[2]); afrag(vA+4, vt[3])
    A("s_waitcnt lgkmcnt(0)")
    A(f"s_add_u32 {sr(sT)}, {sr(sE)}, 0x01010101")
    A(f"v_mov_b32 {vr(vT)}, {sr(sT)}")
    A(f"s_cmp_eq_u32 {sr(sW)}, 8")
    A("s_cbranch_scc0 L_w07b")
    A("s_waitcnt vmcnt(0)")
    A("L_w07b:")
    A(f"s_waitcnt vmcnt({nafter})")
    stamp("wq_landed")
    mfma(vD, vA, vWq, True); mfma(vD, vA+4, vWq+4, False)
    tile_write()
    A("s_waitcnt lgkmcnt(0)")
    bar()
    A(f"s_cmp_eq_u32 {sr(sW)}, 8")
    A("s_cbranch_scc0 L_w07c")
    A(f"s_lshl_b32 {sr(st0)}, {sr(sLI)}, 8")
    A(f"s_add_u32 {sr(st0)}, {sr(st0)}, {QOFF}")
    A(f"v_add_u32 {vr(vt[0])}, {sr(st0)}, {vr(vL16)}")
    part_sum(5, vKf, vP)
    halve4(vP, vD); regather(vD)
    tag_insert(vD)
    A("s_mov_b64 exec, 0xffff")
    A(f"global_store_dwordx4 {vr(vt[0])}, {vr(vD,4)}, {sr(pWS,2)} sc1")
    full_exec()
    A("s_branch L_mid")
    A("L_w07c:")
    for r in range(nV_pre, nV_pre + nV_mid):
        A(f"global_load_dwordx4 {vr(vVv+4*r,4)}, {vr(vKV)}, {sr(pV,2)} offset:{r*256} {nt}")
    A("L_mid:")
    stamp("q_pub")
    A(f"v_bfe_u32 {vr(vt[0])}, v0, 3, 1")
    A(f"v_lshl_add_u32 {vr(vt[0])}, {vr(vt[0])}, 2, {vr(vG)}       ; 4s'+g")
    A(f"s_lshl_b32 {sr(st0)}, {sr(sF)}, 5")
    A(f"s_lshl_b32 {sr(st1)}, {sr(sX)}, 9")
    A(f"s_lshl_b32 {sr(st2)}, {sr(sW)}, 6")
    A(f"s_add_u32 {sr(st1)}, {sr(st1)}, {sr(st2)}")
    A(f"s_cmp_eq_u32 {sr(sRole)}, 0")
    A(f"s_cselect_b32 {sr(st0)}, {sr(st0)}, {sr(st1)}")
    A(f"s_cselect_b32 {sr(st1)}, {sr(sW)}, {sr(sC)}")
    A(f"s_mul_i32 {sr(st0)}, {sr(st0)}, 1152")
    A(f"s_lshl_b32 {sr(st1)}, {sr(st1)}, 7")
    A(f"s_add_u32 {sr(st0)}, {sr(st0)}, {sr(st1)}")
    A(f"s_movk_i32 {sr(st1)}, 1152")
    A(f"v_lshl_add_u32 {vr(vt[6])}, {vr(vC8)}, 4, {sr(st0)}")
    A(f"v_mad_u32_u24 {vr(vt[6])}, {vr(vt[0])}, {sr(st1)}, {vr(vt[6])}")
    A(f"v_add_u32 {vr(vt[0])}, {sr(st2)}, {vr(vt[0])}")
    A(f"s_movk_i32 {sr(st1)}, 9216")
    A(f"s_lshl_b32 {sr(st0)}, {sr(sF)}, 6")
    A(f"v_and_b32 {vr(vt[1])}, 3, v0")
    A(f"v_lshl_add_u32 {vr(vt[1])}, {vr(vt[1])}, 4, {sr(st0)}")
    A(f"v_mad_u32_u24 {vr(vt[1])}, {vr(vt[0])}, {sr(st1)}, {vr(vt[1])}")
    A(f"v_and_b32 {vr(vt[2])}, 4, v0")
    A(f"v_cmp_eq_u32 vcc, 0, {vr(vt[2])}")
    A(f"v_mov_b32 {vr(vt[2])}, {sr(pU)}")
    A(f"v_mov_b32 {vr(vt[3])}, {sr(pU+1)}")
    A(f"v_mov_b32 {vr(vt[4])}, {sr(pG)}")
    A(f"v_mov_b32 {vr(vt[5])}, {sr(pG+1)}")
    A(f"v_cndmask_b32 {vr(vAd)}, {vr(vt[2])}, {vr(vt[4])}, vcc")
    A(f"v_cndmask_b32 {vr(vAd+1)}, {vr(vt[3])}, {vr(vt[5])}, vcc")
    A(f"v_add_co_u32 {vr(vAd)}, vcc, {vr(vAd)}, {vr(vt[1])}")
    A(f"v_addc_co_u32 {vr(vAd+1)}, vcc, 0, {vr(vAd+1)}, vcc")
    A(f"s_mov_b32 {sr(sStr)}, {8*9216}")
    A(f"s_mov_b32 {sr(sStr+1)}, 0")
    A(f"v_lshl_add_u32 {vr(vt[7])}, {vr(vN)}, 2, {vr(vG)}")
    A(f"v_add_u32 {vr(vt[7])}, {sr(st2)}, {vr(vt[7])}")
    A(f"v_lshlrev_b32 {vr(vt[7])}, 1, {vr(vt[7])}")
    A(f"s_and_b32 {sr(st0)}, {sr(sW)}, 3")
    A(f"s_lshl_b32 {sr(st1)}, {sr(sH)}, 4")
    A(f"s_add_u32 {sr(st1)}, {sr(st1)}, {sr(st0)}")
    A(f"s_lshl_b32 {sr(st1)}, {sr(st1)}, 8")
    A(f"s_add_u32 {sr(st1)}, {sr(st1)}, {QOFF}")
    A(f"v_lshl_add_u32 {vr(vt[5])}, {vr(vN)}, 4, {sr(st1)}")
    A(f"v_lshl_add_u32 {vr(vt[5])}, {vr(vG)}, 10, {vr(vt[5])}")
    A(f"s_cmp_eq_u32 {sr(sW)}, 8")
    A("s_cbranch_scc1 L_w8d")
    A(f"s_waitcnt vmcnt({nV_pre + nV_mid})")
    A("L_w8d:")
    bar()
    stamp("k_landed")
    A(f"s_cmp_lt_u32 {sr(sW)}, 4")
    A("s_cbranch_scc0 L_nopoll")
    A(f"global_load_dwordx4 {vr(vWq,4)}, {vr(vt[5])}, {sr(pWS,2)} sc1")
    A("L_nopoll:")
    A(f"s_cmp_eq_u32 {sr(sW)}, 8")
    A("s_cbranch_scc1 L_nov2")
    for r in range(nV_pre + nV_mid, 4):
        A(f"global_load_dwordx4 {vr(vVv+4*r,4)}, {vr(vKV)}, {sr(pV,2)} offset:{r*256} {nt}")
    A(f"v_xor_b32 {vr(vt[0])}, {vr(vN)}, {vr(vG)}")
    A(f"v_lshlrev_b32 {vr(vt[0])}, 4, {vr(vt[0])}")
    A(f"v_lshl_add_u32 {vr(vt[0])}, {vr(vN)}, 8, {vr(vt[0])}")
    A(f"v_add_u32 {vr(vt[0])}, m0, {vr(vt[0])}")
    A(f"v_xor_b32 {vr(vt[1])}, 64, {vr(vt[0])}")
    A(f"v_xor_b32 {vr(vt[2])}, 0x80, {vr(vt[0])}")
    A(f"v_xor_b32 {vr(vt[3])}, 0xc0, {vr(vt[0])}")
    for i in range(4): A(f"ds_read_b128 {vr(vKf+4*i,4)}, {vr(vt[i])}")
    A("L_nov2:")
    bar()
    NE = 5
    A(f"s_cmp_eq_u32 {sr(sRole)}, 0")
    A("s_cbranch_scc0 L_notF1")
    for i in range(4):
        A(f"global_load_dwordx4 {vr(vDn+4*i,4)}, {vr(vt[6])}, {sr(pD,2)} {nt}")
        if i < 3: A(f"v_add_u32 {vr(vt[6])}, {8*1152}, {vr(vt[6])}")
    A(f"global_load_ushort {vr(vXh)}, {vr(vt[7])}, {sr(pX,2)}")
    A("s_branch L_e1done")
    A("L_notF1:")
    A(f"s_cmp_eq_u32 {sr(sRole)}, 1")
    A("s_cbranch_scc0 L_roleS1")
    A(f"s_cmp_eq_u32 {sr(sW)}, 8")
    A("s_cbranch_scc1 L_e1done")
    assert wo_pre <= NE
    for i in range(wo_pre):
        A(f"global_load_dwordx4 {vr(vBig+4*i,4)}, {vr(vt[6])}, {sr(pWO,2)} {nt}")
        A(f"v_add_u32 {vr(vt[6])}, {8*1152}, {vr(vt[6])}")
    for i in range(NE - wo_pre):
        A(f"global_load_ushort {vr(vXh)}, {vr(vt[7])}, {sr(pX,2)}")
    A("s_branch L_e1done")
    A("L_roleS1:")
    for i in range(NE):
        A(f"global_load_ushort {vr(vXh)}, {vr(vt[7])}, {sr(pX,2)}")
    A("L_e1done:")
    A(f"s_cmp_lt_u32 {sr(sW)}, 4")
    A("s_cbranch_scc0 L_qdone")
    A(f"s_waitcnt vmcnt({nV_post + NE})")
    tag_check(vWq, True)
    A(f"s_cmp_eq_u64 {sr(sp0,2)}, 0")
    A("s_cbranch_scc1 L_qspin_ok")
    A("L_qspin:")
    A(f"global_load_dwordx4 {vr(vWq,4)}, {vr(vt[5])}, {sr(pWS,2)} sc1")
    A("s_waitcnt vmcnt(0)")
    tag_check(vWq, True)
    if spin_cap: spin_tail("L_qspin")
    else:
        spin_tail("L_qspin"); A("L_qspin_ok:")
    halve4(vWq, vt[0])
    A(f"v_cvt_pk_bf16_f32 {vr(vt[0])}, {vr(vt[0])}, {vr(vt[0])}")
    A(f"ds_write_b16 {vr(vt[7])}, {vr(vt[0])} offset:{QB}      ; (64w+4n+g)*2")
    A("L_qdone:")
    A("s_waitcnt lgkmcnt(0)")
    bar()
    stamp("q_ready")
    A(f"s_cmp_eq_u32 {sr(sW)}, 8")
    A("s_cbranch_scc1 L_w8att")
    A(f"v_bfe_u32 {vr(vt[0])}, v0, 3, 1                        ; head")
    A(f"v_lshlrev_b32 {vr(vt[1])}, 4, {vr(vG)}")
    A(f"v_lshl_add_u32 {vr(vt[1])}, {vr(vt[0])}, 8, {vr(vt[1])}")
    for i in range(4): A(f"ds_read_b128 {vr(vQf+4*i,4)}, {vr(vt[1])} offset:{QB+64*i}")
    A(f"s_lshl_b32 {sr(st0)}, {sr(sW)}, 2")
    A(f"v_lshlrev_b32 {vr(vt[4])}, 5, {vr(vt[0])}              ; head*32")
    A(f"v_add_u32 {vr(vt[5])}, {sr(st0)}, {vr(vt[4])}")
    for i in range(4):
        A(f"s_waitcnt lgkmcnt({3-i})")
        mfma(vD, vKf+4*i, vQf+4*i, i == 0)
    A(f"s_mov_b32 {sr(st1)}, {hex(f2u(128**-0.5))}")
    A(f"v_cvt_pk_bf16_f32 {vr(vt[1])}, {vr(vD)}, {vr(vD+1)}")
    A(f"v_cvt_pk_bf16_f32 {vr(vt[2])}, {vr(vD+2)}, {vr(vD+3)}")
    A(f"v_lshlrev_b32 {vr(vP)}, 16, {vr(vt[1])}")
    A(f"v_and_b32 {vr(vP+1)}, {sr(sHi)}, {vr(vt[1])}")
    A(f"v_lshlrev_b32 {vr(vP+2)}, 16, {vr(vt[2])}")
    A(f"v_and_b32 {vr(vP+3)}, {sr(sHi)}, {vr(vt[2])}")
    for r in range(4): A(f"v_mul_f32 {vr(vP+r)}, {sr(st1)}, {vr(vP+r)}")
    A(f"v_cvt_pk_bf16_f32 {vr(vt[1])}, {vr(vP)}, {vr(vP+1)}")
    A(f"v_cvt_pk_bf16_f32 {vr(vt[2])}, {vr(vP+2)}, {vr(vP+3)}")
    A(f"v_lshlrev_b32 {vr(vP)}, 16, {vr(vt[1])}")
    A(f"v_and_b32 {vr(vP+1)}, {sr(sHi)}, {vr(vt[1])}")
    A(f"v_lshlrev_b32 {vr(vP+2)}, 16, {vr(vt[2])}")
    A(f"v_and_b32 {vr(vP+3)}, {sr(sHi)}, {vr(vt[2])}")
    A(f"v_max_f32 {vr(vt[1])}, {vr(vP)}, {vr(vP+1)}")
    A(f"v_max3_f32 {vr(vt[1])}, {vr(vP+2)}, {vr(vP+3)}, {vr(vt[1])}")
    A(f"v_mov_b32 {vr(vt[2])}, {vr(vt[1])}")
    A(f"v_permlane32_swap_b32 {vr(vt[1])}, {vr(vt[2])}")
    A(f"v_max_f32 {vr(vt[1])}, {vr(vt[1])}, {vr(vt[2])}")
    A(f"v_mov_b32 {vr(vt[2])}, {vr(vt[1])}")
    A(f"v_permlane16_swap_b32 {vr(vt[1])}, {vr(vt[2])}")
    A(f"v_max_f32 {vr(vt[1])}, {vr(vt[1])}, {vr(vt[2])}")
    A(f"ds_write_b32 {vr(vt[5])}, {vr(vt[1])} offset:{WM}")
    A("s_waitcnt lgkmcnt(0)")
    bar()
    A(f"ds_read_b128 {vr(vQf,4)}, {vr(vt[4])} offset:{WM}")
    A(f"ds_read_b128 {vr(vQf+4,4)}, {vr(vt[4])} offset:{WM+16}")
    A(f"s_mov_b32 {sr(st1)}, {hex(f2u(1.4426950408889634))}")
    A(f"v_lshrrev_b32 {vr(vt[0])}, 1, {vr(vG)}")
    A(f"v_and_b32 {vr(vt[3])}, 1, {vr(vG)}")
    A(f"v_lshl_add_u32 {vr(vt[3])}, {vr(vN)}, 1, {vr(vt[3])}")
    A(f"v_lshl_add_u32 {vr(vt[3])}, {vr(vt[0])}, 5, {vr(vt[3])}")
    A(f"s_lshl_b32 {sr(st0)}, {sr(sW)}, 10")
    A(f"v_lshl_add_u32 {vr(vt[3])}, {vr(vt[3])}, 4, {sr(st0)}")
    A("s_waitcnt lgkmcnt(0)")
    A(f"v_max3_f32 {vr(vt[1])}, {vr(vQf)}, {vr(vQf+1)}, {vr(vQf+2)}")
    A(f"v_max3_f32 {vr(vt[2])}, {vr(vQf+3)}, {vr(vQf+4)}, {vr(vQf+5)}")
    A(f"v_max3_f32 {vr(vt[1])}, {vr(vQf+6)}, {vr(vQf+7)}, {vr(vt[1])}")
    A(f"v_max_f32 {vr(vt[1])}, {vr(vt[1])}, {vr(vt[2])}")
    for r in range(4): A(f"v_sub_f32 {vr(vP+r)}, {vr(vP+r)}, {vr(vt[1])}")
    for r in range(4): A(f"v_mul_f32 {vr(vP+r)}, {sr(st1)}, {vr(vP+r)}")
    for r in range(4): A(f"v_exp_f32 {vr(vP+r)}, {vr(vP+r)}")
    A(f"v_add_f32 {vr(vt[1])}, {vr(vP)}, {vr(vP+1)}")
    A(f"v_add_f32 {vr(vt[2])}, {vr(vP+2)}, {vr(vP+3)}")
    A(f"v_add_f32 {vr(vt[1])}, {vr(vt[1])}, {vr(vt[2])}")
    A(f"v_mov_b32 {vr(vt[2])}, {vr(vt[1])}")
    A(f"v_permlane32_swap_b32 {vr(vt[1])}, {vr(vt[2])}")
    A(f"v_add_f32 {vr(vt[1])}, {vr(vt[1])}, {vr(vt[2])}")
    A(f"v_mov_b32 {vr(vt[2])}, {vr(vt[1])}")
    A(f"v_permlane16_swap_b32 {vr(vt[1])}, {vr(vt[2])}")
    A(f"v_add_f32 {vr(vt[1])}, {vr(vt[1])}, {vr(vt[2])}")
    A(f"ds_write_b32 {vr(vt[5])}, {vr(vt[1])} offset:{WL}")
    for r in range(4): A(f"v_cvt_pk_bf16_f32 {vr(vP+r)}, {vr(vP+r)}, {vr(vP+r)}")
    for r in range(4): afrag(vKf+4*r, vP+r)
    for r in range(4):
        rem = NE + (3 - r) if r >= nV_pre + nV_mid else NE + nV_post
        if r == 0 or r >= nV_pre + nV_mid: A(f"s_waitcnt vmcnt({rem})")
        mfma(vD, vKf+4*r, vVv+4*r, r == 0)
    stamp("v_landed")
    A(f"s_lshl_b32 {sr(st1)}, {sr(sW)}, 8")
    A(f"v_lshl_add_u32 {vr(vt[1])}, {vr(vN)}, 4, {sr(st1)}")
    A(f"s_mul_i32 {sr(st0)}, {sr(sLI)}, 1152")
    A(f"s_add_u32 {sr(st0)}, {sr(st0)}, {OOFF}")
    A(f"v_add_u32 {vr(vt[2])}, {sr(st0)}, {vr(vt[1])}")
    A(f"v_lshl_add_u32 {vr(vt[1])}, {vr(vG)}, 10, {vr(vt[1])}")
    A(f"ds_write_b128 {vr(vt[3])}, {vr(vD,4)} offset:{OW}")
    A("s_waitcnt lgkmcnt(0)")
    bar()
    A(f"s_cmp_lt_u32 {sr(sW)}, 4")
    A("s_cbranch_scc0 L_attdone")
    A(f"ds_read_b128 {vr(vP,4)}, {vr(vt[1])} offset:{OW}")
    A(f"ds_read_b128 {vr(vKf,4)}, {vr(vt[1])} offset:{OW+4096}")
    A("s_waitcnt lgkmcnt(0)")
    A(f"v_pk_add_f32 {vr(vP,2)}, {vr(vP,2)}, {vr(vKf,2)}")
    A(f"v_pk_add_f32 {vr(vP+2,2)}, {vr(vP+2,2)}, {vr(vKf+2,2)}")
    halve4(vP, vD); regather(vD)
    tag_insert(vD)
    A("s_mov_b64 exec, 0xffff")
    A(f"global_store_dwordx4 {vr(vt[2])}, {vr(vD,4)}, {sr(pWS,2)} sc1")
    full_exec()
    A("s_branch L_attdone")
    A("L_w8att:")
    A(f"v_and_b32 {vr(vt[0])}, 1, v0")
    A(f"v_lshlrev_b32 {vr(vt[4])}, 5, {vr(vt[0])}")
    A(f"s_mul_i32 {sr(st0)}, {sr(sLI)}, 1152")
    A(f"s_add_u32 {sr(st0)}, {sr(st0)}, {OOFF}")
    A(f"v_lshl_add_u32 {vr(vt[8])}, {vr(vt[0])}, 4, {sr(st0)}")
    bar()
    A(f"ds_read_b128 {vr(vQf,4)}, {vr(vt[4])} offset:{WM}")
    A(f"ds_read_b128 {vr(vQf+4,4)}, {vr(vt[4])} offset:{WM+16}")
    A("s_waitcnt lgkmcnt(0)")
    A(f"v_max3_f32 {vr(vt[1])}, {vr(vQf)}, {vr(vQf+1)}, {vr(vQf+2)}")
    A(f"v_max3_f32 {vr(vt[2])}, {vr(vQf+3)}, {vr(vQf+4)}, {vr(vQf+5)}")
    A(f"v_max3_f32 {vr(vt[1])}, {vr(vQf+6)}, {vr(vQf+7)}, {vr(vt[1])}")
    A(f"v_max_f32 {vr(vP)}, {vr(vt[1])}, {vr(vt[2])}")
    A(f"v_mov_b32 {vr(vP+2)}, 0")
    A(f"v_mov_b32 {vr(vP+3)}, {vr(vT)}")
    restamp("v_landed")
    bar()
    A(f"ds_read_b128 {vr(vQf,4)}, {vr(vt[4])} offset:{WL}")
    A(f"ds_read_b128 {vr(vQf+4,4)}, {vr(vt[4])} offset:{WL+16}")
    A("s_waitcnt lgkmcnt(0)")
    A(f"v_pk_add_f32 {vr(vQf,2)}, {vr(vQf,2)}, {vr(vQf+2,2)}")
    A(f"v_pk_add_f32 {vr(vQf+4,2)}, {vr(vQf+4,2)}, {vr(vQf+6,2)}")
    A(f"v_pk_add_f32 {vr(vQf,2)}, {vr(vQf,2)}, {vr(vQf+4,2)}")
    A(f"v_add_f32 {vr(vP+1)}, {vr(vQf)}, {vr(vQf+1)}")
    A("s_mov_b64 exec, 3")
    A(f"global_store_dwordx4 {vr(vt[8])}, {vr(vP,4)}, {sr(pWS,2)} offset:1024 sc1")
    full_exec()
    A("L_attdone:")
    bar()
    stamp("o_pub")
    A(f"s_cmp_eq_u32 {sr(sRole)}, 0")
    A("s_cbranch_scc1 L_roleF")
    A(f"s_cmp_eq_u32 {sr(sRole)}, 2")
    A("s_cbranch_scc1 L_fin")
    A(f"s_cmp_eq_u32 {sr(sW)}, 8")
    A("s_cbranch_scc1 L_W8")
    for i in range(wo_pre, 8):
        A(f"global_load_dwordx4 {vr(vBig+4*i,4)}, {vr(vt[6])}, {sr(pWO,2)} {nt}")
        if i < 7: A(f"v_add_u32 {vr(vt[6])}, {8*1152}, {vr(vt[6])}")
    A(f"s_lshr_b32 {sr(st0)}, {sr(sW)}, 2")
    A(f"s_lshl_b32 {sr(st0)}, {sr(st0)}, 4")
    A(f"s_lshl_b32 {sr(st1)}, {sr(sX)}, 5")
    A(f"s_add_u32 {sr(st0)}, {sr(st0)}, {sr(st1)}")
    A(f"s_mul_i32 {sr(st0)}, {sr(st0)}, 1152")
    A(f"s_add_u32 {sr(st0)}, {sr(st0)}, {OOFF}")
    A(f"s_and_b32 {sr(st1)}, {sr(sW)}, 3")
    A(f"s_lshl_b32 {sr(st2)}, {sr(st1)}, 8")
    A(f"s_add_u32 {sr(st2)}, {sr(st2)}, {sr(st0)}")
    A(f"s_lshr_b32 {sr(st1)}, {sr(st1)}, 1")
    A(f"s_lshl_b32 {sr(st1)}, {sr(st1)}, 4")
    A(f"s_add_u32 {sr(st1)}, {sr(st1)}, {sr(st0)}")
    A(f"s_movk_i32 {sr(st3)}, 1152")
    A(f"v_lshl_add_u32 {vr(vt[0])}, {vr(vN)}, 4, {sr(st2)}")
    A(f"v_mad_u32_u24 {vr(vt[0])}, {vr(vG)}, {sr(st3)}, {vr(vt[0])}")
    for u in range(1, 4): A(f"v_add_u32 {vr(vt[u])}, {u*4*1152}, {vr(vt[0])}")
    A(f"v_xor_b32 {vr(vt[4])}, {vr(vN)}, {vr(vG)}")
    A(f"v_mov_b32 {vr(vt[5])}, {sr(st1)}")
    A(f"v_mad_u32_u24 {vr(vt[4])}, {vr(vt[4])}, {sr(st3)}, {vr(vt[5])}")
    A(f"s_mov_b32 {sr(st1)}, {hex(f2u(1.4426950408889634))}")
    A("s_waitcnt vmcnt(0)")
    stamp("ph2_landed")
    A("L_wspin:")
    A(f"global_load_dwordx4 {vr(vML,4)}, {vr(vt[4])}, {sr(pWS,2)} offset:1024 sc1")
    for u in range(4): A(f"global_load_dwordx4 {vr(vGa+4*u,4)}, {vr(vt[u])}, {sr(pWS,2)} sc1")
    A("s_waitcnt vmcnt(4)")
    A(f"v_cmp_ne_u32 {sr(sp0,2)}, {vr(vML+3)}, {vr(vT)}")
    A(f"v_mov_b32 {vr(vt[5])}, {vr(vML)}")
    for sh in (8, 4, 2, 1):
        A(f"v_max_f32_dpp {vr(vt[5])}, {vr(vt[5])}, {vr(vt[5])} row_ror:{sh} row_mask:0xf bank_mask:0xf")
    A(f"v_sub_f32 {vr(vt[5])}, {vr(vML)}, {vr(vt[5])}")
    A(f"v_mul_f32 {vr(vt[5])}, {sr(st1)}, {vr(vt[5])}")
    A(f"v_exp_f32 {vr(vt[5])}, {vr(vt[5])}")
    A(f"v_mul_f32 {vr(vt[6])}, {vr(vt[5])}, {vr(vML+1)}")
    for sh in (8, 4, 2, 1):
        A(f"v_add_f32_dpp {vr(vt[6])}, {vr(vt[6])}, {vr(vt[6])} row_ror:{sh} row_mask:0xf bank_mask:0xf")
    A(f"v_rcp_f32 {vr(vt[6])}, {vr(vt[6])}")
    A(f"v_mul_f32 {vr(vt[5])}, {vr(vt[5])}, {vr(vt[6])}")
    for u in range(4):
        A(f"s_waitcnt vmcnt({3-u})")
        tag_check(vGa+4*u, False)
        for k in range(4):
            op = "v_mul_f32_dpp" if u == 0 else "v_fmac_f32_dpp"
            A(f"{op} {vr(vP+k)}, {vr(vt[5])}, {vr(vGa+4*u+k)} row_newbcast:{4*u} row_mask:0xf bank_mask:0xf")
    spin_tail("L_wspin")
    stamp("gath")
    halve4(vP, vt[0])
    A(f"v_cvt_pk_bf16_f32 {vr(vt[0])}, {vr(vt[0])}, {vr(vt[0])}")
    for i in range(8):
        bcast_pair(vt[1+i%2], vt[0], i)
        afrag(vA+4*(i%2), vt[1+i%2])
        mfma(vD, vA+4*(i%2), vBig+4*i, i == 0)
    tile_write()
    A("s_waitcnt lgkmcnt(0)")
    bar()
    A("s_branch L_fin")
    A("L_W8:")
    A(f"s_lshl_b32 {sr(st0)}, {sr(sC)}, 3")
    A(f"s_add_u32 {sr(st0)}, {sr(st0)}, {sr(sX)}")
    A(f"s_lshl_b32 {sr(st0)}, {sr(st0)}, 8")
    A(f"s_add_u32 {sr(st0)}, {sr(st0)}, {HOFF}")
    A(f"v_add_u32 {vr(vt[1])}, {sr(st0)}, {vr(vL16)}")
    bar()
    part_sum(4, vKf, vP)
    halve4(vP, vD); regather(vD)
    tag_insert(vD)
    A("s_mov_b64 exec, 0xffff")
    A(f"global_store_dwordx4 {vr(vt[1])}, {vr(vD,4)}, {sr(pWS,2)} sc1")
    full_exec()
    restamp("gath")
    A("s_branch L_fin")
    A("L_roleF:")
    for i in range(8):
        A(f"global_load_dwordx4 {vr(vBig+4*i,4)}, {vr(vAd,2)}, off {nt}")
        if i < 7: A(f"v_lshl_add_u64 {vr(vAd,2)}, {sr(sStr,2)}, 0, {vr(vAd,2)}")
    A(f"s_lshl_b32 {sr(st0)}, {sr(sW)}, 11")
    A(f"s_add_u32 {sr(st0)}, {sr(st0)}, {HOFF}")
    A(f"v_lshl_add_u32 {vr(vt[0])}, {vr(vL)}, 4, {sr(st0)}        ; H[w][g (+4)][n]")
    A(f"v_lshlrev_b32 {vr(vt[7])}, 1, {vr(vt[7])}")
    A(f"v_lshrrev_b32 {vr(vt[6])}, 5, v0")
    A(f"v_lshlrev_b32 {vr(vt[6])}, 2, {vr(vt[6])}")
    A(f"v_lshlrev_b32 {vr(vt[5])}, 3, {vr(vN)}")
    A("s_waitcnt vmcnt(0)")
    restamp("ph2_landed")
    A(f"v_lshlrev_b32 {vr(vXh)}, 16, {vr(vXh)}")
    A("L_fspin:")
    A(f"global_load_dwordx4 {vr(vGa,4)}, {vr(vt[0])}, {sr(pWS,2)} sc1")
    A(f"global_load_dwordx4 {vr(vGa+4,4)}, {vr(vt[0])}, {sr(pWS,2)} offset:1024 sc1")
    A("s_waitcnt vmcnt(1)")
    tag_check(vGa, True)
    A("s_waitcnt vmcnt(0)")
    tag_check(vGa+4, False)
    for k in range(4): A(f"v_add_f32 {vr(vP+k)}, {vr(vGa+k)}, {vr(vGa+4+k)}")
    spin_tail("L_fspin")
    restamp("gath")
    halve4(vP, vt[1])
    bf16r(vt[1], vt[1])
    A(f"v_add_f32 {vr(vt[1])}, {vr(vt[1])}, {vr(vXh)}")
    bf16r(vt[1], vt[1])
    A(f"ds_write_b32 {vr(vt[7])}, {vr(vt[1])} offset:{HV}")
    A(f"v_mov_b32 {vr(vt[2])}, {vr(vt[1])}")
    A(f"v_mul_f32 {vr(vt[3])}, {vr(vt[1])}, {vr(vt[1])}")
    wave_sum2(vt[2], vt[3], vt[4])
    A(f"ds_write_b32 {vr(vt[6])}, {vr(vt[2])} offset:{STAT}")
    A("s_waitcnt lgkmcnt(0)")
    bar()
    A(f"ds_read_b64 {vr(vP,2)}, {vr(vt[5])} offset:{STAT}")
    A(f"s_mov_b32 {sr(st0)}, {hex(f2u(1.0/576))}")
    A(f"v_mov_b32 {vr(vt[4])}, {hex(f2u(1e-5))}")
    A("s_waitcnt lgkmcnt(0)")
    for sh in (8, 4, 2, 1):
        A(f"v_add_f32_dpp {vr(vP)}, {vr(vP)}, {vr(vP)} row_ror:{sh} row_mask:0xf bank_mask:0xf")
        A(f"v_add_f32_dpp {vr(vP+1)}, {vr(vP+1)}, {vr(vP+1)} row_ror:{sh} row_mask:0xf bank_mask:0xf")
    A(f"v_mul_f32 {vr(vP)}, {sr(st0)}, {vr(vP)}                   ; mean")
    A(f"v_mul_f32 {vr(vP+1)}, {sr(st0)}, {vr(vP+1)}")
    A(f"v_fma_f32 {vr(vP+1)}, -{vr(vP)}, {vr(vP)}, {vr(vP+1)}")
    A(f"v_max_f32 {vr(vP+1)}, 0, {vr(vP+1)}")
    A(f"v_add_f32 {vr(vP+1)}, {vr(vP+1)}, {vr(vt[4])}")
    A(f"v_rsq_f32 {vr(vP+1)}, {vr(vP+1)}")
    A(f"v_sub_f32 {vr(vt[1])}, {vr(vt[1])}, {vr(vP)}")
    A(f"v_mul_f32 {vr(vt[1])}, {vr(vt[1])}, {vr(vP+1)}")
    A(f"v_cvt_pk_bf16_f32 {vr(vt[0])}, {vr(vt[1])}, {vr(vt[1])}")
    for i in range(8):
        bcast_pair(vt[1+i%2], vt[0], i)
        afrag(vA+4*(i%2), vt[1+i%2])
        mfma(vD, vA+4*(i%2), vBig+4*i, i == 0)
    c0 = -2.0 * 0.7978845608028654 * 1.4426950408889634
    A(f"s_mov_b32 {sr(st0)}, {hex(f2u(c0*0.044715))}")
    A(f"v_mov_b32 {vr(vt[4])}, {hex(f2u(c0))}")
    A(f"s_mul_i32 {sr(st1)}, {sr(sW)}, {2*144*128}")
    A(f"s_lshl_b32 {sr(st2)}, {sr(sF)}, 7")
    A(f"s_add_u32 {sr(st1)}, {sr(st1)}, {sr(st2)}")
    A(f"s_add_u32 {sr(st1)}, {sr(st1)}, {YOFF}")
    A(f"s_movk_i32 {sr(st2)}, {144*128}")
    A(f"v_and_b32 {vr(vt[5])}, 0x7f, {vr(vAcc)}")
    A(f"v_add_u32 {vr(vt[5])}, {sr(st1)}, {vr(vt[5])}")
    A(f"v_lshrrev_b32 {vr(vt[6])}, 2, {vr(vC8)}")
    A(f"v_mad_u32_u24 {vr(vt[5])}, {vr(vt[6])}, {sr(st2)}, {vr(vt[5])}")
    tile_write()
    A("s_waitcnt lgkmcnt(0)")
    bar()
    part_sum(5, vKf, vP)
    halve4(vP, vP)
    A(f"v_mul_f32 {vr(vt[1])}, {vr(vP)}, {vr(vP)}")
    A(f"v_fma_f32 {vr(vt[1])}, {vr(vt[1])}, {sr(st0)}, {vr(vt[4])}")
    A(f"v_mul_f32 {vr(vt[1])}, {vr(vt[1])}, {vr(vP)}")
    A(f"v_exp_f32 {vr(vt[1])}, {vr(vt[1])}")
    A(f"v_mul_f32_dpp {vr(vt[2])}, {vr(vP)}, {vr(vP)} row_ror:8 row_mask:0xf bank_mask:0xf   ; g*u")
    A(f"v_add_f32 {vr(vt[1])}, 1.0, {vr(vt[1])}")
    A(f"v_rcp_f32 {vr(vt[1])}, {vr(vt[1])}")
    A(f"v_mul_f32 {vr(vt[1])}, {vr(vt[1])}, {vr(vt[2])}")
    A(f"v_cvt_pk_bf16_f32 {vr(vt[0])}, {vr(vt[1])}, {vr(vt[1])}")
    for i in range(4):
        bcast_pair(vt[1+i%2], vt[0], i)
        afrag(vA+4*(i%2), vt[1+i%2])
        mfma(vD, vA+4*(i%2), vDn+4*i, i == 0)
    for r in range(4): A(f"v_permlane32_swap_b32 {vr(vD+r)}, {vr(vP+r)}")
    for r in range(4): A(f"v_add_f32_dpp {vr(vD+r)}, {vr(vP+r)}, {vr(vD+r)} row_ror:8 row_mask:0xf bank_mask:0xf")
    tag_insert(vD)
    A("s_mov_b64 exec, 0x00ff00ff")
    A(f"global_store_dwordx4 {vr(vt[5])}, {vr(vD,4)}, {sr(pWS,2)} sc1")
    full_exec()
    stamp("y_pub")
    A(f"s_and_b32 {sr(st0)}, {sr(sF)}, 7")
    A(f"s_cmp_eq_u32 {sr(st0)}, 0")
    A("s_cbranch_scc0 L_fin")
    A(f"s_lshr_b32 {sr(sC)}, {sr(sF)}, 3")
    A(f"s_mul_i32 {sr(st0)}, {sr(sC)}, {144*128}")
    A(f"s_lshl_b32 {sr(st1)}, {sr(sW)}, 11")
    A(f"s_add_u32 {sr(st0)}, {sr(st0)}, {sr(st1)}")
    A(f"s_add_u32 {sr(st0)}, {sr(st0)}, {YOFF}")
    A(f"v_lshl_add_u32 {vr(vt[0])}, {vr(vL)}, 4, {sr(st0)}")
    A(f"s_lshl_b32 {sr(st1)}, {sr(sW)}, 8")
    A(f"v_lshl_add_u32 {vr(vt[1])}, {vr(vN)}, 4, {sr(st1)}")
    A(f"v_lshl_add_u32 {vr(vt[1])}, {vr(vG)}, 2, {vr(vt[1])}")
    A(f"v_lshlrev_b32 {vr(vt[2])}, 3, {vr(vL)}")
    A(f"v_lshrrev_b32 {vr(vt[3])}, 5, {vr(vL)}")
    A(f"v_lshl_add_u32 {vr(vt[3])}, {vr(vN)}, 1, {vr(vt[3])}")
    A(f"s_lshl_b32 {sr(st1)}, {sr(sC)}, 7")
    A(f"v_lshl_add_u32 {vr(vt[3])}, {vr(vt[3])}, 2, {sr(st1)}")
    A(f"ds_read_b32 {vr(vXh)}, {vr(vt[3])} offset:{HV}")
    A(f"v_lshrrev_b32 {vr(vt[3])}, 1, {vr(vt[3])}")
    A("s_waitcnt vmcnt(0)")
    A("L_rspin:")
    A(f"global_load_dwordx4 {vr(vGa,4)}, {vr(vt[0])}, {sr(pWS,2)} sc1")
    A(f"global_load_dwordx4 {vr(vGa+4,4)}, {vr(vt[0])}, {sr(pWS,2)} offset:1024 sc1")
    A("s_waitcnt vmcnt(1)")
    tag_check(vGa, True)
    A("s_waitcnt vmcnt(0)")
    tag_check(vGa+4, False)
    for k in range(4): A(f"v_add_f32 {vr(vP+k)}, {vr(vGa+k)}, {vr(vGa+4+k)}")
    spin_tail("L_rspin")
    stamp("y_gath")
    halve4(vP, vt[4])
    A(f"ds_write_b32 {vr(vt[1])}, {vr(vt[4])} offset:{YP+256}")
    A("s_waitcnt lgkmcnt(0)")
    bar()
    A(f"s_cmp_eq_u32 {sr(sW)}, 0")
    A("s_cbranch_scc0 L_fin")
    for u in range(5): A(f"ds_read_b64 {vr(vQf+2*u,2)}, {vr(vt[2])} offset:{YP+512*u}")
    for u in range(1, 5):
        A(f"s_waitcnt lgkmcnt({4-u})")
        A(f"v_pk_add_f32 {vr(vQf,2)}, {vr(vQf,2)}, {vr(vQf+2*u,2)}")
    A(f"v_permlane32_swap_b32 {vr(vQf)}, {vr(vQf+1)}")
    A(f"v_add_f32 {vr(vQf)}, {vr(vQf)}, {vr(vQf+1)}")
    A(f"v_permlane16_swap_b32 {vr(vQf)}, {vr(vQf+1)}")
    A(f"v_add_f32 {vr(vQf)}, {vr(vQf)}, {vr(vQf+1)}")
    bf16r(vQf, vQf)
    A(f"v_add_f32 {vr(vQf)}, {vr(vQf)}, {vr(vXh)}")
    A(f"v_cvt_pk_bf16_f32 {vr(vt[4])}, {vr(vQf)}, {vr(vQf)}")
    A("s_mov_b32 exec_lo, 0xffff"); A("s_mov_b32 exec_hi, 0xffff")
    A(f"global_store_short {vr(vt[3])}, {vr(vt[4])}, {sr(pOUT,2)}")
    A(f"s_cmp_eq_u32 {sr(sC)}, 0")
    A("s_cbranch_scc0 L_fin0")
    A("s_mov_b64 exec, 1")
    A(f"v_mov_b32 {vr(vt[0])}, 0")
    A(f"global_store_dword {vr(vt[0])}, {vr(vT)}, {sr(pWS,2)}")
    A("L_fin0:")
    full_exec()
    A("L_fin:")
    if diag:
        stamp("end")
        A("s_waitcnt lgkmcnt(0)")
        A(f"s_mul_i32 {sr(st0)}, s2, 9")
        A(f"s_add_u32 {sr(st0)}, {sr(st0)}, {sr(sW)}")
        A(f"s_lshl_b32 {sr(st0)}, {sr(st0)}, 6")
        A(f"s_add_u32 {sr(st0)}, {sr(st0)}, {DIAGOFF}")
        A(f"v_mov_b32 {vr(vt[0])}, {sr(st0)}")
        A("s_mov_b64 exec, 1")
        for j, (nm, r) in enumerate(stamps + [("cnt", sCnt), ("role", sRole)]):
            A(f"v_mov_b32 {vr(vt[1])}, {sr(r)}")
            A(f"global_store_dword {vr(vt[0])}, {vr(vt[1])}, {sr(pWS,2)} offset:{4*j}")
    A("L_end:")
    A("s_endpgm")
    A("L_code_end:")
    body = A.text()
    nv = V.hi
    out = HEADER
    out += "; @launch grid=(256,1,1) block=(576,1,1) lds=98304\n"
    out += '.amdgcn_target "amdgcn-amd-amdhsa--gfx950"\n.text\n'
    out += f".globl {NAME}_kernel\n.p2align 8\n.type {NAME}_kernel,@function\n{NAME}_kernel:\n"
    out += body
    out += '.section .rodata,"a"\n.p2align 6\n'
    out += f".amdhsa_kernel {NAME}_kernel\n"
    out += f"  .amdhsa_next_free_vgpr {nv}\n  .amdhsa_next_free_sgpr {S.hi}\n  .amdhsa_accum_offset {(nv+3)//4*4}\n"
    out += "  .amdhsa_group_segment_fixed_size 0\n  .amdhsa_kernarg_size 96\n  .amdhsa_user_sgpr_count 2\n"
    out += "  .amdhsa_user_sgpr_kernarg_segment_ptr 1\n  .amdhsa_system_sgpr_workgroup_id_x 1\n"
    out += "  .amdhsa_float_denorm_mode_32 3\n"
    out += ".end_amdhsa_kernel\n"
    names = [n for n, _ in stamps] + ["cnt", "role"]
    return out, names

if __name__ == "__main__":
    kw = {}
    for a in sys.argv[2:]:
        k, v = a.split("="); kw[k] = eval(v)
    txt, names = gen(**kw)
    open(sys.argv[1], "w").write(txt)
    print("written", sys.argv[1], names)
```

```python
import sys, struct
from asmlib import *

NAME = "sequential_preLN__sliding_block_cached__glu_gated_geglu__decode"
HEADER = open("cdna_kernels/%s.s.ref" % NAME).read().split("; Override launch")[0]

def f2u(x): return struct.unpack("<I", struct.pack("<f", x))[0]

QOFF, OOFF, HOFF, YOFF, DIAGOFF = 0x1000, 0x20000, 0x80000, 0x90000, 0x100000
PART, ZERO0, STAT, YP = 0, 4608, 5120, 5248
QB, WM, WL, HV, OW, KL = 7936, 8448, 8512, 8704, 12288, 20480

def gen(diag=False, nt="nt", nV_pre=2, nV_mid=1, wo_pre=4, spin_cap=True, codepf=True, amp=None, dbg=False):
    A = Asm()
    V = Regs("v", 1, 168); S = Regs("s", 32, 100)
    nV_post = 4 - nV_pre - nV_mid
    pX, pK, pV, pWQ, pWO, pG, pU, pD, pOUT, pWS = 8, 10, 12, 14, 16, 20, 22, 24, 26, 30
    sX, sI, sLI, sH, sS, sW, sT, sE = [S.alloc() for _ in range(8)]
    sRole, sC, sF = S.alloc(), S.alloc(), S.alloc()
    st0, st1, st2, st3 = [S.alloc() for _ in range(4)]
    sSelIns = [S.alloc() for _ in range(4)]
    sSelChk = S.alloc()
    sp0 = S.alloc(2, 2); sp1 = S.alloc(2, 2); sStr = S.alloc(2, 2)
    sCnt = S.alloc()
    sHi = S.alloc()
    stamps = []
    def stamp(name):
        if diag or dbg or (amp and name in ("start", amp[0])):
            r = S.alloc(2, 2); stamps.append((name, r)); A(f"s_memrealtime {sr(r,2)}")
    def restamp(name):
        if diag or dbg or (amp and name in ("start", amp[0])):
            r = dict(stamps)[name]; A(f"s_memrealtime {sr(r,2)}")

    vL, vG, vN, vC8, vT = [V.alloc() for _ in range(5)]
    vMk = V.alloc(4, 2)
    vAcc = V.alloc()
    vPw = V.alloc()
    vL16 = V.alloc()
    vt = [V.alloc() for _ in range(10)]
    vAd = V.alloc(2, 2)
    vKV = V.alloc()
    vXh = V.alloc()
    vA = V.alloc(8, 2)
    vD = V.alloc(4, 2)
    vP = V.alloc(4, 2)
    vWq = V.alloc(8, 2)
    vXa = V.alloc(4, 2); vXu = V.alloc(); vXm = V.alloc()
    vKf = V.alloc(16, 2)
    vQf = V.alloc(16, 2)
    vVv = V.alloc(16, 2)
    vBig = V.alloc(32, 2)
    vDn = V.alloc(16, 2)
    vGa = vKf
    vML = vQf

    def bar(): A("s_barrier")
    def tag_insert(base):
        for k in range(4): A(f"v_perm_b32 {vr(base+k)}, {vr(base+k)}, {vr(vT)}, {sr(sSelIns[k])}")
    def tag_check(base, acc_first):
        A(f"v_perm_b32 {vr(vt[8])}, {vr(base+1)}, {vr(base)}, {sr(sSelChk)}")
        A(f"v_perm_b32 {vr(vt[9])}, {vr(base+3)}, {vr(base+2)}, {sr(sSelChk)}")
        A(f"v_lshl_or_b32 {vr(vt[8])}, {vr(vt[9])}, 16, {vr(vt[8])}")
        if acc_first:
            A(f"v_cmp_ne_u32 {sr(sp0,2)}, {vr(vt[8])}, {vr(vT)}")
        else:
            A(f"v_cmp_ne_u32 vcc, {vr(vt[8])}, {vr(vT)}")
            A(f"s_or_b64 {sr(sp0,2)}, {sr(sp0,2)}, vcc")
    def halve4(a, dst):
        A(f"v_permlane32_swap_b32 {vr(a)}, {vr(a+2)}")
        A(f"v_permlane32_swap_b32 {vr(a+1)}, {vr(a+3)}")
        A(f"v_add_f32 {vr(a)}, {vr(a)}, {vr(a+2)}")
        A(f"v_add_f32 {vr(a+1)}, {vr(a+1)}, {vr(a+3)}")
        A(f"v_permlane16_swap_b32 {vr(a)}, {vr(a+1)}")
        A(f"v_add_f32 {vr(dst)}, {vr(a)}, {vr(a+1)}")
    def afrag(dst, src):
        for k in range(4): A(f"v_and_b32 {vr(dst+k)}, {vr(src)}, {vr(vMk+k)}")
    def bcast_pair(dst, src, i):
        A(f"v_mov_b32_dpp {vr(dst)}, {vr(src)} row_newbcast:{2*i} row_mask:0xf bank_mask:0x3")
        A(f"v_mov_b32_dpp {vr(dst)}, {vr(src)} row_newbcast:{2*i+1} row_mask:0xf bank_mask:0xc")
    def mfma(d, a, b, first):
        A(f"v_mfma_f32_16x16x32_bf16 {vr(d,4)}, {vr(a,4)}, {vr(b,4)}, {'0' if first else vr(d,4)}")
    def valid_exec():
        A("s_mov_b32 exec_lo, 0x00ff00ff"); A("s_mov_b32 exec_hi, 0xff00ff00")
    def full_exec(): A("s_mov_b64 exec, -1")
    def tile_write():
        valid_exec()
        A(f"ds_write_b128 {vr(vPw)}, {vr(vD,4)} offset:{PART}")
        full_exec()
    def part_sum(nrd, buf, dst4, base=PART, stride=1024):
        for u in range(nrd): A(f"ds_read_b128 {vr(buf+4*u,4)}, {vr(vL16)} offset:{base+stride*u}")
        for u in range(1, nrd):
            A(f"s_waitcnt lgkmcnt({nrd-1-u})")
            a = buf if u == 1 else dst4
            A(f"v_pk_add_f32 {vr(dst4,2)}, {vr(a,2)}, {vr(buf+4*u,2)}")
            A(f"v_pk_add_f32 {vr(dst4+2,2)}, {vr(a+2,2)}, {vr(buf+4*u+2,2)}")
    def regather(c):
        A(f"v_permlane16_swap_b32 {vr(c)}, {vr(c+1)}")
        A(f"v_permlane32_swap_b32 {vr(c)}, {vr(c+2)}")
        A(f"v_permlane32_swap_b32 {vr(c+1)}, {vr(c+3)}")
    def bf16r(dst, src):
        A(f"v_cvt_pk_bf16_f32 {vr(dst)}, {vr(src)}, {vr(src)}")
        A(f"v_and_b32 {vr(dst)}, {sr(sHi)}, {vr(dst)}")
    def wave_sum2(a, b, tmp):
        A(f"v_permlane32_swap_b32 {vr(a)}, {vr(b)}")
        A(f"v_add_f32 {vr(a)}, {vr(a)}, {vr(b)}")
        A(f"v_mov_b32 {vr(tmp)}, {vr(a)}")
        A(f"v_permlane16_swap_b32 {vr(a)}, {vr(tmp)}")
        A(f"v_add_f32 {vr(a)}, {vr(a)}, {vr(tmp)}")
        for sh in (8, 4, 2, 1):
            A(f"v_add_f32_dpp {vr(a)}, {vr(a)}, {vr(a)} row_ror:{sh} row_mask:0xf bank_mask:0xf")
    def spin_tail(lbl):
        A(f"s_cmp_eq_u64 {sr(sp0,2)}, 0")
        if spin_cap:
            A(f"s_cbranch_scc1 {lbl}_ok")
            A(f"s_add_u32 {sr(sCnt)}, {sr(sCnt)}, 1")
            A(f"s_cmp_lt_u32 {sr(sCnt)}, 0x40000")
            A(f"s_cbranch_scc1 {lbl}")
            A(f"{lbl}_ok:")
        else:
            A(f"s_cbranch_scc0 {lbl}")

    stamp("start")
    A("s_cmp_ge_u32 s2, 256")
    A("s_cbranch_scc1 L_end")
    A("s_load_dwordx16 s[8:23], s[0:1], 0")
    A("s_load_dwordx8 s[24:31], s[0:1], 64")
    A(f"v_lshlrev_b32 {vr(vt[0])}, 2, v0")
    A(f"v_mov_b32 {vr(vt[1])}, 0")
    A(f"ds_write_b32 {vr(vt[0])}, {vr(vt[1])} offset:{ZERO0}")
    A(f"v_lshrrev_b32 {vr(vt[2])}, 6, v0")
    A(f"s_and_b32 {sr(sX)}, s2, 7")
    A(f"s_lshr_b32 {sr(sI)}, s2, 3")
    A(f"v_readfirstlane_b32 {sr(sW)}, {vr(vt[2])}")
    if codepf:
        A(f"s_lshl_b32 {sr(st0)}, {sr(sW)}, 5")
        A(f"s_add_u32 {sr(st0)}, {sr(st0)}, {sr(sI)}")
        A(f"s_cmp_eq_u32 {sr(st0)}, {8*32+31}")
        A("s_cbranch_scc0 L_nopf")
        A(f"s_getpc_b64 {sr(sp1,2)}")
        A(f"v_and_b32 {vr(vt[0])}, 63, v0")
        A(f"v_lshlrev_b32 {vr(vt[0])}, 7, {vr(vt[0])}")
        A(f"v_min_u32 {vr(vt[0])}, L_code_end-.-16, {vr(vt[0])}")
        A(f"global_load_dword {vr(vBig)}, {vr(vt[0])}, {sr(sp1,2)}")
        A("L_nopf:")
    A(f"s_lshl_b32 {sr(sLI)}, {sr(sX)}, 5")
    A(f"s_add_u32 {sr(sLI)}, {sr(sLI)}, {sr(sI)}")
    A(f"s_lshr_b32 {sr(sH)}, {sr(sLI)}, 4")
    A(f"s_and_b32 {sr(sS)}, {sr(sI)}, 15")
    A(f"v_and_b32 {vr(vL)}, 63, v0")
    A(f"v_bfe_u32 {vr(vG)}, v0, 4, 2")
    A(f"v_and_b32 {vr(vN)}, 15, v0")
    A(f"v_and_b32 {vr(vC8)}, 7, v0")
    A(f"s_lshr_b32 {sr(st0)}, {sr(sS)}, 2")
    A(f"s_mul_i32 {sr(st0)}, {sr(st0)}, 144")
    A(f"s_and_b32 {sr(st1)}, {sr(sS)}, 3")
    A(f"s_lshl_b32 {sr(st1)}, {sr(st1)}, 7")
    A(f"s_lshl_b32 {sr(st2)}, {sr(sH)}, 9")
    A(f"s_add_u32 {sr(st1)}, {sr(st1)}, {sr(st2)}")
    A(f"v_lshrrev_b32 {vr(vt[3])}, 3, v0")
    A(f"v_lshl_add_u32 {vr(vt[3])}, {vr(vt[3])}, 1, {sr(st0)}")
    A(f"v_lshl_add_u32 {vr(vt[4])}, {vr(vC8)}, 4, {sr(st1)}")
    A(f"v_lshl_add_u32 {vr(vt[4])}, {vr(vt[3])}, 13, {vr(vt[4])}")
    A(f"v_add_u32 {vr(vt[5])}, 0x2000, {vr(vt[4])}")
    A(f"v_lshlrev_b32 {vr(vt[3])}, 1, {vr(vt[3])}")
    A(f"v_lshlrev_b32 {vr(vt[6])}, 4, {vr(vL)}")
    A(f"v_lshlrev_b32 {vr(vt[7])}, 1, {vr(vL)}")
    A(f"s_lshl_b32 {sr(st2)}, {sr(sH)}, 21")
    A(f"s_lshl_b32 {sr(st3)}, {sr(sS)}, 15")
    A(f"s_add_u32 {sr(st2)}, {sr(st2)}, {sr(st3)}")
    A(f"s_lshl_b32 {sr(st3)}, {sr(sW)}, 12")
    A(f"s_add_u32 {sr(st2)}, {sr(st2)}, {sr(st3)}")
    A(f"s_add_u32 {sr(st2)}, {sr(st2)}, 0x180000")
    A(f"s_add_u32 m0, {sr(st3)}, {KL}")
    A("s_waitcnt lgkmcnt(0)")
    A(f"global_load_dwordx4 {vr(vXa,4)}, {vr(vt[6])}, {sr(pX,2)}")
    A(f"global_load_ushort {vr(vXu)}, {vr(vt[7])}, {sr(pX,2)} offset:1024")
    A(f"global_load_dword {vr(vXm)}, {vr(vt[3])}, {sr(pX,2)}")
    A(f"global_load_dwordx4 {vr(vWq,4)}, {vr(vt[4])}, {sr(pWQ,2)} {nt}")
    A(f"global_load_dwordx4 {vr(vWq+4,4)}, {vr(vt[5])}, {sr(pWQ,2)} {nt}")
    A(f"s_load_dword {sr(sE)}, {sr(pWS,2)}, 0")
    A(f"v_xor_b32 {vr(vt[0])}, {vr(vN)}, {vr(vG)}")
    A(f"v_lshl_add_u32 {vr(vt[1])}, {vr(vt[0])}, 4, {sr(st2)}")
    A(f"v_lshl_add_u32 {vr(vt[1])}, {vr(vG)}, 8, {vr(vt[1])}")
    A(f"v_xor_b32 {vr(vt[2])}, 64, {vr(vt[1])}")
    A(f"v_xor_b32 {vr(vt[3])}, 0x80, {vr(vt[1])}")
    A(f"v_xor_b32 {vr(vt[4])}, 0xc0, {vr(vt[1])}")
    A(f"v_lshl_add_u32 {vr(vKV)}, {vr(vN)}, 4, {sr(st2)}")
    A(f"v_lshl_add_u32 {vr(vKV)}, {vr(vG)}, 10, {vr(vKV)}")
    bar()
    A(f"s_cmp_eq_u32 {sr(sW)}, 8")
    A("s_cbranch_scc1 L_nokv")
    for t in range(4):
        A(f"global_load_lds_dwordx4 {vr(vt[1+t])}, {sr(pK,2)} offset:{t*1024} {nt}")
    A("L_nokv:")
    bar()
    A("s_cbranch_scc1 L_nokv2")
    for r in range(nV_pre):
        A(f"global_load_dwordx4 {vr(vVv+4*r,4)}, {vr(vKV)}, {sr(pV,2)} offset:{r*256} {nt}")
    A("L_nokv2:")
    stamp("issued1")
    A(f"s_lshr_b32 {sr(st0)}, {sr(sI)}, 4")
    A(f"s_mul_i32 {sr(st0)}, {sr(st0)}, 7")
    A(f"s_add_u32 {sr(st0)}, {sr(st0)}, {sr(sS)}")
    A(f"s_sub_u32 {sr(sC)}, {sr(st0)}, 9")
    A(f"s_mul_i32 {sr(sF)}, {sr(sH)}, 9")
    A(f"s_add_u32 {sr(sF)}, {sr(sF)}, {sr(sS)}")
    A(f"s_cmp_lt_u32 {sr(sC)}, 9")
    A(f"s_cselect_b32 {sr(sRole)}, 1, 2")
    A(f"s_cmp_lt_u32 {sr(sS)}, 9")
    A(f"s_cselect_b32 {sr(sRole)}, 0, {sr(sRole)}")
    A(f"s_mov_b32 {sr(sCnt)}, 0")
    A(f"s_mov_b32 {sr(sHi)}, 0xffff0000")
    for k in range(4): A(f"s_mov_b32 {sr(sSelIns[k])}, {hex(0x07060500 + k)}")
    A(f"s_mov_b32 {sr(sSelChk)}, 0x0c0c0400")
    A(f"v_and_b32 {vr(vt[0])}, 1, v0")
    A(f"v_lshlrev_b32 {vr(vt[0])}, 4, {vr(vt[0])}")
    A(f"v_mov_b32 {vr(vt[1])}, 0xffff")
    A(f"v_lshlrev_b32 {vr(vt[0])}, {vr(vt[0])}, {vr(vt[1])}")
    A(f"v_bfe_u32 {vr(vt[1])}, v0, 1, 2")
    for k in range(4):
        A(f"v_cmp_eq_u32 vcc, {k}, {vr(vt[1])}")
        A(f"v_cndmask_b32 {vr(vMk+k)}, 0, {vr(vt[0])}, vcc")
    A(f"v_and_b32 {vr(vt[0])}, 1, {vr(vG)}")
    A(f"v_lshlrev_b32 {vr(vt[0])}, 4, {vr(vt[0])}")
    A(f"v_lshl_add_u32 {vr(vAcc)}, {vr(vC8)}, 5, {vr(vt[0])}")
    A(f"v_lshrrev_b32 {vr(vt[0])}, 5, v0                          ; 2w + s")
    A(f"v_lshl_add_u32 {vr(vPw)}, {vr(vt[0])}, 8, {vr(vAcc)}")
    A(f"v_lshlrev_b32 {vr(vL16)}, 4, {vr(vL)}")
    nafter = 4 + nV_pre
    A(f"s_cmp_eq_u32 {sr(sW)}, 8")
    A("s_cbranch_scc0 L_w07a")
    A("s_waitcnt vmcnt(2)")
    A("L_w07a:")
    A(f"s_waitcnt vmcnt({nafter+2})")
    e = vKf
    for k in range(4):
        A(f"v_lshlrev_b32 {vr(e+2*k)}, 16, {vr(vXa+k)}")
        A(f"v_and_b32 {vr(e+2*k+1)}, {sr(sHi)}, {vr(vXa+k)}")
    A(f"v_lshlrev_b32 {vr(e+8)}, 16, {vr(vXu)}")
    A(f"v_add_f32 {vr(vt[0])}, {vr(e)}, {vr(e+1)}")
    A(f"v_mul_f32 {vr(vt[1])}, {vr(e)}, {vr(e)}")
    for k in range(1, 9):
        if k >= 2: A(f"v_add_f32 {vr(vt[0])}, {vr(vt[0])}, {vr(e+k)}")
        A(f"v_fmac_f32 {vr(vt[1])}, {vr(e+k)}, {vr(e+k)}")
    wave_sum2(vt[0], vt[1], vt[2])
    A(f"v_mul_f32 {vr(vt[0])}, {hex(f2u(1.0/576))}, {vr(vt[0])}")
    A(f"v_readlane_b32 {sr(st0)}, {vr(vt[0])}, 0        ; mean")
    A(f"v_readlane_b32 {sr(st1)}, {vr(vt[0])}, 32       ; E[x^2]")
    A(f"v_mov_b32 {vr(vt[0])}, {sr(st0)}")
    A(f"v_fma_f32 {vr(vt[1])}, -{vr(vt[0])}, {vr(vt[0])}, {sr(st1)}   ; var")
    A(f"v_max_f32 {vr(vt[1])}, 0, {vr(vt[1])}")
    bf16r(vt[0], vt[0]); bf16r(vt[1], vt[1])
    A(f"v_add_f32 {vr(vt[1])}, {hex(f2u(1e-5))}, {vr(vt[1])}")
    bf16r(vt[1], vt[1])
    A(f"v_sqrt_f32 {vr(vt[1])}, {vr(vt[1])}")
    bf16r(vt[1], vt[1])
    A(f"v_rcp_f32 {vr(vt[1])}, {vr(vt[1])}")
    A(f"v_lshlrev_b32 {vr(vt[2])}, 16, {vr(vXm)}")
    A(f"v_and_b32 {vr(vt[3])}, {sr(sHi)}, {vr(vXm)}")
    A(f"v_sub_f32 {vr(vt[2])}, {vr(vt[2])}, {vr(vt[0])}")
    A(f"v_sub_f32 {vr(vt[3])}, {vr(vt[3])}, {vr(vt[0])}")
    bf16r(vt[2], vt[2]); bf16r(vt[3], vt[3])
    A(f"v_mul_f32 {vr(vt[2])}, {vr(vt[2])}, {vr(vt[1])}")
    A(f"v_mul_f32 {vr(vt[3])}, {vr(vt[3])}, {vr(vt[1])}")
    A(f"v_cvt_pk_bf16_f32 {vr(vt[2])}, {vr(vt[2])}, {vr(vt[2])}")
    A(f"v_cvt_pk_bf16_f32 {vr(vt[3])}, {vr(vt[3])}, {vr(vt[3])}")
    afrag(vA, vt[2]); afrag(vA+4, vt[3])
    A("s_waitcnt lgkmcnt(0)")
    A(f"s_add_u32 {sr(sT)}, {sr(sE)}, 0x01010101")
    A(f"v_mov_b32 {vr(vT)}, {sr(sT)}")
    A(f"s_cmp_eq_u32 {sr(sW)}, 8")
    A("s_cbranch_scc0 L_w07b")
    A("s_waitcnt vmcnt(0)")
    A("L_w07b:")
    A(f"s_waitcnt vmcnt({nafter})")
    stamp("wq_landed")
    mfma(vD, vA, vWq, True); mfma(vD, vA+4, vWq+4, False)
    tile_write()
    A("s_waitcnt lgkmcnt(0)")
    bar()
    A(f"s_cmp_eq_u32 {sr(sW)}, 8")
    A("s_cbranch_scc0 L_w07c")
    A(f"s_lshl_b32 {sr(st0)}, {sr(sLI)}, 8")
    A(f"s_add_u32 {sr(st0)}, {sr(st0)}, {QOFF}")
    A(f"v_add_u32 {vr(vt[0])}, {sr(st0)}, {vr(vL16)}")
    part_sum(5, vKf, vP)
    halve4(vP, vD); regather(vD)
    tag_insert(vD)
    A("s_mov_b64 exec, 0xffff")
    A(f"global_store_dwordx4 {vr(vt[0])}, {vr(vD,4)}, {sr(pWS,2)} sc1")
    full_exec()
    A("s_branch L_mid")
    A("L_w07c:")
    for r in range(nV_pre, nV_pre + nV_mid):
        A(f"global_load_dwordx4 {vr(vVv+4*r,4)}, {vr(vKV)}, {sr(pV,2)} offset:{r*256} {nt}")
    A("L_mid:")
    stamp("q_pub")
    A(f"v_bfe_u32 {vr(vt[0])}, v0, 3, 1")
    A(f"v_lshl_add_u32 {vr(vt[0])}, {vr(vt[0])}, 2, {vr(vG)}       ; 4s'+g")
    A(f"s_lshl_b32 {sr(st0)}, {sr(sF)}, 5")
    A(f"s_lshl_b32 {sr(st1)}, {sr(sX)}, 9")
    A(f"s_lshl_b32 {sr(st2)}, {sr(sW)}, 6")
    A(f"s_add_u32 {sr(st1)}, {sr(st1)}, {sr(st2)}")
    A(f"s_cmp_eq_u32 {sr(sRole)}, 0")
    A(f"s_cselect_b32 {sr(st0)}, {sr(st0)}, {sr(st1)}")
    A(f"s_cselect_b32 {sr(st1)}, {sr(sW)}, {sr(sC)}")
    A(f"s_mul_i32 {sr(st0)}, {sr(st0)}, 1152")
    A(f"s_lshl_b32 {sr(st1)}, {sr(st1)}, 7")
    A(f"s_add_u32 {sr(st0)}, {sr(st0)}, {sr(st1)}")
    A(f"s_movk_i32 {sr(st1)}, 1152")
    A(f"v_lshl_add_u32 {vr(vt[6])}, {vr(vC8)}, 4, {sr(st0)}")
    A(f"v_mad_u32_u24 {vr(vt[6])}, {vr(vt[0])}, {sr(st1)}, {vr(vt[6])}")
    A(f"v_add_u32 {vr(vt[0])}, {sr(st2)}, {vr(vt[0])}")
    A(f"s_movk_i32 {sr(st1)}, 9216")
    A(f"s_lshl_b32 {sr(st0)}, {sr(sF)}, 6")
    A(f"v_and_b32 {vr(vt[1])}, 3, v0")
    A(f"v_lshl_add_u32 {vr(vt[1])}, {vr(vt[1])}, 4, {sr(st0)}")
    A(f"v_mad_u32_u24 {vr(vt[1])}, {vr(vt[0])}, {sr(st1)}, {vr(vt[1])}")
    A(f"v_and_b32 {vr(vt[2])}, 4, v0")
    A(f"v_cmp_eq_u32 vcc, 0, {vr(vt[2])}")
    A(f"v_mov_b32 {vr(vt[2])}, {sr(pU)}")
    A(f"v_mov_b32 {vr(vt[3])}, {sr(pU+1)}")
    A(f"v_mov_b32 {vr(vt[4])}, {sr(pG)}")
    A(f"v_mov_b32 {vr(vt[5])}, {sr(pG+1)}")
    A(f"v_cndmask_b32 {vr(vAd)}, {vr(vt[2])}, {vr(vt[4])}, vcc")
    A(f"v_cndmask_b32 {vr(vAd+1)}, {vr(vt[3])}, {vr(vt[5])}, vcc")
    A(f"v_add_co_u32 {vr(vAd)}, vcc, {vr(vAd)}, {vr(vt[1])}")
    A(f"v_addc_co_u32 {vr(vAd+1)}, vcc, 0, {vr(vAd+1)}, vcc")
    A(f"s_mov_b32 {sr(sStr)}, {8*9216}")
    A(f"s_mov_b32 {sr(sStr+1)}, 0")
    A(f"v_lshl_add_u32 {vr(vt[7])}, {vr(vN)}, 2, {vr(vG)}")
    A(f"v_add_u32 {vr(vt[7])}, {sr(st2)}, {vr(vt[7])}")
    A(f"v_lshlrev_b32 {vr(vt[7])}, 1, {vr(vt[7])}")
    A(f"s_and_b32 {sr(st0)}, {sr(sW)}, 3")
    A(f"s_lshl_b32 {sr(st1)}, {sr(sH)}, 4")
    A(f"s_add_u32 {sr(st1)}, {sr(st1)}, {sr(st0)}")
    A(f"s_lshl_b32 {sr(st1)}, {sr(st1)}, 8")
    A(f"s_add_u32 {sr(st1)}, {sr(st1)}, {QOFF}")
    A(f"v_lshl_add_u32 {vr(vt[5])}, {vr(vN)}, 4, {sr(st1)}")
    A(f"v_lshl_add_u32 {vr(vt[5])}, {vr(vG)}, 10, {vr(vt[5])}")
    A(f"s_cmp_eq_u32 {sr(sW)}, 8")
    A("s_cbranch_scc1 L_w8d")
    A(f"s_waitcnt vmcnt({nV_pre + nV_mid})")
    A("L_w8d:")
    bar()
    stamp("k_landed")
    A(f"s_cmp_lt_u32 {sr(sW)}, 4")
    A("s_cbranch_scc0 L_nopoll")
    A(f"global_load_dwordx4 {vr(vWq,4)}, {vr(vt[5])}, {sr(pWS,2)} sc1")
    A("L_nopoll:")
    A(f"s_cmp_eq_u32 {sr(sW)}, 8")
    A("s_cbranch_scc1 L_nov2")
    for r in range(nV_pre + nV_mid, 4):
        A(f"global_load_dwordx4 {vr(vVv+4*r,4)}, {vr(vKV)}, {sr(pV,2)} offset:{r*256} {nt}")
    A(f"v_xor_b32 {vr(vt[0])}, {vr(vN)}, {vr(vG)}")
    A(f"v_lshlrev_b32 {vr(vt[0])}, 4, {vr(vt[0])}")
    A(f"v_lshl_add_u32 {vr(vt[0])}, {vr(vN)}, 8, {vr(vt[0])}")
    A(f"v_add_u32 {vr(vt[0])}, m0, {vr(vt[0])}")
    A(f"v_xor_b32 {vr(vt[1])}, 64, {vr(vt[0])}")
    A(f"v_xor_b32 {vr(vt[2])}, 0x80, {vr(vt[0])}")
    A(f"v_xor_b32 {vr(vt[3])}, 0xc0, {vr(vt[0])}")
    for i in range(4): A(f"ds_read_b128 {vr(vKf+4*i,4)}, {vr(vt[i])}")
    A("L_nov2:")
    bar()
    NE = 5
    A(f"s_cmp_eq_u32 {sr(sRole)}, 0")
    A("s_cbranch_scc0 L_notF1")
    for i in range(4):
        A(f"global_load_dwordx4 {vr(vDn+4*i,4)}, {vr(vt[6])}, {sr(pD,2)} {nt}")
        if i < 3: A(f"v_add_u32 {vr(vt[6])}, {8*1152}, {vr(vt[6])}")
    A(f"global_load_ushort {vr(vXh)}, {vr(vt[7])}, {sr(pX,2)}")
    A("s_branch L_e1done")
    A("L_notF1:")
    A(f"s_cmp_eq_u32 {sr(sRole)}, 1")
    A("s_cbranch_scc0 L_roleS1")
    A(f"s_cmp_eq_u32 {sr(sW)}, 8")
    A("s_cbranch_scc1 L_e1done")
    assert wo_pre <= NE
    for i in range(wo_pre):
        A(f"global_load_dwordx4 {vr(vBig+4*i,4)}, {vr(vt[6])}, {sr(pWO,2)} {nt}")
        A(f"v_add_u32 {vr(vt[6])}, {8*1152}, {vr(vt[6])}")
    for i in range(NE - wo_pre):
        A(f"global_load_ushort {vr(vXh)}, {vr(vt[7])}, {sr(pX,2)}")
    A("s_branch L_e1done")
    A("L_roleS1:")
    for i in range(NE):
        A(f"global_load_ushort {vr(vXh)}, {vr(vt[7])}, {sr(pX,2)}")
    A("L_e1done:")
    A(f"s_cmp_lt_u32 {sr(sW)}, 4")
    A("s_cbranch_scc0 L_qdone")
    A(f"s_waitcnt vmcnt({nV_post + NE})")
    tag_check(vWq, True)
    A(f"s_cmp_eq_u64 {sr(sp0,2)}, 0")
    A("s_cbranch_scc1 L_qspin_ok")
    A("L_qspin:")
    A(f"global_load_dwordx4 {vr(vWq,4)}, {vr(vt[5])}, {sr(pWS,2)} sc1")
    A("s_waitcnt vmcnt(0)")
    tag_check(vWq, True)
    if spin_cap: spin_tail("L_qspin")
    else:
        spin_tail("L_qspin"); A("L_qspin_ok:")
    halve4(vWq, vt[0])
    A(f"v_cvt_pk_bf16_f32 {vr(vt[0])}, {vr(vt[0])}, {vr(vt[0])}")
    A(f"ds_write_b16 {vr(vt[7])}, {vr(vt[0])} offset:{QB}      ; (64w+4n+g)*2")
    A("L_qdone:")
    A("s_waitcnt lgkmcnt(0)")
    bar()
    stamp("q_ready")
    A(f"s_cmp_eq_u32 {sr(sW)}, 8")
    A("s_cbranch_scc1 L_w8att")
    A(f"v_bfe_u32 {vr(vt[0])}, v0, 3, 1                        ; head")
    A(f"v_lshlrev_b32 {vr(vt[1])}, 4, {vr(vG)}")
    A(f"v_lshl_add_u32 {vr(vt[1])}, {vr(vt[0])}, 8, {vr(vt[1])}")
    for i in range(4): A(f"ds_read_b128 {vr(vQf+4*i,4)}, {vr(vt[1])} offset:{QB+64*i}")
    A(f"s_lshl_b32 {sr(st0)}, {sr(sW)}, 2")
    A(f"v_lshlrev_b32 {vr(vt[4])}, 5, {vr(vt[0])}              ; head*32")
    A(f"v_add_u32 {vr(vt[5])}, {sr(st0)}, {vr(vt[4])}")
    for i in range(4):
        A(f"s_waitcnt lgkmcnt({3-i})")
        mfma(vD, vKf+4*i, vQf+4*i, i == 0)
    A(f"s_mov_b32 {sr(st1)}, {hex(f2u(128**-0.5))}")
    A(f"v_cvt_pk_bf16_f32 {vr(vt[1])}, {vr(vD)}, {vr(vD+1)}")
    A(f"v_cvt_pk_bf16_f32 {vr(vt[2])}, {vr(vD+2)}, {vr(vD+3)}")
    A(f"v_lshlrev_b32 {vr(vP)}, 16, {vr(vt[1])}")
    A(f"v_and_b32 {vr(vP+1)}, {sr(sHi)}, {vr(vt[1])}")
    A(f"v_lshlrev_b32 {vr(vP+2)}, 16, {vr(vt[2])}")
    A(f"v_and_b32 {vr(vP+3)}, {sr(sHi)}, {vr(vt[2])}")
    for r in range(4): A(f"v_mul_f32 {vr(vP+r)}, {sr(st1)}, {vr(vP+r)}")
    A(f"v_cvt_pk_bf16_f32 {vr(vt[1])}, {vr(vP)}, {vr(vP+1)}")
    A(f"v_cvt_pk_bf16_f32 {vr(vt[2])}, {vr(vP+2)}, {vr(vP+3)}")
    A(f"v_lshlrev_b32 {vr(vP)}, 16, {vr(vt[1])}")
    A(f"v_and_b32 {vr(vP+1)}, {sr(sHi)}, {vr(vt[1])}")
    A(f"v_lshlrev_b32 {vr(vP+2)}, 16, {vr(vt[2])}")
    A(f"v_and_b32 {vr(vP+3)}, {sr(sHi)}, {vr(vt[2])}")
    A(f"v_max_f32 {vr(vt[1])}, {vr(vP)}, {vr(vP+1)}")
    A(f"v_max3_f32 {vr(vt[1])}, {vr(vP+2)}, {vr(vP+3)}, {vr(vt[1])}")
    A(f"v_mov_b32 {vr(vt[2])}, {vr(vt[1])}")
    A(f"v_permlane32_swap_b32 {vr(vt[1])}, {vr(vt[2])}")
    A(f"v_max_f32 {vr(vt[1])}, {vr(vt[1])}, {vr(vt[2])}")
    A(f"v_mov_b32 {vr(vt[2])}, {vr(vt[1])}")
    A(f"v_permlane16_swap_b32 {vr(vt[1])}, {vr(vt[2])}")
    A(f"v_max_f32 {vr(vt[1])}, {vr(vt[1])}, {vr(vt[2])}")
    A(f"ds_write_b32 {vr(vt[5])}, {vr(vt[1])} offset:{WM}")
    A("s_waitcnt lgkmcnt(0)")
    bar()
    A(f"ds_read_b128 {vr(vQf,4)}, {vr(vt[4])} offset:{WM}")
    A(f"ds_read_b128 {vr(vQf+4,4)}, {vr(vt[4])} offset:{WM+16}")
    A(f"s_mov_b32 {sr(st1)}, {hex(f2u(1.4426950408889634))}")
    A(f"v_lshrrev_b32 {vr(vt[0])}, 1, {vr(vG)}")
    A(f"v_and_b32 {vr(vt[3])}, 1, {vr(vG)}")
    A(f"v_lshl_add_u32 {vr(vt[3])}, {vr(vN)}, 1, {vr(vt[3])}")
    A(f"v_lshl_add_u32 {vr(vt[3])}, {vr(vt[0])}, 5, {vr(vt[3])}")
    A(f"s_lshl_b32 {sr(st0)}, {sr(sW)}, 10")
    A(f"v_lshl_add_u32 {vr(vt[3])}, {vr(vt[3])}, 4, {sr(st0)}")
    A("s_waitcnt lgkmcnt(0)")
    A(f"v_max3_f32 {vr(vt[1])}, {vr(vQf)}, {vr(vQf+1)}, {vr(vQf+2)}")
    A(f"v_max3_f32 {vr(vt[2])}, {vr(vQf+3)}, {vr(vQf+4)}, {vr(vQf+5)}")
    A(f"v_max3_f32 {vr(vt[1])}, {vr(vQf+6)}, {vr(vQf+7)}, {vr(vt[1])}")
    A(f"v_max_f32 {vr(vt[1])}, {vr(vt[1])}, {vr(vt[2])}")
    for r in range(4): A(f"v_sub_f32 {vr(vP+r)}, {vr(vP+r)}, {vr(vt[1])}")
    for r in range(4): A(f"v_mul_f32 {vr(vP+r)}, {sr(st1)}, {vr(vP+r)}")
    for r in range(4): A(f"v_exp_f32 {vr(vP+r)}, {vr(vP+r)}")
    A(f"v_add_f32 {vr(vt[1])}, {vr(vP)}, {vr(vP+1)}")
    A(f"v_add_f32 {vr(vt[2])}, {vr(vP+2)}, {vr(vP+3)}")
    A(f"v_add_f32 {vr(vt[1])}, {vr(vt[1])}, {vr(vt[2])}")
    A(f"v_mov_b32 {vr(vt[2])}, {vr(vt[1])}")
    A(f"v_permlane32_swap_b32 {vr(vt[1])}, {vr(vt[2])}")
    A(f"v_add_f32 {vr(vt[1])}, {vr(vt[1])}, {vr(vt[2])}")
    A(f"v_mov_b32 {vr(vt[2])}, {vr(vt[1])}")
    A(f"v_permlane16_swap_b32 {vr(vt[1])}, {vr(vt[2])}")
    A(f"v_add_f32 {vr(vt[1])}, {vr(vt[1])}, {vr(vt[2])}")
    A(f"ds_write_b32 {vr(vt[5])}, {vr(vt[1])} offset:{WL}")
    for r in range(4): A(f"v_cvt_pk_bf16_f32 {vr(vP+r)}, {vr(vP+r)}, {vr(vP+r)}")
    for r in range(4): afrag(vKf+4*r, vP+r)
    for r in range(4):
        rem = NE + (3 - r) if r >= nV_pre + nV_mid else NE + nV_post
        if r == 0 or r >= nV_pre + nV_mid: A(f"s_waitcnt vmcnt({rem})")
        mfma(vD, vKf+4*r, vVv+4*r, r == 0)
    stamp("v_landed")
    A(f"s_lshl_b32 {sr(st1)}, {sr(sW)}, 8")
    A(f"v_lshl_add_u32 {vr(vt[1])}, {vr(vN)}, 4, {sr(st1)}")
    A(f"s_mul_i32 {sr(st0)}, {sr(sLI)}, 1152")
    A(f"s_add_u32 {sr(st0)}, {sr(st0)}, {OOFF}")
    A(f"v_add_u32 {vr(vt[2])}, {sr(st0)}, {vr(vt[1])}")
    A(f"v_lshl_add_u32 {vr(vt[1])}, {vr(vG)}, 10, {vr(vt[1])}")
    A(f"ds_write_b128 {vr(vt[3])}, {vr(vD,4)} offset:{OW}")
    A("s_waitcnt lgkmcnt(0)")
    bar()
    A(f"s_cmp_lt_u32 {sr(sW)}, 4")
    A("s_cbranch_scc0 L_attdone")
    A(f"ds_read_b128 {vr(vP,4)}, {vr(vt[1])} offset:{OW}")
    A(f"ds_read_b128 {vr(vKf,4)}, {vr(vt[1])} offset:{OW+4096}")
    A("s_waitcnt lgkmcnt(0)")
    A(f"v_pk_add_f32 {vr(vP,2)}, {vr(vP,2)}, {vr(vKf,2)}")
    A(f"v_pk_add_f32 {vr(vP+2,2)}, {vr(vP+2,2)}, {vr(vKf+2,2)}")
    halve4(vP, vD); regather(vD)
    tag_insert(vD)
    A("s_mov_b64 exec, 0xffff")
    A(f"global_store_dwordx4 {vr(vt[2])}, {vr(vD,4)}, {sr(pWS,2)} sc1")
    full_exec()
    A("s_branch L_attdone")
    A("L_w8att:")
    A(f"v_and_b32 {vr(vt[0])}, 1, v0")
    A(f"v_lshlrev_b32 {vr(vt[4])}, 5, {vr(vt[0])}")
    A(f"s_mul_i32 {sr(st0)}, {sr(sLI)}, 1152")
    A(f"s_add_u32 {sr(st0)}, {sr(st0)}, {OOFF}")
    A(f"v_lshl_add_u32 {vr(vt[8])}, {vr(vt[0])}, 4, {sr(st0)}")
    bar()
    A(f"ds_read_b128 {vr(vQf,4)}, {vr(vt[4])} offset:{WM}")
    A(f"ds_read_b128 {vr(vQf+4,4)}, {vr(vt[4])} offset:{WM+16}")
    A("s_waitcnt lgkmcnt(0)")
    A(f"v_max3_f32 {vr(vt[1])}, {vr(vQf)}, {vr(vQf+1)}, {vr(vQf+2)}")
    A(f"v_max3_f32 {vr(vt[2])}, {vr(vQf+3)}, {vr(vQf+4)}, {vr(vQf+5)}")
    A(f"v_max3_f32 {vr(vt[1])}, {vr(vQf+6)}, {vr(vQf+7)}, {vr(vt[1])}")
    A(f"v_max_f32 {vr(vP)}, {vr(vt[1])}, {vr(vt[2])}")
    A(f"v_mov_b32 {vr(vP+2)}, 0")
    A(f"v_mov_b32 {vr(vP+3)}, {vr(vT)}")
    restamp("v_landed")
    bar()
    A(f"ds_read_b128 {vr(vQf,4)}, {vr(vt[4])} offset:{WL}")
    A(f"ds_read_b128 {vr(vQf+4,4)}, {vr(vt[4])} offset:{WL+16}")
    A("s_waitcnt lgkmcnt(0)")
    A(f"v_pk_add_f32 {vr(vQf,2)}, {vr(vQf,2)}, {vr(vQf+2,2)}")
    A(f"v_pk_add_f32 {vr(vQf+4,2)}, {vr(vQf+4,2)}, {vr(vQf+6,2)}")
    A(f"v_pk_add_f32 {vr(vQf,2)}, {vr(vQf,2)}, {vr(vQf+4,2)}")
    A(f"v_add_f32 {vr(vP+1)}, {vr(vQf)}, {vr(vQf+1)}")
    A("s_mov_b64 exec, 3")
    A(f"global_store_dwordx4 {vr(vt[8])}, {vr(vP,4)}, {sr(pWS,2)} offset:1024 sc1")
    full_exec()
    A("L_attdone:")
    bar()
    stamp("o_pub")
    A(f"s_cmp_eq_u32 {sr(sRole)}, 0")
    A("s_cbranch_scc1 L_roleF")
    A(f"s_cmp_eq_u32 {sr(sRole)}, 2")
    A("s_cbranch_scc1 L_fin")
    A(f"s_cmp_eq_u32 {sr(sW)}, 8")
    A("s_cbranch_scc1 L_W8")
    for i in range(wo_pre, 8):
        A(f"global_load_dwordx4 {vr(vBig+4*i,4)}, {vr(vt[6])}, {sr(pWO,2)} {nt}")
        if i < 7: A(f"v_add_u32 {vr(vt[6])}, {8*1152}, {vr(vt[6])}")
    A(f"s_lshr_b32 {sr(st0)}, {sr(sW)}, 2")
    A(f"s_lshl_b32 {sr(st0)}, {sr(st0)}, 4")
    A(f"s_lshl_b32 {sr(st1)}, {sr(sX)}, 5")
    A(f"s_add_u32 {sr(st0)}, {sr(st0)}, {sr(st1)}")
    A(f"s_mul_i32 {sr(st0)}, {sr(st0)}, 1152")
    A(f"s_add_u32 {sr(st0)}, {sr(st0)}, {OOFF}")
    A(f"s_and_b32 {sr(st1)}, {sr(sW)}, 3")
    A(f"s_lshl_b32 {sr(st2)}, {sr(st1)}, 8")
    A(f"s_add_u32 {sr(st2)}, {sr(st2)}, {sr(st0)}")
    A(f"s_lshr_b32 {sr(st1)}, {sr(st1)}, 1")
    A(f"s_lshl_b32 {sr(st1)}, {sr(st1)}, 4")
    A(f"s_add_u32 {sr(st1)}, {sr(st1)}, {sr(st0)}")
    A(f"s_movk_i32 {sr(st3)}, 1152")
    A(f"v_lshl_add_u32 {vr(vt[0])}, {vr(vN)}, 4, {sr(st2)}")
    A(f"v_mad_u32_u24 {vr(vt[0])}, {vr(vG)}, {sr(st3)}, {vr(vt[0])}")
    for u in range(1, 4): A(f"v_add_u32 {vr(vt[u])}, {u*4*1152}, {vr(vt[0])}")
    A(f"v_xor_b32 {vr(vt[4])}, {vr(vN)}, {vr(vG)}")
    A(f"v_mov_b32 {vr(vt[5])}, {sr(st1)}")
    A(f"v_mad_u32_u24 {vr(vt[4])}, {vr(vt[4])}, {sr(st3)}, {vr(vt[5])}")
    A(f"s_mov_b32 {sr(st1)}, {hex(f2u(1.4426950408889634))}")
    A("s_waitcnt vmcnt(0)")
    stamp("ph2_landed")
    A("L_wspin:")
    A(f"global_load_dwordx4 {vr(vML,4)}, {vr(vt[4])}, {sr(pWS,2)} offset:1024 sc1")
    for u in range(4): A(f"global_load_dwordx4 {vr(vGa+4*u,4)}, {vr(vt[u])}, {sr(pWS,2)} sc1")
    A("s_waitcnt vmcnt(4)")
    A(f"v_cmp_ne_u32 {sr(sp0,2)}, {vr(vML+3)}, {vr(vT)}")
    A(f"v_mov_b32 {vr(vt[5])}, {vr(vML)}")
    for sh in (8, 4, 2, 1):
        A(f"v_max_f32_dpp {vr(vt[5])}, {vr(vt[5])}, {vr(vt[5])} row_ror:{sh} row_mask:0xf bank_mask:0xf")
    A(f"v_sub_f32 {vr(vt[5])}, {vr(vML)}, {vr(vt[5])}")
    A(f"v_mul_f32 {vr(vt[5])}, {sr(st1)}, {vr(vt[5])}")
    A(f"v_exp_f32 {vr(vt[5])}, {vr(vt[5])}")
    A(f"v_mul_f32 {vr(vt[6])}, {vr(vt[5])}, {vr(vML+1)}")
    for sh in (8, 4, 2, 1):
        A(f"v_add_f32_dpp {vr(vt[6])}, {vr(vt[6])}, {vr(vt[6])} row_ror:{sh} row_mask:0xf bank_mask:0xf")
    A(f"v_rcp_f32 {vr(vt[6])}, {vr(vt[6])}")
    A(f"v_mul_f32 {vr(vt[5])}, {vr(vt[5])}, {vr(vt[6])}")
    for u in range(4):
        A(f"s_waitcnt vmcnt({3-u})")
        tag_check(vGa+4*u, False)
        for k in range(4):
            op = "v_mul_f32_dpp" if u == 0 else "v_fmac_f32_dpp"
            A(f"{op} {vr(vP+k)}, {vr(vt[5])}, {vr(vGa+4*u+k)} row_newbcast:{4*u} row_mask:0xf bank_mask:0xf")
    spin_tail("L_wspin")
    stamp("gath")
    halve4(vP, vt[0])
    A(f"v_cvt_pk_bf16_f32 {vr(vt[0])}, {vr(vt[0])}, {vr(vt[0])}")
    for i in range(8):
        bcast_pair(vt[1+i%2], vt[0], i)
        afrag(vA+4*(i%2), vt[1+i%2])
        mfma(vD, vA+4*(i%2), vBig+4*i, i == 0)
    tile_write()
    A("s_waitcnt lgkmcnt(0)")
    bar()
    A("s_branch L_fin")
    A("L_W8:")
    A(f"s_lshl_b32 {sr(st0)}, {sr(sC)}, 3")
    A(f"s_add_u32 {sr(st0)}, {sr(st0)}, {sr(sX)}")
    A(f"s_lshl_b32 {sr(st0)}, {sr(st0)}, 8")
    A(f"s_add_u32 {sr(st0)}, {sr(st0)}, {HOFF}")
    A(f"v_add_u32 {vr(vt[1])}, {sr(st0)}, {vr(vL16)}")
    bar()
    part_sum(4, vKf, vP)
    halve4(vP, vD); regather(vD)
    tag_insert(vD)
    A("s_mov_b64 exec, 0xffff")
    A(f"global_store_dwordx4 {vr(vt[1])}, {vr(vD,4)}, {sr(pWS,2)} sc1")
    full_exec()
    restamp("gath")
    A("s_branch L_fin")
    A("L_roleF:")
    for i in range(8):
        A(f"global_load_dwordx4 {vr(vBig+4*i,4)}, {vr(vAd,2)}, off {nt}")
        if i < 7: A(f"v_lshl_add_u64 {vr(vAd,2)}, {sr(sStr,2)}, 0, {vr(vAd,2)}")
    A(f"s_lshl_b32 {sr(st0)}, {sr(sW)}, 11")
    A(f"s_add_u32 {sr(st0)}, {sr(st0)}, {HOFF}")
    A(f"v_lshl_add_u32 {vr(vt[0])}, {vr(vL)}, 4, {sr(st0)}        ; H[w][g (+4)][n]")
    A(f"v_lshlrev_b32 {vr(vt[7])}, 1, {vr(vt[7])}")
    A(f"v_lshrrev_b32 {vr(vt[6])}, 5, v0")
    A(f"v_lshlrev_b32 {vr(vt[6])}, 2, {vr(vt[6])}")
    A(f"v_lshlrev_b32 {vr(vt[5])}, 3, {vr(vN)}")
    A("s_waitcnt vmcnt(0)")
    restamp("ph2_landed")
    A(f"v_lshlrev_b32 {vr(vXh)}, 16, {vr(vXh)}")
    A("L_fspin:")
    A(f"global_load_dwordx4 {vr(vGa,4)}, {vr(vt[0])}, {sr(pWS,2)} sc1")
    A(f"global_load_dwordx4 {vr(vGa+4,4)}, {vr(vt[0])}, {sr(pWS,2)} offset:1024 sc1")
    A("s_waitcnt vmcnt(1)")
    tag_check(vGa, True)
    A("s_waitcnt vmcnt(0)")
    tag_check(vGa+4, False)
    for k in range(4): A(f"v_add_f32 {vr(vP+k)}, {vr(vGa+k)}, {vr(vGa+4+k)}")
    spin_tail("L_fspin")
    restamp("gath")
    halve4(vP, vt[1])
    bf16r(vt[1], vt[1])
    A(f"v_add_f32 {vr(vt[1])}, {vr(vt[1])}, {vr(vXh)}")
    bf16r(vt[1], vt[1])
    A(f"ds_write_b32 {vr(vt[7])}, {vr(vt[1])} offset:{HV}")
    A(f"v_mov_b32 {vr(vt[2])}, {vr(vt[1])}")
    A(f"v_mul_f32 {vr(vt[3])}, {vr(vt[1])}, {vr(vt[1])}")
    wave_sum2(vt[2], vt[3], vt[4])
    A(f"ds_write_b32 {vr(vt[6])}, {vr(vt[2])} offset:{STAT}")
    A("s_waitcnt lgkmcnt(0)")
    bar()
    A(f"ds_read_b64 {vr(vP,2)}, {vr(vt[5])} offset:{STAT}")
    A(f"s_mov_b32 {sr(st0)}, {hex(f2u(1.0/576))}")
    A(f"v_mov_b32 {vr(vt[4])}, {hex(f2u(1e-5))}")
    A("s_waitcnt lgkmcnt(0)")
    for sh in (8, 4, 2, 1):
        A(f"v_add_f32_dpp {vr(vP)}, {vr(vP)}, {vr(vP)} row_ror:{sh} row_mask:0xf bank_mask:0xf")
        A(f"v_add_f32_dpp {vr(vP+1)}, {vr(vP+1)}, {vr(vP+1)} row_ror:{sh} row_mask:0xf bank_mask:0xf")
    A(f"v_mul_f32 {vr(vP)}, {sr(st0)}, {vr(vP)}                   ; mean")
    A(f"v_mul_f32 {vr(vP+1)}, {sr(st0)}, {vr(vP+1)}")
    A(f"v_fma_f32 {vr(vP+1)}, -{vr(vP)}, {vr(vP)}, {vr(vP+1)}")
    A(f"v_max_f32 {vr(vP+1)}, 0, {vr(vP+1)}")
    A(f"v_add_f32 {vr(vP+1)}, {vr(vP+1)}, {vr(vt[4])}")
    A(f"v_rsq_f32 {vr(vP+1)}, {vr(vP+1)}")
    A(f"v_sub_f32 {vr(vt[1])}, {vr(vt[1])}, {vr(vP)}")
    A(f"v_mul_f32 {vr(vt[1])}, {vr(vt[1])}, {vr(vP+1)}")
    A(f"v_cvt_pk_bf16_f32 {vr(vt[0])}, {vr(vt[1])}, {vr(vt[1])}")
    for i in range(8):
        bcast_pair(vt[1+i%2], vt[0], i)
        afrag(vA+4*(i%2), vt[1+i%2])
        mfma(vD, vA+4*(i%2), vBig+4*i, i == 0)
    c0 = -2.0 * 0.7978845608028654 * 1.4426950408889634
    A(f"s_mov_b32 {sr(st0)}, {hex(f2u(c0*0.044715))}")
    A(f"v_mov_b32 {vr(vt[4])}, {hex(f2u(c0))}")
    A(f"s_mul_i32 {sr(st1)}, {sr(sW)}, {2*144*128}")
    A(f"s_lshl_b32 {sr(st2)}, {sr(sF)}, 7")
    A(f"s_add_u32 {sr(st1)}, {sr(st1)}, {sr(st2)}")
    A(f"s_add_u32 {sr(st1)}, {sr(st1)}, {YOFF}")
    A(f"s_movk_i32 {sr(st2)}, {144*128}")
    A(f"v_and_b32 {vr(vt[5])}, 0x7f, {vr(vAcc)}")
    A(f"v_add_u32 {vr(vt[5])}, {sr(st1)}, {vr(vt[5])}")
    A(f"v_lshrrev_b32 {vr(vt[6])}, 2, {vr(vC8)}")
    A(f"v_mad_u32_u24 {vr(vt[5])}, {vr(vt[6])}, {sr(st2)}, {vr(vt[5])}")
    tile_write()
    A("s_waitcnt lgkmcnt(0)")
    bar()
    part_sum(5, vKf, vP)
    halve4(vP, vP)
    A(f"v_mul_f32 {vr(vt[1])}, {vr(vP)}, {vr(vP)}")
    A(f"v_fma_f32 {vr(vt[1])}, {vr(vt[1])}, {sr(st0)}, {vr(vt[4])}")
    A(f"v_mul_f32 {vr(vt[1])}, {vr(vt[1])}, {vr(vP)}")
    A(f"v_exp_f32 {vr(vt[1])}, {vr(vt[1])}")
    A(f"v_mul_f32_dpp {vr(vt[2])}, {vr(vP)}, {vr(vP)} row_ror:8 row_mask:0xf bank_mask:0xf   ; g*u")
    A(f"v_add_f32 {vr(vt[1])}, 1.0, {vr(vt[1])}")
    A(f"v_rcp_f32 {vr(vt[1])}, {vr(vt[1])}")
    A(f"v_mul_f32 {vr(vt[1])}, {vr(vt[1])}, {vr(vt[2])}")
    A(f"v_cvt_pk_bf16_f32 {vr(vt[0])}, {vr(vt[1])}, {vr(vt[1])}")
    for i in range(4):
        bcast_pair(vt[1+i%2], vt[0], i)
        afrag(vA+4*(i%2), vt[1+i%2])
        mfma(vD, vA+4*(i%2), vDn+4*i, i == 0)
    for r in range(4): A(f"v_permlane32_swap_b32 {vr(vD+r)}, {vr(vP+r)}")
    for r in range(4): A(f"v_add_f32_dpp {vr(vD+r)}, {vr(vP+r)}, {vr(vD+r)} row_ror:8 row_mask:0xf bank_mask:0xf")
    tag_insert(vD)
    A("s_mov_b64 exec, 0x00ff00ff")
    A(f"global_store_dwordx4 {vr(vt[5])}, {vr(vD,4)}, {sr(pWS,2)} sc1")
    full_exec()
    stamp("y_pub")
    A(f"s_and_b32 {sr(st0)}, {sr(sF)}, 7")
    A(f"s_cmp_eq_u32 {sr(st0)}, 0")
    A("s_cbranch_scc0 L_fin")
    A(f"s_lshr_b32 {sr(sC)}, {sr(sF)}, 3")
    A(f"s_mul_i32 {sr(st0)}, {sr(sC)}, {144*128}")
    A(f"s_lshl_b32 {sr(st1)}, {sr(sW)}, 11")
    A(f"s_add_u32 {sr(st0)}, {sr(st0)}, {sr(st1)}")
    A(f"s_add_u32 {sr(st0)}, {sr(st0)}, {YOFF}")
    A(f"v_lshl_add_u32 {vr(vt[0])}, {vr(vL)}, 4, {sr(st0)}")
    A(f"s_lshl_b32 {sr(st1)}, {sr(sW)}, 8")
    A(f"v_lshl_add_u32 {vr(vt[1])}, {vr(vN)}, 4, {sr(st1)}")
    A(f"v_lshl_add_u32 {vr(vt[1])}, {vr(vG)}, 2, {vr(vt[1])}")
    A(f"v_lshlrev_b32 {vr(vt[2])}, 3, {vr(vL)}")
    A(f"v_lshrrev_b32 {vr(vt[3])}, 5, {vr(vL)}")
    A(f"v_lshl_add_u32 {vr(vt[3])}, {vr(vN)}, 1, {vr(vt[3])}")
    A(f"s_lshl_b32 {sr(st1)}, {sr(sC)}, 7")
    A(f"v_lshl_add_u32 {vr(vt[3])}, {vr(vt[3])}, 2, {sr(st1)}")
    A(f"ds_read_b32 {vr(vXh)}, {vr(vt[3])} offset:{HV}")
    A(f"v_lshrrev_b32 {vr(vt[3])}, 1, {vr(vt[3])}")
    A("s_waitcnt vmcnt(0)")
    A("L_rspin:")
    A(f"global_load_dwordx4 {vr(vGa,4)}, {vr(vt[0])}, {sr(pWS,2)} sc1")
    A(f"global_load_dwordx4 {vr(vGa+4,4)}, {vr(vt[0])}, {sr(pWS,2)} offset:1024 sc1")
    A("s_waitcnt vmcnt(1)")
    tag_check(vGa, True)
    A("s_waitcnt vmcnt(0)")
    tag_check(vGa+4, False)
    for k in range(4): A(f"v_add_f32 {vr(vP+k)}, {vr(vGa+k)}, {vr(vGa+4+k)}")
    spin_tail("L_rspin")
    stamp("y_gath")
    halve4(vP, vt[4])
    A(f"ds_write_b32 {vr(vt[1])}, {vr(vt[4])} offset:{YP+256}")
    A("s_waitcnt lgkmcnt(0)")
    bar()
    A(f"s_cmp_eq_u32 {sr(sW)}, 0")
    A("s_cbranch_scc0 L_fin")
    for u in range(5): A(f"ds_read_b64 {vr(vQf+2*u,2)}, {vr(vt[2])} offset:{YP+512*u}")
    for u in range(1, 5):
        A(f"s_waitcnt lgkmcnt({4-u})")
        A(f"v_pk_add_f32 {vr(vQf,2)}, {vr(vQf,2)}, {vr(vQf+2*u,2)}")
    A(f"v_permlane32_swap_b32 {vr(vQf)}, {vr(vQf+1)}")
    A(f"v_add_f32 {vr(vQf)}, {vr(vQf)}, {vr(vQf+1)}")
    A(f"v_permlane16_swap_b32 {vr(vQf)}, {vr(vQf+1)}")
    A(f"v_add_f32 {vr(vQf)}, {vr(vQf)}, {vr(vQf+1)}")
    bf16r(vQf, vQf)
    A(f"v_add_f32 {vr(vQf)}, {vr(vQf)}, {vr(vXh)}")
    A(f"v_cvt_pk_bf16_f32 {vr(vt[4])}, {vr(vQf)}, {vr(vQf)}")
    A("s_mov_b32 exec_lo, 0xffff"); A("s_mov_b32 exec_hi, 0xffff")
    A(f"global_store_short {vr(vt[3])}, {vr(vt[4])}, {sr(pOUT,2)}")
    A(f"s_cmp_eq_u32 {sr(sC)}, 0")
    A("s_cbranch_scc0 L_fin0")
    A("s_mov_b64 exec, 1")
    A(f"v_mov_b32 {vr(vt[0])}, 0")
    A(f"global_store_dword {vr(vt[0])}, {vr(vT)}, {sr(pWS,2)}")
    if amp or dbg: stamp("end")
    if dbg:
        A("s_waitcnt lgkmcnt(0)")
        for j, (nm, r) in enumerate(stamps):
            A(f"s_sub_u32 {sr(st0)}, {sr(r)}, {sr(stamps[0][1])}")
            A(f"v_mov_b32 {vr(vt[1])}, {sr(st0)}")
            A(f"global_store_dword {vr(vt[0])}, {vr(vt[1])}, s[28:29] offset:{4*j}")
    if amp:
        A(f"s_memrealtime {sr(sp1,2)}")
        A("s_waitcnt lgkmcnt(0)")
        d = dict(stamps)
        A(f"s_sub_u32 {sr(st0)}, {sr(d[amp[0]])}, {sr(d['start'])}")
        A(f"s_mul_i32 {sr(st0)}, {sr(st0)}, {amp[1]}")
        A(f"s_min_u32 {sr(st0)}, {sr(st0)}, 100000")
        A(f"s_mov_b32 {sr(st1)}, {sr(sp1)}")
        A("L_amp:")
        A(f"s_memrealtime {sr(sp1,2)}")
        A("s_waitcnt lgkmcnt(0)")
        A(f"s_sub_u32 {sr(st2)}, {sr(sp1)}, {sr(st1)}")
        A(f"s_cmp_lt_u32 {sr(st2)}, {sr(st0)}")
        A("s_cbranch_scc1 L_amp")
    A("L_fin0:")
    full_exec()
    A("L_fin:")
    if diag:
        stamp("end")
        A("s_waitcnt lgkmcnt(0)")
        A(f"s_mul_i32 {sr(st0)}, s2, 9")
        A(f"s_add_u32 {sr(st0)}, {sr(st0)}, {sr(sW)}")
        A(f"s_lshl_b32 {sr(st0)}, {sr(st0)}, 6")
        A(f"s_add_u32 {sr(st0)}, {sr(st0)}, {DIAGOFF}")
        A(f"v_mov_b32 {vr(vt[0])}, {sr(st0)}")
        A("s_mov_b64 exec, 1")
        for j, (nm, r) in enumerate(stamps + [("cnt", sCnt), ("role", sRole)]):
            A(f"v_mov_b32 {vr(vt[1])}, {sr(r)}")
            A(f"global_store_dword {vr(vt[0])}, {vr(vt[1])}, {sr(pWS,2)} offset:{4*j}")
    A("L_end:")
    A("s_endpgm")
    A("L_code_end:")
    body = A.text()
    nv = V.hi
    out = HEADER
    out += "; @launch grid=(256,1,1) block=(576,1,1) lds=98304\n"
    out += '.amdgcn_target "amdgcn-amd-amdhsa--gfx950"\n.text\n'
    out += f".globl {NAME}_kernel\n.p2align 8\n.type {NAME}_kernel,@function\n{NAME}_kernel:\n"
    out += body
    out += '.section .rodata,"a"\n.p2align 6\n'
    out += f".amdhsa_kernel {NAME}_kernel\n"
    out += f"  .amdhsa_next_free_vgpr {nv}\n  .amdhsa_next_free_sgpr {S.hi}\n  .amdhsa_accum_offset {(nv+3)//4*4}\n"
    out += "  .amdhsa_group_segment_fixed_size 0\n  .amdhsa_kernarg_size 96\n  .amdhsa_user_sgpr_count 2\n"
    out += "  .amdhsa_user_sgpr_kernarg_segment_ptr 1\n  .amdhsa_system_sgpr_workgroup_id_x 1\n"
    out += "  .amdhsa_float_denorm_mode_32 3\n"
    out += ".end_amdhsa_kernel\n"
    names = [n for n, _ in stamps] + ["cnt", "role"]
    return out, names

if __name__ == "__main__":
    kw = {}
    for a in sys.argv[2:]:
        k, v = a.split("="); kw[k] = eval(v)
    txt, names = gen(**kw)
    open(sys.argv[1], "w").write(txt)
    print("written", sys.argv[1], names)
```

```python
import re
TRANS = ("v_exp_f32", "v_log_f32", "v_rcp_f32", "v_rsq_f32", "v_sqrt_f32", "v_sin_f32", "v_cos_f32")

def regs_of(tok):
    tok = tok.strip()
    tok = tok.lstrip("-")
    m = re.fullmatch(r"abs\((.*)\)", tok)
    if m: tok = m.group(1)
    m = re.fullmatch(r"\|(.*)\|", tok)
    if m: tok = m.group(1)
    m = re.fullmatch(r"([vsa])(\d+)", tok)
    if m: return {(m.group(1), int(m.group(2)))}
    m = re.fullmatch(r"([vsa])\[(\d+):(\d+)\]", tok)
    if m: return {(m.group(1), i) for i in range(int(m.group(2)), int(m.group(3)) + 1)}
    if tok == "vcc": return {("s", "vcc")}
    if tok in ("vcc_lo", "vcc_hi"): return {("s", "vcc")}
    if tok in ("exec", "exec_lo", "exec_hi"): return {("s", "exec")}
    if tok == "m0": return {("s", "m0")}
    return set()

class Ins:
    def __init__(self, text):
        self.text = text
        t = text.split(";")[0].strip()
        self.op = t.split()[0] if t else ""
        rest = t[len(self.op):].strip()
        ops = []
        for part in rest.split(","):
            part = part.strip()
            if part: ops.append(part.split()[0])
        self.ops = ops
        op = self.op
        self.is_valu = op.startswith("v_") and not op.startswith(("v_mfma", "v_smfmac"))
        self.is_mfma = op.startswith(("v_mfma", "v_smfmac"))
        self.is_dot = op.startswith("v_dot")
        self.is_vmem = op.startswith(("global_", "buffer_"))
        self.is_ds = op.startswith("ds_")
        self.is_salu = op.startswith("s_")
        self.dpp = "_dpp" in op
        self.perml = op.startswith("v_permlane")
        self.trans = op.startswith(TRANS)
        self.rdlane = op.startswith(("v_readlane", "v_readfirstlane"))
        R = [regs_of(o) for o in ops]
        w, r = set(), set()
        if self.is_valu or self.is_mfma:
            if R: w |= R[0]
            srcs = R[1:]
            if op.startswith(("v_add_co", "v_addc_co", "v_sub_co")):
                w |= R[1]; srcs = R[2:]
            for x in srcs: r |= x
            if op.startswith(("v_fmac", "v_dot2c")) or self.dpp or op.startswith("v_writelane"): r |= R[0]
            if self.perml: w |= R[1]; r |= R[0]
            if op.startswith("v_cndmask") and len(ops) == 3: r |= {("s", "vcc")}
        elif self.is_vmem:
            if "_load_lds" in op or " lds" in t:
                for x in R: r |= x
                r |= {("s", "m0")}
            elif "load" in op or ("atomic" in op and " sc0" in t):
                w |= R[0]
                for x in R[1:]: r |= x
            else:
                for x in R: r |= x
        elif self.is_ds:
            if op.startswith(("ds_read", "ds_bpermute", "ds_swizzle")) or "_rtn" in op:
                w |= R[0]
                for x in R[1:]: r |= x
            else:
                for x in R: r |= x
        elif self.is_salu:
            if op.startswith(("s_cmp", "s_bitcmp", "s_cbranch", "s_branch", "s_waitcnt", "s_nop", "s_barrier", "s_endpgm", "s_sleep", "s_setprio")):
                for x in R: r |= x
            else:
                if R: w |= R[0]
                for x in R[1:]: r |= x
        self.w, self.r = w, r
        self.srcC = R[3] if self.is_mfma and len(R) > 3 else set()
        self.srcAB = (R[1] | R[2]) if self.is_mfma else set()
        if op.startswith("v_smfmac"):
            self.srcAB = R[1] | R[2] | R[3]; self.srcC = R[0]; self.r |= R[0]
        self.dotC = R[3] if (self.is_dot and len(R) > 3) else (R[0] if self.is_dot else set())
        self.wide_store = self.is_vmem and "store" in op and ("x4" in op or "x3" in op)
        if self.wide_store:
            self.sdata = R[1] if op.startswith("global_") else R[0]
        self.states = 1
        if op == "s_nop": self.states = int(ops[0]) + 1

def need(p, c):
    n = 0
    pv = {x for x in p.w if x[0] in "va"}
    ps = {x for x in p.w if x[0] == "s"}
    if p.is_valu:
        if c.dpp and (pv & c.r): n = max(n, 2)
        if c.perml and (pv & c.r): n = max(n, 2)
        if c.is_mfma and (pv & c.r): n = max(n, 2)
        if c.rdlane and (pv & c.r): n = max(n, 1)
        if p.trans and c.is_valu and not c.trans and (pv & c.r): n = max(n, 1)
        if p.trans and c.trans and (pv & c.r): n = max(n, 1)
        if ps:
            if c.is_valu and (ps & c.r): n = max(n, 4 if c.rdlane else 2)
            if c.is_vmem and (ps & c.r): n = max(n, 5)
            if c.is_salu and (ps & c.r): n = max(n, 1)
    if p.is_dot and (c.is_valu or c.is_mfma or c.is_ds or c.is_vmem) and (pv & (c.r | c.w)):
        if not (c.op == p.op and pv == c.dotC and not (pv & (c.r - c.dotC))): n = max(n, 3)
    if p.is_mfma:
        if c.is_mfma:
            if pv & c.srcAB: n = max(n, 8)
            if (pv & c.srcC) and pv != c.srcC: n = max(n, 6)
            if (pv & c.w) and not (pv == c.srcC): n = max(n, 8)
        elif (c.is_valu and (pv & (c.r | c.w))) or ((c.is_vmem or c.is_ds) and (pv & (c.r | c.w))):
            n = max(n, 8)
        if c.is_valu and (p.srcC & c.w): n = max(n, 3)
    if p.wide_store and (p.sdata & c.w): n = max(n, 2)
    if p.is_salu and ("s", "m0") in p.w and ("s", "m0") in c.r and c.is_vmem: n = max(n, 1)
    return n

class Asm:
    def __init__(self):
        self.lines = []
        self.hist = []
        self.nops = 0
    def raw(self, s): self.lines.append(s)
    def label(self, s):
        self.lines.append(f"{s}:")
    def __call__(self, text):
        for t in text.strip().split("\n"):
            t = t.strip()
            if not t: continue
            if t.startswith(";"):
                self.lines.append("    " + t); continue
            if t.endswith(":"):
                self.lines.append(t); continue
            c = Ins(t)
            dist = 0; pad = 0
            for p in reversed(self.hist):
                nd = need(p, c)
                if nd > dist: pad = max(pad, nd - dist)
                dist += p.states
                if dist >= 12: break
            if pad:
                nop = Ins(f"s_nop {pad-1}")
                self.lines.append(f"    s_nop {pad-1}")
                self.hist.append(nop); self.nops += 1
            self.lines.append("    " + t)
            self.hist.append(c)
            if c.op in ("s_branch", "s_endpgm"): self.hist = []
    def text(self): return "\n".join(self.lines) + "\n"

class Regs:
    def __init__(self, kind, start, limit):
        self.kind, self.next, self.limit = kind, start, limit
        self.hi = start
    def alloc(self, n=1, align=1):
        a = (self.next + align - 1) // align * align
        self.next = a + n
        assert self.next <= self.limit, f"out of {self.kind} regs"
        self.hi = max(self.hi, self.next)
        return a
def vr(a, n=1): return f"v{a}" if n == 1 else f"v[{a}:{a+n-1}]"
def sr(a, n=1): return f"s{a}" if n == 1 else f"s[{a}:{a+n-1}]"
```

```python
import sys, struct
from asmlib import *

NAME = "sequential_preLN__sliding_block_cached__glu_gated_geglu__decode"
HEADER = open("cdna_kernels/%s.s.ref" % NAME).read().split("; Override launch")[0]
def f2u(x): return struct.unpack("<I", struct.pack("<f", x))[0]
LOG2E = 1.4426950408889634

QOFF, OOFF, HOFF, YOFF, DIAGOFF = 0x1000, 0x30000, 0x80000, 0x90000, 0x100000
PART, QB, MM, LL, ST, HD, OW, HT, ONES = 0x0, 0xA00, 0xC00, 0xC20, 0xC40, 0xD00, 0x1000, 0x2000, 0x2C00
PT, XE, XO, ZERO = 0x3000, 0x4000, 0x4280, 0x4600
KL, WB = 0x5000, 0xE000
DB = KL
LDS_BYTES = 0x20000

class VM:
    def __init__(self, A, ops=None): self.A = A; self.ops = list(ops or [])
    def issue(self, name, text): self.A(text); self.ops.append(name)
    def note(self, name): self.ops.append(name)
    def cnt(self, name): return len(self.ops) - 1 - max(i for i, n in enumerate(self.ops) if n == name)
    def wait(self, name): self.A(f"s_waitcnt vmcnt({self.cnt(name)})")
    def copy(self): return VM(self.A, self.ops)

def gen(diag=False, nt="nt", ntG="", ntD="nt", ntW="nt", depth=5, b0_after=1,
        earlyF=(1, 1, 1), earlyW=(3, 3, 2), forder=None, fwin=4, wwin=8, ml_at=13, b3c=True, rot=True,
        spin_cap=True, codepf=True, amp=None, dbg=False, help_c3=True, qdelay=True, wqx=False, npf=3, ramp=None, c3_early=False, kvx=7, fmarks=None):
    A = Asm()
    V = Regs("v", 1, 256); S = Regs("s", 32, 102)
    pX, pK, pV, pWQ, pWO, pG, pU, pD, pOUT, pWS = 8, 10, 12, 14, 16, 20, 22, 24, 26, 30
    sX, sI, sLI, sH, sS, sW, sT, sE = [S.alloc() for _ in range(8)]
    sRole, sC, sF, sP = [S.alloc() for _ in range(4)]
    st0, st1, st2, st3 = [S.alloc() for _ in range(4)]
    sSelIns = [S.alloc() for _ in range(4)]
    sSelChk = S.alloc(); sCnt = S.alloc(); sHi = S.alloc(); sMb = S.alloc(); sMd = S.alloc()
    sp0 = S.alloc(2, 2); sp1 = S.alloc(2, 2); sStr = S.alloc(2, 2); sWrap = S.alloc(2, 2)
    stamps = []; extra = [4, 6, 18]
    def stamp(name):
        if diag or dbg or (amp and name in ("start", amp[0])):
            d = dict(stamps)
            if name not in d:
                r = extra.pop() if (extra and name != "start") else S.alloc(2, 2); stamps.append((name, r))
            else: r = d[name]
            A(f"s_memrealtime {sr(r,2)}")

    vL, vG, vN, vT, vIdx, vL16, vJunk = [V.alloc() for _ in range(7)]
    vt = [V.alloc() for _ in range(12)]
    vAd = V.alloc(2, 2)
    vKa, vVa, vDa, vRb, vRd, vPf = [V.alloc() for _ in range(6)]
    vD = V.alloc(4, 2); vD2 = V.alloc(4, 2); vP = V.alloc(4, 2); vX4 = V.alloc(4, 2)
    vDn = V.alloc(48, 2)
    vAf = V.alloc(36, 2)
    vGa = V.alloc(32, 2)
    vBig = V.alloc(72, 2)
    vWq = vDn; vKf = vGa; vVv = vBig + 40

    def bar(): A("s_barrier")
    def exec_n(n): A(f"s_bfm_b64 exec, {n}, 0")
    def full_exec(): A("s_mov_b64 exec, -1")
    def zero4(d):
        for k in range(4): A(f"v_mov_b32 {vr(d+k)}, 0")
    def tag_insert(base):
        for k in range(4): A(f"v_perm_b32 {vr(base+k)}, {vr(base+k)}, {vr(vT)}, {sr(sSelIns[k])}")
    def tag_check(base, first):
        A(f"v_perm_b32 {vr(vt[10])}, {vr(base+1)}, {vr(base)}, {sr(sSelChk)}")
        A(f"v_perm_b32 {vr(vt[11])}, {vr(base+3)}, {vr(base+2)}, {sr(sSelChk)}")
        A(f"v_lshl_or_b32 {vr(vt[10])}, {vr(vt[11])}, 16, {vr(vt[10])}")
        if first: A(f"v_xor_b32 {vr(vt[9])}, {vr(vt[10])}, {vr(vT)}")
        else: A(f"v_bitop3_b32 {vr(vt[9])}, {vr(vt[10])}, {vr(vT)}, {vr(vt[9])} bitop3:0xbe      ; (a^b)|c")
    def tag_done(): A(f"v_cmp_ne_u32 vcc, 0, {vr(vt[9])}")
    def loop_tail(lbl):
        if spin_cap:
            A(f"s_cbranch_vccz {lbl}_ok")
            A(f"s_add_u32 {sr(sCnt)}, {sr(sCnt)}, 1")
            A(f"s_cmp_lt_u32 {sr(sCnt)}, 0x40000")
            A(f"s_cbranch_scc1 {lbl}")
            A(f"{lbl}_ok:")
        else:
            A(f"s_cbranch_vccnz {lbl}")
    def pk_add4(d, a, b):
        A(f"v_pk_add_f32 {vr(d,2)}, {vr(a,2)}, {vr(b,2)}")
        A(f"v_pk_add_f32 {vr(d+2,2)}, {vr(a+2,2)}, {vr(b+2,2)}")
    def smf(d, a, b, mod=""): A(f"v_smfmac_f32_16x16x64_bf16 {vr(d,4)}, {vr(a,4)}, {vr(b,8)}, {vr(vIdx)} {mod}")
    def mfma(d, a, b, first):
        A(f"v_mfma_f32_16x16x32_bf16 {vr(d,4)}, {vr(a,4)}, {vr(b,4)}, {'0' if first else vr(d,4)}")
    def bf16r(dst, src):
        A(f"v_cvt_pk_bf16_f32 {vr(dst)}, 0, {vr(src)}")
    def dpp_red(op, a, first_src=None):
        for i, sh in enumerate((8, 4, 2, 1)):
            s_ = first_src if (i == 0 and first_src is not None) else a
            A(f"{op}_dpp {vr(a)}, {vr(s_)}, {vr(s_)} row_ror:{sh} row_mask:0xf bank_mask:0xf")
    def wave_sum2(a, b, tmp):
        A(f"v_permlane32_swap_b32 {vr(a)}, {vr(b)}")
        A(f"v_add_f32 {vr(a)}, {vr(a)}, {vr(b)}")
        A(f"v_mov_b32 {vr(tmp)}, {vr(a)}")
        A(f"v_permlane16_swap_b32 {vr(a)}, {vr(tmp)}")
        A(f"v_add_f32 {vr(a)}, {vr(a)}, {vr(tmp)}")
        dpp_red("v_add_f32", a)

    def ld_K(vm, t):
        if t:
            A(f"s_addk_i32 m0, 0x400")
            A(f"v_xor_b32 {vr(vt[11])}, {t*1024 + (t&3)*64}, {vr(vKa)}")
        vm.issue(f"K{t}", f"global_load_lds_dwordx4 {vr(vt[11] if t else vKa)}, {sr(pK,2)} {nt}")
    def ld_V(vm, k):
        if k: A(f"v_xor_b32 {vr(vt[11])}, {k*1024}, {vr(vVa)}")
        vm.issue(f"V{k}", f"global_load_dwordx4 {vr(vVv+4*k,4)}, {vr(vt[11] if k else vVa)}, {sr(pV,2)} {nt}")
    def ld_B(vm, j, kind):
        A(f"s_add_u32 m0, {sr(sMb)}, {j*1024}")
        A("s_nop 0")
        vm.issue(f"{kind}{j}", f"global_load_lds_dwordx4 {vr(vAd,2)}, off {ntG if kind == 'G' else ntW}")
        last = 17 if kind == "G" else 15
        if j < last: A(f"v_lshl_add_u64 {vr(vAd,2)}, {sr(sWrap if (kind == 'G' and j == 8) else sStr,2)}, 0, {vr(vAd,2)}")
    def ld_P(vm, j):
        exec_n(16)
        vm.issue(f"P{j}", f"global_load_dword {vr(vJunk)}, {vr(vPf)}, {sr(pWO,2)}")
        full_exec()
        if j + 1 < npf: A(f"v_add_u32 {vr(vPf)}, {32*1152}, {vr(vPf)}")
    def rd_B(j):
        for q in range(2): A(f"ds_read_b64 {vr(vBig+4*j+2*q,2)}, {vr(vRb)} offset:{j*1024+q*512}")
    def ld_D(vm, j):
        tt, jj = j >> 2, j & 3
        A(f"s_add_u32 m0, {sr(sMd)}, {j*1024}")
        A(f"v_add_u32 {vr(vt[11])}, {jj*8*1152 + tt*128}, {vr(vDa)}")
        vm.issue(f"D{j}", f"global_load_lds_dwordx4 {vr(vt[11])}, {sr(pD,2)} {ntD}")
    def rd_D(j):
        for q in range(2): A(f"ds_read_b64 {vr(vDn+4*j+2*q,2)}, {vr(vRd)} offset:{j*1024+q*512}")

    stamp("start")
    A("s_cmp_ge_u32 s2, 256")
    A("s_cbranch_scc1 L_end")
    A("s_load_dwordx16 s[8:23], s[0:1], 0")
    A("s_load_dwordx8 s[24:31], s[0:1], 64")
    if codepf:
        A("s_cmp_lt_u32 s2, 248")
        A("s_cbranch_scc1 L_nopf")
        A(f"s_getpc_b64 {sr(sp1,2)}")
        A(f"v_lshlrev_b32 {vr(vt[4])}, 6, v0")
        A(f"v_min_u32 {vr(vt[4])}, L_code_end-.-16, {vr(vt[4])}")
        A(f"global_load_dword {vr(vJunk)}, {vr(vt[4])}, {sr(sp1,2)}")
        A("L_nopf:")
    A(f"v_readfirstlane_b32 {sr(sW)}, v0")
    A(f"v_and_b32 {vr(vN)}, 15, v0")
    A(f"v_bfe_u32 {vr(vG)}, v0, 4, 2")
    A(f"s_and_b32 {sr(sX)}, s2, 7")
    A(f"s_lshr_b32 {sr(sI)}, s2, 3")
    A(f"s_lshl_b32 {sr(sLI)}, {sr(sX)}, 5")
    A(f"s_add_u32 {sr(sLI)}, {sr(sLI)}, {sr(sI)}")
    A(f"s_lshr_b32 {sr(sW)}, {sr(sW)}, 6")
    A(f"s_sub_u32 {sr(sW)}, {sr(sW)}, 1")
    A(f"s_min_u32 {sr(sW)}, {sr(sW)}, 4")
    A(f"s_lshr_b32 {sr(sH)}, {sr(sLI)}, 4")
    A(f"s_and_b32 {sr(sS)}, {sr(sI)}, 15")
    if wqx:
        A(f"s_mul_i32 {sr(st0)}, {sr(sX)}, 72")
        A(f"s_mov_b32 {sr(st1)}, {sr(sI)}")
    else:
        A(f"s_lshr_b32 {sr(st0)}, {sr(sS)}, 1")
        A(f"s_mul_i32 {sr(st0)}, {sr(st0)}, 72")
        A(f"s_and_b32 {sr(st1)}, {sr(sS)}, 1")
        A(f"s_lshl1_add_u32 {sr(st1)}, {sr(sH)}, {sr(st1)}")
    A(f"s_lshl4_add_u32 {sr(st2)}, {sr(sW)}, {sr(st0)}")
    A(f"s_lshl_b32 {sr(st2)}, {sr(st2)}, 5")
    A(f"s_add_u32 {sr(st2)}, {sr(st2)}, {sr(st1)}")
    A(f"s_lshl_b32 {sr(st2)}, {sr(st2)}, 8")
    A(f"v_lshl_add_u32 {vr(vt[0])}, {vr(vN)}, 4, {sr(st2)}")
    A(f"v_lshl_add_u32 {vr(vt[0])}, {vr(vG)}, 13, {vr(vt[0])}")
    A(f"v_and_b32 {vr(vL)}, 63, v0")
    A(f"v_add_u32 {vr(vt[1])}, 0x8000, {vr(vt[0])}")
    A(f"v_lshlrev_b32 {vr(vL16)}, 4, {vr(vL)}")
    A(f"v_lshlrev_b32 {vr(vt[2])}, 1, {vr(vL)}")
    A(f"s_cmp_eq_u32 {sr(sW)}, 4")
    A("s_waitcnt lgkmcnt(0)")
    A("s_cbranch_scc0 L_nx")
    vh = VM(A)
    vh.issue("xa", f"global_load_dwordx4 {vr(vX4,4)}, {vr(vL16)}, {sr(pX,2)}")
    vh.issue("xu", f"global_load_ushort {vr(vKa)}, {vr(vt[2])}, {sr(pX,2)} offset:1024")
    A(f"v_min_u32 {vr(vt[3])}, 35, {vr(vL)}")
    A(f"v_lshl_add_u32 {vr(vt[3])}, {vr(vt[3])}, 1, {sr(st0)}")
    A(f"v_lshlrev_b32 {vr(vt[3])}, 1, {vr(vt[3])}")
    vh.issue("xm", f"global_load_dword {vr(vVa)}, {vr(vt[3])}, {sr(pX,2)}")
    A("L_nx:")
    vm = VM(A)
    for k in range(2):
        vm.issue(f"q{k}", f"global_load_dwordx4 {vr(vWq+4*k,4)}, {vr(vt[k])}, {sr(pWQ,2)} {nt}"); vh.note(f"q{k}")
    A("s_cbranch_scc1 L_helper")
    A(f"v_add_u32 {vr(vt[2])}, 0x10000, {vr(vt[0])}")
    A(f"v_add_u32 {vr(vt[3])}, 0x18000, {vr(vt[0])}")
    for k in range(2, 4): vm.issue(f"q{k}", f"global_load_dwordx4 {vr(vWq+4*k,4)}, {vr(vt[k])}, {sr(pWQ,2)} {nt}")
    A(f"s_load_dword {sr(sE)}, {sr(pWS,2)}, 0")
    stamp("issued0")
    A(f"s_lshl_b32 {sr(st2)}, {sr(sH)}, 21")
    A(f"s_lshl_b32 {sr(st3)}, {sr(sS)}, 15")
    A(f"s_add_u32 {sr(st2)}, {sr(st2)}, {sr(st3)}")
    A(f"s_lshl_b32 {sr(st3)}, {sr(sW)}, 13")
    A(f"s_add_u32 {sr(st2)}, {sr(st2)}, {sr(st3)}")
    A(f"s_add_u32 {sr(st2)}, {sr(st2)}, 0x180000")
    A(f"s_add_u32 m0, {sr(st3)}, {KL}")
    A(f"s_add_u32 {sr(st3)}, {sr(sS)}, {sr(sW)}")
    A(f"s_and_b32 {sr(st3)}, {sr(st3)}, {kvx}")
    A(f"s_lshl_b32 {sr(st3)}, {sr(st3)}, 10")
    A(f"s_add_u32 {sr(st2)}, {sr(st2)}, {sr(st3)}")
    A(f"v_xor_b32 {vr(vt[0])}, {vr(vN)}, {vr(vG)}")
    A(f"v_lshl_add_u32 {vr(vKa)}, {vr(vt[0])}, 4, {sr(st2)}")
    A(f"v_lshl_add_u32 {vr(vKa)}, {vr(vG)}, 8, {vr(vKa)}")
    seq = [f"K{t}" for t in range(8)] + [f"V{t}" for t in range(8)]
    nxt = [0]
    def issue_next(n=1):
        for _ in range(n):
            if nxt[0] < len(seq):
                nm = seq[nxt[0]]; nxt[0] += 1
                (ld_K if nm[0] == "K" else ld_V)(vm, int(nm[1]))
    issue_next(depth - 4)
    A(f"v_add_u32 {vr(vVa)}, {sr(st2)}, {vr(vL16)}")
    def common_consts():
        A(f"s_mov_b32 {sr(sHi)}, 0xffff0000")
        A(f"s_mov_b32 {sr(sCnt)}, 0")
        for k in range(4): A(f"s_mov_b32 {sr(sSelIns[k])}, {hex(0x07060500 + k)}")
        A(f"s_mov_b32 {sr(sSelChk)}, 0x0c0c0400")
        A(f"v_and_b32 {vr(vt[4])}, 3, v0")
        A(f"v_and_b32 {vr(vt[5])}, 1, v0")
        A(f"v_lshlrev_b32 {vr(vt[5])}, 17, {vr(vt[5])}")
        A(f"v_or_b32 {vr(vt[4])}, {vr(vt[4])}, {vr(vt[5])}")
        A(f"v_or_b32 {vr(vt[4])}, 0x10000, {vr(vt[4])}")
        A(f"v_mul_u32_u24 {vr(vIdx)}, 0x5555, {vr(vt[4])}")
        A(f"s_lshr_b32 {sr(sC)}, {sr(sI)}, 4")
        A(f"s_mul_i32 {sr(sC)}, {sr(sC)}, 7")
        A(f"s_add_u32 {sr(sC)}, {sr(sC)}, {sr(sS)}")
        A(f"s_sub_u32 {sr(sC)}, {sr(sC)}, 9")
        A(f"s_mul_i32 {sr(sF)}, {sr(sH)}, 9")
        A(f"s_add_u32 {sr(sF)}, {sr(sF)}, {sr(sS)}")
        A(f"s_cmp_lt_u32 {sr(sC)}, 9")
        A(f"s_cselect_b32 {sr(sRole)}, 1, 2")
        A(f"s_cmp_lt_u32 {sr(sS)}, 9")
        A(f"s_cselect_b32 {sr(sRole)}, 0, {sr(sRole)}")
        A(f"s_and_b32 {sr(sP)}, {sr(sF)}, {1 if rot else 0}")
    common_consts()
    def x_frag_addr(dst):
        A(f"v_bfe_u32 {vr(dst)}, v0, 2, 1")
        A(f"v_mul_u32_u24 {vr(dst)}, {XO-XE}, {vr(dst)}")
        A(f"v_lshl_add_u32 {vr(dst)}, {vr(vG)}, 4, {vr(dst)}")
        A(f"s_lshl_b32 {sr(st0)}, {sr(sW)}, 7")
        A(f"v_add_u32 {vr(dst)}, {sr(st0)}, {vr(dst)}")
    def qpart_addr(dst):
        A(f"v_lshl_add_u32 {vr(dst)}, {vr(vN)}, 1, {vr(vG)}")
        A(f"s_lshl_b32 {sr(st0)}, {sr(sW)}, 9")
        A(f"v_lshl_add_u32 {vr(dst)}, {vr(dst)}, 4, {sr(st0)}")
    x_frag_addr(vt[0]); qpart_addr(vt[1]); zero4(vD)
    for k in range(4):
        if k == b0_after:
            bar()
            A(f"ds_read_b128 {vr(vAf,4)}, {vr(vt[0])} offset:{XE}")
            A(f"ds_read_b128 {vr(vAf+4,4)}, {vr(vt[0])} offset:{XE+64}")
        vm.wait(f"q{k}"); issue_next()
    stamp("wq_landed")
    A("s_waitcnt lgkmcnt(0)")
    smf(vD, vAf, vWq); smf(vD, vAf+4, vWq+8)
    A(f"s_add_u32 {sr(sT)}, {sr(sE)}, 0x01010101")
    A(f"v_mov_b32 {vr(vT)}, {sr(sT)}")
    exec_n(32)
    A(f"ds_write_b128 {vr(vt[1])}, {vr(vD,4)} offset:{PART}")
    full_exec()
    A("s_waitcnt lgkmcnt(0)")
    bar()
    done = [0]
    def pace():
        vm.wait(seq[done[0]]); done[0] += 1; issue_next()
    pace()
    A(f"v_bfe_u32 {vr(vt[0])}, v0, 3, 2")
    A(f"v_bfe_u32 {vr(vt[1])}, v0, 5, 1")
    A(f"v_lshl_add_u32 {vr(vt[0])}, {vr(vt[0])}, 1, {vr(vt[1])}")
    A(f"v_and_b32 {vr(vt[1])}, 7, v0")
    A(f"v_lshlrev_b32 {vr(vt[1])}, 4, {vr(vt[1])}")
    A(f"s_movk_i32 {sr(st1)}, 1152")
    A(f"v_mad_u32_u24 {vr(vt[2])}, {vr(vt[0])}, {sr(st1)}, {vr(vt[1])}   ; row*1152 + c8*16")
    A(f"s_mul_i32 {sr(st0)}, {sr(sF)}, {32*1152}")
    A(f"s_mul_i32 {sr(st1)}, {sr(sW)}, 384")
    A(f"s_add_u32 {sr(st0)}, {sr(st0)}, {sr(st1)}")
    A(f"v_add_u32 {vr(vDa)}, {sr(st0)}, {vr(vt[2])}")
    A(f"s_mul_i32 {sr(sMb)}, {sr(sW)}, {18*1024}")
    A(f"s_add_u32 {sr(sMb)}, {sr(sMb)}, {WB}")
    A(f"s_mul_i32 {sr(sMd)}, {sr(sW)}, {12*1024}")
    A(f"s_add_u32 {sr(sMd)}, {sr(sMd)}, {DB}")
    A(f"v_lshl_add_u32 {vr(vRb)}, {vr(vL)}, 3, {sr(sMb)}")
    A(f"v_lshl_add_u32 {vr(vRd)}, {vr(vL)}, 3, {sr(sMd)}")
    pace()
    A(f"s_mov_b32 {sr(sStr+1)}, 0")
    A(f"s_cmp_eq_u32 {sr(sRole)}, 0")
    A("s_cbranch_scc1 L_adF")
    A(f"s_lshl_b32 {sr(st0)}, {sr(sX)}, 2")
    A(f"s_add_u32 {sr(st0)}, {sr(st0)}, {sr(sW)}")
    A(f"s_mul_i32 {sr(st0)}, {sr(st0)}, {128*1152}")
    A(f"s_lshl_b32 {sr(st1)}, {sr(sC)}, 7")
    A(f"s_add_u32 {sr(st0)}, {sr(st0)}, {sr(st1)}")
    A(f"v_add_u32 {vr(vt[2])}, {sr(st0)}, {vr(vt[2])}")
    A(f"v_mov_b32 {vr(vAd)}, {sr(pWO)}")
    A(f"v_mov_b32 {vr(vAd+1)}, {sr(pWO+1)}")
    A(f"s_movk_i32 {sr(sStr)}, {8*1152}")
    A(f"v_mov_b32 {vr(vPf)}, 0")
    A("s_branch L_adX")
    A("L_adF:")
    A(f"s_lshl1_add_u32 {sr(st0)}, {sr(sW)}, {sr(sP)}")
    A(f"s_mul_i32 {sr(st0)}, {sr(st0)}, {72*9216}")
    A(f"s_lshl_b32 {sr(st1)}, {sr(sF)}, 6")
    A(f"s_add_u32 {sr(st0)}, {sr(st0)}, {sr(st1)}")
    A(f"v_and_b32 {vr(vt[2])}, 48, {vr(vt[1])}")
    A(f"v_add_u32 {vr(vt[2])}, {sr(st0)}, {vr(vt[2])}")
    A(f"s_movk_i32 {sr(st1)}, 9216")
    A(f"v_mad_u32_u24 {vr(vt[2])}, {vr(vt[0])}, {sr(st1)}, {vr(vt[2])}")
    A(f"v_cmp_gt_u32 vcc, 64, {vr(vt[1])}")
    A(f"v_mov_b32 {vr(vt[3])}, {sr(pU)}")
    A(f"v_mov_b32 {vr(vt[4])}, {sr(pU+1)}")
    A(f"v_mov_b32 {vr(vt[5])}, {sr(pG)}")
    A(f"v_mov_b32 {vr(vt[6])}, {sr(pG+1)}")
    A(f"v_cndmask_b32 {vr(vAd)}, {vr(vt[3])}, {vr(vt[5])}, vcc")
    A(f"v_cndmask_b32 {vr(vAd+1)}, {vr(vt[4])}, {vr(vt[6])}, vcc")
    A(f"s_lshl2_add_u32 {sr(st0)}, {sr(sX)}, {sr(sW)}")
    A(f"s_mul_i32 {sr(st0)}, {sr(st0)}, {128*1152}")
    A(f"s_mul_i32 {sr(st1)}, {sr(sX)}, 18")
    A(f"s_sub_u32 {sr(st1)}, {sr(sF)}, {sr(st1)}")
    A(f"s_lshl_b32 {sr(st1)}, {sr(st1)}, 11")
    A(f"s_add_u32 {sr(st0)}, {sr(st0)}, {sr(st1)}")
    A(f"s_add_u32 {sr(st0)}, {sr(st0)}, {(4-npf)*32*1152}")
    A(f"v_lshl_add_u32 {vr(vPf)}, {vr(vN)}, 7, {sr(st0)}")
    A(f"s_mov_b32 {sr(sStr)}, {8*9216}")
    A(f"s_mul_i32 {sr(st0)}, {sr(sP)}, {144*9216}")
    A(f"s_sub_u32 {sr(sWrap)}, {8*9216}, {sr(st0)}")
    A(f"s_subb_u32 {sr(sWrap+1)}, 0, 0")
    A("L_adX:")
    A(f"v_add_co_u32 {vr(vAd)}, vcc, {vr(vAd)}, {vr(vt[2])}")
    A(f"v_addc_co_u32 {vr(vAd+1)}, vcc, 0, {vr(vAd+1)}, vcc")
    pace()
    A(f"v_xor_b32 {vr(vt[0])}, {vr(vN)}, {vr(vG)}")
    A(f"s_lshl_b32 {sr(st0)}, {sr(sW)}, 13")
    A(f"s_add_u32 {sr(st0)}, {sr(st0)}, {KL}")
    A(f"v_lshl_add_u32 {vr(vt[0])}, {vr(vt[0])}, 4, {sr(st0)}")
    A(f"v_lshl_add_u32 {vr(vt[0])}, {vr(vN)}, 8, {vr(vt[0])}")
    for i in range(1, 4): A(f"v_xor_b32 {vr(vt[i])}, {64*i}, {vr(vt[0])}")
    A(f"v_bfe_u32 {vr(vt[8])}, v0, 2, 1                        ; (m>>2)&1")
    A(f"v_lshlrev_b32 {vr(vt[4])}, 4, {vr(vG)}")
    A(f"v_lshl_add_u32 {vr(vt[4])}, {vr(vt[8])}, 8, {vr(vt[4])}")
    A(f"s_lshl_b32 {sr(st0)}, {sr(sW)}, 10")
    A(f"v_bfe_u32 {vr(vt[5])}, v0, 2, 2")
    A(f"v_lshl_add_u32 {vr(vt[5])}, {vr(vt[5])}, 8, {sr(st0)}")
    A(f"v_lshl_add_u32 {vr(vt[5])}, {vr(vG)}, 4, {vr(vt[5])}")
    A(f"v_and_b32 {vr(vt[7])}, 1, {vr(vG)}")
    A(f"v_lshl_add_u32 {vr(vt[6])}, {vr(vt[7])}, 9, {sr(st0)}")
    A(f"v_lshl_add_u32 {vr(vt[6])}, {vr(vN)}, 3, {vr(vt[6])}")
    A(f"v_lshrrev_b32 {vr(vt[8])}, 1, {vr(vG)}")
    A(f"v_lshl_add_u32 {vr(vt[6])}, {vr(vt[8])}, 7, {vr(vt[6])}")
    A(f"v_add_u32 {vr(vt[6])}, {PT}, {vr(vt[6])}")
    A(f"v_lshl_add_u32 {vr(vX4)}, {vr(vN)}, 1, {vr(vt[7])}")
    A(f"v_lshl_add_u32 {vr(vX4)}, {vr(vt[8])}, 5, {vr(vX4)}")
    A(f"v_lshl_add_u32 {vr(vX4)}, {vr(vX4)}, 4, {sr(st0)}")
    A(f"s_lshl_b32 {sr(st0)}, {sr(sW)}, 2")
    A(f"v_lshl_add_u32 {vr(vt[7])}, {vr(vt[7])}, 4, {sr(st0)}")
    A(f"s_bfm_b64 {sr(sp1,2)}, 32, 32")
    while nxt[0] < len(seq) or done[0] < 8:
        nm = seq[done[0]]
        pace()
        if nm in ("K3", "K7"):
            tl = 0 if nm == "K3" else 1
            for i in range(4): A(f"ds_read_b128 {vr(vKf+16*tl+4*i,4)}, {vr(vt[i])} offset:{4096*tl}")
            if tl: stamp("k_landed")
    assert done[0] >= 8
    A("s_waitcnt lgkmcnt(0)")
    stamp("v_issued")
    bar()
    stamp("q_ready")
    vmF, vmW, vmS = vm.copy(), vm.copy(), vm.copy()
    if forder is None:
        forder = [f"G{j}" for j in range(9)] + [f"D{j}" for j in range(6)] + [f"G{j}" for j in range(9, 18)] + ["H"] + [f"D{j}" for j in range(6, 12)]
    else:
        fo = []
        for tok in forder.split():
            if "-" in tok:
                a, b = tok[1:].split("-"); fo += [f"{tok[0]}{j}" for j in range(int(a), int(b)+1)]
            else: fo.append(tok)
        forder = fo
    forder = [f"P{j}" for j in range(npf)] + forder
    assert all(n[0] in "GP" for n in forder[:sum(earlyF)])
    def ld_any(v_, n):
        j = int(n[1:])
        if n[0] == "G": ld_B(v_, j, "G")
        elif n[0] == "D": ld_D(v_, j)
        else: ld_P(v_, j)
    lab = [0]
    def early_slot(k):
        nf, nw = earlyF[k], earlyW[k]
        if nf == 0 and nw == 0: return
        lab[0] += 1; L = f"L_E{lab[0]}"
        A(f"s_cmp_eq_u32 {sr(sRole)}, 1"); A(f"s_cbranch_scc1 {L}w")
        if nf:
            A(f"s_cmp_eq_u32 {sr(sRole)}, 0"); A(f"s_cbranch_scc0 {L}x")
            for j in range(nf): ld_any(vmF, forder[sum(earlyF[:k]) + j])
        A(f"s_branch {L}x")
        A(f"{L}w:")
        for j in range(nw): ld_B(vmW, sum(earlyW[:k]) + j, "W")
        A(f"{L}x:")
    def wait_multi(name):
        c = {0: vmF.cnt(name), 1: vmW.cnt(name), 2: vmS.cnt(name)}
        order = sorted(set(c.values()), reverse=True)
        lab[0] += 1; L = f"L_M{lab[0]}"
        for i, v in enumerate(order):
            A(f"s_waitcnt vmcnt({v})")
            if i + 1 < len(order):
                for r in c:
                    if c[r] == v:
                        A(f"s_cmp_eq_u32 {sr(sRole)}, {r}"); A(f"s_cbranch_scc1 {L}")
        A(f"{L}:")
    for i in range(4): A(f"ds_read_b128 {vr(vAf+4*i,4)}, {vr(vt[4])} offset:{QB+64*i}")
    early_slot(0)
    for i in range(4):
        A(f"s_waitcnt lgkmcnt({3-i})")
        mfma(vD, vAf+4*i, vKf+4*i, i == 0)
        mfma(vD2, vAf+4*i, vKf+16+4*i, i == 0)
    early_slot(1)
    A(f"s_mov_b32 {sr(st1)}, {hex(f2u(128**-0.5))}")
    A(f"s_mov_b32 {sr(st2)}, {hex(f2u(LOG2E))}")
    A("s_nop 4")
    A(f"v_cndmask_b32 {vr(vP)}, {vr(vD)}, {vr(vD2)}, {sr(sp1,2)}")
    bf16r(vP, vP)
    A(f"v_mul_f32 {vr(vP)}, {sr(st1)}, {vr(vP)}")
    bf16r(vP, vP)
    A(f"v_mov_b32 {vr(vP+1)}, {vr(vP)}")
    A(f"v_mov_b32 {vr(vP+2)}, {vr(vP)}")
    zero4(vD)
    A(f"v_permlane32_swap_b32 {vr(vP+1)}, {vr(vP+2)}")
    A(f"v_max_f32 {vr(vP+1)}, {vr(vP+1)}, {vr(vP+2)}")
    dpp_red("v_max_f32", vP+1)
    A(f"v_sub_f32 {vr(vP)}, {vr(vP)}, {vr(vP+1)}")
    A(f"v_mul_f32 {vr(vP)}, {sr(st2)}, {vr(vP)}")
    A(f"v_exp_f32 {vr(vP)}, {vr(vP)}")
    A(f"ds_write_b32 {vr(vt[7])}, {vr(vP+1)} offset:{MM}")
    A(f"v_cvt_pk_bf16_f32 {vr(vP+2)}, {vr(vP)}, 0")
    A(f"ds_write2_b32 {vr(vt[6])}, {vr(vP+2)}, {vr(vP+2)} offset0:0 offset1:65")
    for t in range(4): A(f"ds_read_b128 {vr(vAf+4*t,4)}, {vr(vt[5])} offset:{PT+64*t}")
    A(f"v_mov_b32 {vr(vP+1)}, {vr(vP)}")
    A(f"v_permlane32_swap_b32 {vr(vP)}, {vr(vP+1)}")
    A(f"v_add_f32 {vr(vP)}, {vr(vP)}, {vr(vP+1)}")
    dpp_red("v_add_f32", vP)
    A(f"ds_write_b32 {vr(vt[7])}, {vr(vP)} offset:{LL}")
    stamp("p_ready")
    early_slot(2)
    A("s_waitcnt lgkmcnt(0)")
    bar()
    if seq.index("V5") >= done[0]: wait_multi("V5")
    for t in range(3): smf(vD, vAf+4*t, vVv+8*t)
    wait_multi("V7")
    smf(vD, vAf+12, vVv+24)
    stamp("v_landed")
    A(f"s_cmp_eq_u32 {sr(sRole)}, 0")
    A(f"ds_write_b128 {vr(vX4)}, {vr(vD,4)} offset:{OW}")
    A("s_waitcnt lgkmcnt(0)")
    bar()
    if b3c: bar()
    stamp("o_pub")
    A("s_cbranch_scc1 L_roleF")
    A(f"s_cmp_eq_u32 {sr(sRole)}, 2")
    A("s_cbranch_scc1 L_roleS")
    A(f"s_lshr_b32 {sr(st0)}, {sr(sW)}, 1")
    A(f"s_lshl1_add_u32 {sr(st0)}, {sr(sX)}, {sr(st0)}")
    A(f"s_mul_i32 {sr(st0)}, {sr(st0)}, {16*1152}")
    A(f"s_add_u32 {sr(st0)}, {sr(st0)}, {OOFF}")
    A(f"s_and_b32 {sr(st1)}, {sr(sW)}, 1")
    A(f"s_lshl_b32 {sr(st2)}, {sr(st1)}, 9")
    A(f"s_add_u32 {sr(st2)}, {sr(st2)}, {sr(st0)}")
    A(f"s_lshl4_add_u32 {sr(st1)}, {sr(st1)}, {sr(st0)}")
    A(f"s_movk_i32 {sr(st3)}, 1152")
    vw = vmW
    wi = sum(earlyW); wr = 0
    def w_setup():
        A(f"v_lshl_add_u32 {vr(vt[0])}, {vr(vN)}, 4, {sr(st2)}")
        A(f"v_mad_u32_u24 {vr(vt[0])}, {vr(vG)}, {sr(st3)}, {vr(vt[0])}")
        for u in range(1, 4): A(f"v_add_u32 {vr(vt[u])}, {u*4*1152}, {vr(vt[0])}")
        A(f"v_lshlrev_b32 {vr(vt[4])}, 1, {vr(vG)}")
        A(f"v_xor_b32 {vr(vt[4])}, {vr(vN)}, {vr(vt[4])}")
        A(f"v_mov_b32 {vr(vt[5])}, {sr(st1)}")
        A(f"v_mad_u32_u24 {vr(vt[4])}, {vr(vt[4])}, {sr(st3)}, {vr(vt[5])}")
        A(f"s_mul_i32 {sr(st0)}, {sr(sW)}, 640")
        A(f"v_add_u32 {vr(vt[5])}, {sr(st0)}, {vr(vL16)}")
        A(f"v_lshl_add_u32 {vr(vt[6])}, {vr(vG)}, 4, {sr(st0)}")
        A(f"s_lshl_b32 {sr(st0)}, {sr(sW)}, 9")
        A(f"v_add_u32 {vr(vt[7])}, {sr(st0)}, {vr(vL16)}")
        A(f"s_mov_b32 {sr(st1)}, {hex(f2u(LOG2E))}")
        A(f"s_mov_b32 {sr(st2)}, 0x05040100")
        A(f"v_bfe_u32 {vr(vt[8])}, v0, 1, 3")
        for k in range(4):
            A(f"v_cmp_eq_u32 vcc, {k}, {vr(vt[8])}")
            A(f"v_cndmask_b32 {vr(vX4+k)}, 0, -1, vcc")
    def ld_ML(v_): v_.issue("ML", f"global_load_dwordx4 {vr(vP,4)}, {vr(vt[4])}, {sr(pWS,2)} offset:1024 sc1")
    def ld_O(v_):
        for u in range(2):
            for blk in range(2):
                for l_ in range(2):
                    v_.issue(f"O{u}{blk}{l_}", f"global_load_dwordx4 {vr(vGa+16*u+8*blk+4*l_,4)}, {vr(vt[2*u+l_])}, {sr(pWS,2)} offset:{256*blk} sc1")
    first = True
    while wi < 16:
        if wi - wr >= wwin:
            vw.wait(f"W{wr}"); rd_B(wr); wr += 1
        if wi == ml_at:
            if first: w_setup(); first = False
            ld_ML(vw)
        ld_B(vw, wi, "W"); wi += 1
        if first and wi - wr >= wwin: w_setup(); first = False
    if first: w_setup(); first = False
    if ml_at >= 16: ld_ML(vw)
    def scales():
        dpp_red("v_max_f32", vt[8], vP)
        A(f"v_sub_f32 {vr(vt[8])}, {vr(vP)}, {vr(vt[8])}")
        A(f"v_mul_f32 {vr(vt[8])}, {sr(st1)}, {vr(vt[8])}")
        A(f"v_exp_f32 {vr(vt[8])}, {vr(vt[8])}")
        A(f"v_mul_f32 {vr(vt[8])}, {vr(vt[8])}, {vr(vP+1)}")
        dpp_red("v_add_f32", vt[9], vt[8])
        A(f"v_rcp_f32 {vr(vt[9])}, {vr(vt[9])}")
        A(f"v_mul_f32 {vr(vt[8])}, {vr(vt[8])}, {vr(vt[9])}")
    while wr < 16 and vw.ops.index(f"W{wr}") < vw.ops.index("ML"):
        vw.wait(f"W{wr}"); rd_B(wr); wr += 1
    vw.wait("ML")
    stamp("ml_ret")
    A(f"v_cmp_ne_u32 vcc, {vr(vP+3)}, {vr(vT)}")
    A("s_cbranch_vccz L_mlspin_ok")
    A("L_mlspin:")
    ld_ML(VM(A)); A("s_waitcnt vmcnt(0)")
    A(f"v_cmp_ne_u32 vcc, {vr(vP+3)}, {vr(vT)}")
    loop_tail("L_mlspin")
    if not spin_cap: A("L_mlspin_ok:")
    ld_O(vw)
    stamp("ph2_a")
    scales()
    bf16r(vt[9], vt[8])
    A(f"v_sub_f32 {vr(vt[9])}, {vr(vt[8])}, {vr(vt[9])}")
    A(f"v_cvt_pk_bf16_f32 {vr(vt[8])}, {vr(vt[8])}, {vr(vt[9])}")
    for u in range(2):
        for blk in range(2):
            for q in range(4):
                A(f"v_and_b32_dpp {vr(vAf+8*u+4*blk+q)}, {vr(vt[8])}, {vr(vX4+2*blk+(q&1))} row_newbcast:{8*u+(q>>1)} row_mask:0xf bank_mask:0xf")
    while wr < 16:
        vw.wait(f"W{wr}"); rd_B(wr); wr += 1
    zero4(vD2)
    def o_combine(v_):
        zero4(vD)
        fst = True
        for u in range(2):
            for blk in range(2):
                v_.wait(f"O{u}{blk}1")
                b = vGa + 16*u + 8*blk
                smf(vD, vAf+8*u+4*blk, b, "abid:1")
                for l_ in range(2):
                    A(f"v_perm_b32 {vr(vt[10])}, {vr(b+4*l_+1)}, {vr(b+4*l_)}, {sr(st2)}")
                    if fst: A(f"v_xor_b32 {vr(vt[9])}, {vr(vt[10])}, {vr(vT)}"); fst = False
                    else: A(f"v_bitop3_b32 {vr(vt[9])}, {vr(vt[10])}, {vr(vT)}, {vr(vt[9])} bitop3:0xbe")
        tag_done()
    o_combine(vw)
    A("s_cbranch_vccz L_ospin_ok")
    A("L_ospin:")
    A("s_nop 4")
    t_ = VM(A); ld_O(t_); o_combine(t_)
    loop_tail("L_ospin")
    if not spin_cap: A("L_ospin_ok:")
    stamp("gath")
    A("s_nop 1")
    for k in range(4): A(f"v_cvt_pk_bf16_f32 {vr(vD+k)}, {vr(vD+k)}, 0")
    exec_n(32)
    A(f"ds_write_b128 {vr(vt[5])}, {vr(vD,4)} offset:{HT}")
    full_exec()
    for t in range(8): A(f"ds_read_b128 {vr(vAf+4*t,4)}, {vr(vt[6])} offset:{HT+64*t}")
    for t in range(8):
        A(f"s_waitcnt lgkmcnt({7-t})")
        smf(vD2, vAf+4*t, vBig+8*t)
    exec_n(16)
    A(f"ds_write_b128 {vr(vt[7])}, {vr(vD2,4)} offset:{PART}")
    A("s_waitcnt lgkmcnt(0)")
    bar()
    full_exec()
    A("s_branch L_fin")
    A("L_roleS:")
    if help_c3:
        A(f"s_sub_u32 {sr(st0)}, {sr(sC)}, 9")
        A(f"s_lshl2_add_u32 {sr(st0)}, {sr(st0)}, {sr(sW)}         ; job")
        A(f"s_cmp_ge_u32 {sr(st0)}, 18"); A("s_cbranch_scc1 L_fin")
        A(f"s_sub_u32 {sr(st1)}, 3, {sr(sX)}")
        A(f"s_and_b32 {sr(st1)}, {sr(st1)}, 7")
        A(f"s_mul_i32 {sr(st2)}, {sr(sX)}, 9")
        A(f"s_add_u32 {sr(st2)}, {sr(st2)}, {sr(st1)}")
        A(f"s_lshl_b32 {sr(st2)}, {sr(st2)}, 7")
        A(f"s_lshr_b32 {sr(st3)}, {sr(st0)}, 1")
        A(f"s_mul_i32 {sr(st3)}, {sr(st3)}, {64*9216}")
        A(f"s_add_u32 {sr(st2)}, {sr(st2)}, {sr(st3)}")
        A(f"v_mul_u32_u24 {vr(vt[0])}, 9216, {vr(vL)}")
        A(f"v_add_u32 {vr(vt[0])}, {sr(st2)}, {vr(vt[0])}")
        A(f"s_bitcmp1_b32 {sr(st0)}, 0")
        A(f"s_cselect_b32 {sr(sp0)}, {sr(pU)}, {sr(pG)}")
        A(f"s_cselect_b32 {sr(sp0+1)}, {sr(pU+1)}, {sr(pG+1)}")
        A(f"global_load_dword {vr(vJunk)}, {vr(vt[0])}, {sr(sp0,2)}")
        A(f"s_cmp_eq_u32 {sr(st1)}, 0"); A("s_cbranch_scc0 L_fin")
        A(f"global_load_dword {vr(vJunk)}, {vr(vt[0])}, {sr(sp0,2)} offset:1024")
    A("s_branch L_fin")
    A("L_roleF:")
    def f_setup(v_):
        A(f"s_mul_i32 {sr(st0)}, {sr(sW)}, 36")
        A(f"v_min_u32 {vr(vt[0])}, 35, {vr(vL)}")
        A(f"v_add_u32 {vr(vt[1])}, {sr(st0)}, {vr(vt[0])}")
        A(f"v_lshlrev_b32 {vr(vt[2])}, 3, {vr(vt[1])}")
        v_.issue("xh", f"global_load_dwordx2 {vr(vX4+2,2)}, {vr(vt[2])}, {sr(pX,2)}")
        A(f"v_lshrrev_b32 {vr(vt[2])}, 4, {vr(vt[1])}")
        A(f"v_and_b32 {vr(vt[1])}, 15, {vr(vt[1])}")
        A(f"v_lshlrev_b32 {vr(vt[1])}, 4, {vr(vt[1])}")
        A(f"v_lshl_add_u32 {vr(vt[1])}, {vr(vt[2])}, 11, {vr(vt[1])}")
        A(f"v_add_u32 {vr(vt[1])}, {HOFF}, {vr(vt[1])}")
        A(f"s_mul_i32 {sr(st1)}, {sr(sP)}, 18")
        A(f"v_add_u32 {vr(vt[0])}, {sr(st1)}, {vr(vt[0])}")
        A(f"v_subrev_u32 {vr(vt[2])}, 36, {vr(vt[0])}")
        A(f"v_min_u32 {vr(vt[0])}, {vr(vt[0])}, {vr(vt[2])}            ; (l + 18p) mod 36")
        A(f"s_mul_i32 {sr(st0)}, {sr(sW)}, 640")
        A(f"v_lshl_add_u32 {vr(vt[0])}, {vr(vt[0])}, 4, {sr(st0)}")
        A(f"v_lshl_add_u32 {vr(vt[2])}, {vr(vG)}, 4, {sr(st0)}")
        A(f"v_bfe_u32 {vr(vt[8])}, v0, 2, 2                            ; m>>2")
        A(f"v_mov_b32 {vr(vt[3])}, {ONES-HT}")
        A(f"v_cmp_eq_u32 vcc, 1, {vr(vt[8])}")
        A(f"v_cndmask_b32 {vr(vt[2])}, {vr(vt[2])}, {vr(vt[3])}, vcc")
        A(f"s_lshl_b32 {sr(st0)}, {sr(sW)}, 9")
        A(f"v_add_u32 {vr(vt[3])}, {sr(st0)}, {vr(vL16)}")
        A(f"s_lshl_b32 {sr(st0)}, {sr(sW)}, 7")
        A(f"v_lshl_add_u32 {vr(vt[4])}, {vr(vG)}, 4, {sr(st0)}")
        A(f"v_mov_b32 {vr(vKa)}, {ZERO-HD}")
        for tt in range(3):
            A(f"v_cmp_eq_u32 vcc, {tt}, {vr(vt[8])}")
            A(f"v_cndmask_b32 {vr(vt[5+tt])}, {vr(vKa)}, {vr(vt[4])}, vcc")
        A(f"v_lshl_add_u32 {vr(vt[4])}, {vr(vL)}, 2, {sr(st0)}")
        A(f"s_mul_i32 {sr(st0)}, {sr(sW)}, {6*144*128}")
        A(f"s_lshl_b32 {sr(st1)}, {sr(sF)}, 7")
        A(f"s_add_u32 {sr(st0)}, {sr(st0)}, {sr(st1)}")
        A(f"s_add_u32 {sr(st0)}, {sr(st0)}, {YOFF}")
        A(f"v_and_b32 {vr(vKa)}, 0x70, {vr(vL16)}")
        A(f"v_add_u32 {vr(vKa)}, {sr(st0)}, {vr(vKa)}")
        A(f"v_lshrrev_b32 {vr(vVa)}, 3, {vr(vL)}")
        A(f"s_movk_i32 {sr(st1)}, {144*128}")
        A(f"v_mad_u32_u24 {vr(vKa)}, {vr(vVa)}, {sr(st1)}, {vr(vKa)}")
        A(f"v_lshrrev_b32 {vr(vVa)}, 5, {vr(vL)}")
        A(f"s_lshl_b32 {sr(st0)}, {sr(sW)}, 3")
        A(f"v_lshl_add_u32 {vr(vVa)}, {vr(vVa)}, 2, {sr(st0)}")
        zero4(vD); zero4(vD2)
    def ld_H(v_):
        exec_n(36)
        for p in range(8): v_.issue(f"H{p}", f"global_load_dwordx4 {vr(vGa+4*p,4)}, {vr(vt[1])}, {sr(pWS,2)} offset:{256*p} sc1")
        full_exec()
    def h_sum(v_):
        for p in range(8):
            v_.wait(f"H{p}")
            pk_add4(vP, vX4 if p == 0 else vP, vGa+4*p)
            if p == 7:
                for k in range(4): A(f"v_cvt_pk_bf16_f32 {vr(vP+k)}, {vr(vP+k)}, 0")
                A(f"ds_write_b128 {vr(vt[0])}, {vr(vP,4)} offset:{HT}")
            tag_check(vGa+4*p, p == 0)
        tag_done()
    def f_path(withD, tagl):
        vf = vmF.copy()
        order = [n for n in forder if withD or n[0] != "D"]
        cost = lambda n: 1 if n[0] == "D" else 2
        pend = list(order[:sum(earlyF)])
        setup = False
        def retire():
            n = pend.pop(0); vf.wait(n)
            if fmarks and n in fmarks: stamp(["ln1", "ml_ret", "q_ack", "pollret"][fmarks.index(n)])
            if n[0] == "G": rd_B(int(n[1:]))
            elif n[0] == "D": rd_D(int(n[1:]))
        hseen = False; k = 0
        for n in order[sum(earlyF):]:
            win = ramp[k] if (ramp and k < len(ramp)) else 2*fwin
            k += 1
            if n == "H":
                if not setup: f_setup(vf); setup = True
                while sum(map(cost, pend)) > fwin: retire()
                stamp("ph2_a")
                ld_H(vf); hseen = True; npre = len(pend)
                continue
            if not hseen:
                if sum(map(cost, pend)) + cost(n) > win and not setup: f_setup(vf); setup = True
                while sum(map(cost, pend)) + cost(n) > win: retire()
            ld_any(vf, n)
            pend.append(n)
        for _ in range(npre): retire()
        vf.wait("xh")
        A(f"v_lshlrev_b32 {vr(vX4)}, 16, {vr(vX4+2)}")
        A(f"v_and_b32 {vr(vX4+1)}, {sr(sHi)}, {vr(vX4+2)}")
        A(f"v_lshlrev_b32 {vr(vX4+2)}, 16, {vr(vX4+3)}")
        A(f"v_and_b32 {vr(vX4+3)}, {sr(sHi)}, {vr(vX4+3)}")
        exec_n(36)
        h_sum(vf)
        A(f"s_cbranch_vccz L_hspin{tagl}_ok")
        A(f"L_hspin{tagl}:")
        t_ = VM(A)
        for p in range(8): t_.issue(f"H{p}", f"global_load_dwordx4 {vr(vGa+4*p,4)}, {vr(vt[1])}, {sr(pWS,2)} offset:{256*p} sc1")
        h_sum(t_)
        loop_tail(f"L_hspin{tagl}")
        if not spin_cap: A(f"L_hspin{tagl}_ok:")
        full_exec()
        stamp("gath")
        for t in range(9): A(f"ds_read_b128 {vr(vAf+4*t,4)}, {vr(vt[2])} offset:{HT+64*t}")
        A(f"v_mov_b32 {vr(vt[8])}, 0"); A(f"v_mov_b32 {vr(vt[9])}, 0")
        A(f"s_movk_i32 {sr(st0)}, 0x3f80")
        exec_n(36)
        for k in range(4):
            A(f"v_dot2_f32_bf16 {vr(vt[8])}, {vr(vP+k)}, {sr(st0)}, {vr(vt[8])}")
            A(f"v_dot2_f32_bf16 {vr(vt[9])}, {vr(vP+k)}, {vr(vP+k)}, {vr(vt[9])}")
        full_exec()
        red = [f"v_permlane32_swap_b32 {vr(vt[8])}, {vr(vt[9])}", f"v_add_f32 {vr(vt[8])}, {vr(vt[8])}, {vr(vt[9])}\nv_mov_b32 {vr(vt[9])}, {vr(vt[8])}",
               f"v_permlane16_swap_b32 {vr(vt[8])}, {vr(vt[9])}", f"v_add_f32 {vr(vt[8])}, {vr(vt[8])}, {vr(vt[9])}"]
        red += [f"v_add_f32_dpp {vr(vt[8])}, {vr(vt[8])}, {vr(vt[8])} row_ror:{sh} row_mask:0xf bank_mask:0xf" for sh in (8, 4, 2, 1)]
        lateG = [int(n[1:]) for n in pend if n[0] == "G"]
        tl = [t for t in range(9) if 2*t in lateG or 2*t+1 in lateG]
        ri = 0
        for t in range(9):
            if t in tl: continue
            A(f"s_waitcnt lgkmcnt({8-t})")
            smf(vD, vAf+4*t, vBig+8*t)
            if t >= 1: A(red[ri]); ri += 1
        def upto(j):
            cnt = 0
            while any(n[0] == "G" and int(n[1:]) <= j for n in pend):
                if pend[0][0] in "GD": cnt += 2
                retire()
            return cnt
        if tl: upto(2*tl[0]+1)
        for i, t in enumerate(tl):
            c = upto(2*tl[i+1]+1) if i + 1 < len(tl) else 0
            A(f"s_waitcnt lgkmcnt({min(c, 15)})")
            smf(vD, vAf+4*t, vBig+8*t)
            if ri < len(red): A(red[ri]); ri += 1
        while ri < len(red): A(red[ri]); ri += 1
        A(f"ds_write_b32 {vr(vVa)}, {vr(vt[8])} offset:{ST}")
        stamp("g_done")
        A(f"v_lshlrev_b32 {vr(vt[8])}, 2, {vr(vL)}")
        A(f"v_mov_b32 {vr(vt[9])}, 0")
        exec_n(32)
        A(f"ds_write_b128 {vr(vt[3])}, {vr(vD,4)} offset:{PART}")
        full_exec()
        A("s_waitcnt lgkmcnt(0)")
        bar()
        return vf, pend
    A(f"s_cmp_eq_u32 {sr(sW)}, 3")
    A("s_cbranch_scc0 L_Fd")
    f_path(False, "a")
    A("s_branch L_fin")
    A("L_Fd:")
    vf, pend = f_path(True, "b")
    A(f"ds_read_b128 {vr(vGa+8,4)}, {vr(vt[9])} offset:{ST}")
    A(f"ds_read_b128 {vr(vGa+12,4)}, {vr(vt[9])} offset:{ST+16}")
    for w in range(4): A(f"ds_read2st64_b32 {vr(vGa+2*w,2)}, {vr(vt[8])} offset0:{PART//256+2*w} offset1:{PART//256+2*w+1}")
    c0 = -2.0 * 0.7978845608028654 * LOG2E
    A(f"s_mov_b32 {sr(st0)}, {hex(f2u(1.0/576))}")
    A(f"s_mov_b32 {sr(st1)}, {hex(f2u(c0*0.044715))}")
    A(f"v_mov_b32 {vr(vt[10])}, {hex(f2u(c0))}")
    A(f"v_mov_b32 {vr(vt[11])}, {hex(f2u(1e-5))}")
    A("s_waitcnt lgkmcnt(4)")
    pk_add4(vGa+8, vGa+8, vGa+12)
    A(f"v_pk_add_f32 {vr(vGa+8,2)}, {vr(vGa+8,2)}, {vr(vGa+10,2)}")
    A(f"v_mul_f32 {vr(vGa+8)}, {sr(st0)}, {vr(vGa+8)}                 ; mean")
    A(f"v_mul_f32 {vr(vGa+9)}, {sr(st0)}, {vr(vGa+9)}")
    A(f"v_fma_f32 {vr(vGa+9)}, -{vr(vGa+8)}, {vr(vGa+8)}, {vr(vGa+9)}")
    A(f"v_max_f32 {vr(vGa+9)}, 0, {vr(vGa+9)}")
    A(f"v_add_f32 {vr(vGa+9)}, {vr(vGa+9)}, {vr(vt[11])}")
    A(f"v_rsq_f32 {vr(vGa+9)}, {vr(vGa+9)}")
    A("s_waitcnt lgkmcnt(0)")
    pk_add4(vGa, vGa, vGa+4)
    A(f"v_pk_add_f32 {vr(vGa,2)}, {vr(vGa,2)}, {vr(vGa+2,2)}")
    A(f"v_fma_f32 {vr(vGa)}, -{vr(vGa+8)}, {vr(vGa+1)}, {vr(vGa)}")
    A(f"v_mul_f32 {vr(vGa)}, {vr(vGa)}, {vr(vGa+9)}")
    A(f"v_mul_f32 {vr(vGa+2)}, {vr(vGa)}, {vr(vGa)}")
    A(f"v_fma_f32 {vr(vGa+2)}, {vr(vGa+2)}, {sr(st1)}, {vr(vt[10])}")
    A(f"v_mul_f32 {vr(vGa+2)}, {vr(vGa+2)}, {vr(vGa)}")
    A(f"v_exp_f32 {vr(vGa+2)}, {vr(vGa+2)}")
    A(f"v_permlane32_swap_b32 {vr(vGa)}, {vr(vGa+1)}")
    A(f"v_add_f32 {vr(vGa+2)}, 1.0, {vr(vGa+2)}")
    A(f"v_rcp_f32 {vr(vGa+2)}, {vr(vGa+2)}")
    A(f"v_mul_f32 {vr(vGa)}, {vr(vGa)}, {vr(vGa+1)}")
    A(f"v_mul_f32 {vr(vGa)}, {vr(vGa)}, {vr(vGa+2)}")
    A(f"v_cvt_pk_bf16_f32 {vr(vGa)}, {vr(vGa)}, 0")
    exec_n(32)
    A(f"ds_write_b32 {vr(vt[4])}, {vr(vGa)} offset:{HD}")
    full_exec()
    for tt in range(3):
        for kb in range(2): A(f"ds_read_b128 {vr(vAf+8*tt+4*kb,4)}, {vr(vt[5+tt])} offset:{HD+64*kb}")
    late = [int(n[1:]) for n in pend]
    for u in range(6):
        if 2*u not in late and 2*u+1 not in late:
            A(f"s_waitcnt lgkmcnt({5-u})")
            smf(vD2, vAf+4*u, vDn+8*u)
    for n in pend:
        vf.wait(n); rd_D(int(n[1:]))
    us = [u for u in range(6) if 2*u in late or 2*u+1 in late]
    for u in us:
        lastpos = max(late.index(j) for j in (2*u, 2*u+1) if j in late)
        A(f"s_waitcnt lgkmcnt({min(15, 2*(len(late)-1-lastpos))})")
        smf(vD2, vAf+4*u, vDn+8*u)
    A(f"s_lshr_b32 {sr(st0)}, {sr(sF)}, 3")
    A(f"s_mul_i32 {sr(st0)}, {sr(st0)}, {144*128}")
    A(f"s_and_b32 {sr(st1)}, {sr(sF)}, 7")
    A(f"s_lshl4_add_u32 {sr(st0)}, {sr(st1)}, {sr(st0)}")
    A(f"s_add_u32 {sr(st0)}, {sr(st0)}, {YOFF}")
    A(f"v_lshl_add_u32 {vr(vt[0])}, {vr(vL)}, 7, {sr(st0)}")
    exec_n(48)
    tag_insert(vD2)
    A(f"global_store_dwordx4 {vr(vKa)}, {vr(vD2,4)}, {sr(pWS,2)} sc1")
    full_exec()
    stamp("y_pub")
    A(f"s_cmp_eq_u32 {sr(sW)}, 0")
    A("s_cbranch_scc0 L_fin")
    A(f"v_add_u32 {vr(vt[1])}, {48*128}, {vr(vt[0])}")
    A(f"v_add_u32 {vr(vt[2])}, {96*128}, {vr(vt[0])}")
    A(f"s_mul_i32 {sr(st0)}, {sr(sF)}, 1821")
    A(f"s_lshr_b32 {sr(st0)}, {sr(st0)}, 16")
    A(f"s_mul_i32 {sr(st1)}, {sr(st0)}, 36")
    A(f"s_sub_u32 {sr(st1)}, {sr(sF)}, {sr(st1)}")
    A(f"s_mul_i32 {sr(st2)}, {sr(sP)}, 18")
    A(f"s_add_u32 {sr(st1)}, {sr(st1)}, {sr(st2)}")
    A(f"s_sub_u32 {sr(st2)}, {sr(st1)}, 36")
    A(f"s_min_u32 {sr(st1)}, {sr(st1)}, {sr(st2)}")
    A(f"s_mul_i32 {sr(st0)}, {sr(st0)}, 640")
    A(f"s_lshl4_add_u32 {sr(st0)}, {sr(st1)}, {sr(st0)}")
    A(f"v_lshl_add_u32 {vr(vt[3])}, {vr(vG)}, 2, {sr(st0)}")
    A(f"ds_read_b32 {vr(vt[4])}, {vr(vt[3])} offset:{HT}")
    A(f"s_lshl_b32 {sr(st0)}, {sr(sF)}, 3")
    A(f"v_lshl_add_u32 {vr(vt[3])}, {vr(vG)}, 1, {sr(st0)}")
    zero4(vP)
    A("s_waitcnt lgkmcnt(0)")
    A(f"v_lshlrev_b32 {vr(vt[4])}, 16, {vr(vt[4])}")
    exec_n(48)
    A("s_waitcnt vmcnt(0)")
    A("L_rspin:")
    for k in range(3): A(f"global_load_dwordx4 {vr(vGa+4*k,4)}, {vr(vt[k])}, {sr(pWS,2)} sc1")
    A("s_waitcnt vmcnt(2)"); tag_check(vGa, True)
    A("s_waitcnt vmcnt(1)"); pk_add4(vP, vGa, vGa+4); tag_check(vGa+4, False)
    A("s_waitcnt vmcnt(0)"); pk_add4(vP, vP, vGa+8); tag_check(vGa+8, False)
    tag_done()
    loop_tail("L_rspin")
    full_exec()
    stamp("y_gath")
    A(f"v_permlane32_swap_b32 {vr(vP)}, {vr(vP+2)}")
    A(f"v_permlane32_swap_b32 {vr(vP+1)}, {vr(vP+3)}")
    A(f"v_pk_add_f32 {vr(vP,2)}, {vr(vP,2)}, {vr(vP+2,2)}")
    A(f"v_permlane16_swap_b32 {vr(vP)}, {vr(vP+1)}")
    A(f"v_add_f32 {vr(vP)}, {vr(vP)}, {vr(vP+1)}")
    dpp_red("v_add_f32", vP)
    bf16r(vP, vP)
    A(f"v_add_f32 {vr(vP)}, {vr(vP)}, {vr(vt[4])}")
    A(f"v_cvt_pk_bf16_f32 {vr(vP)}, {vr(vP)}, 0")
    A("s_mov_b32 exec_lo, 0x00010001"); A("s_mov_b32 exec_hi, 0x00010001")
    A(f"global_store_short {vr(vt[3])}, {vr(vP)}, {sr(pOUT,2)}")
    A(f"s_cmp_eq_u32 {sr(sF)}, 0")
    A("s_cbranch_scc0 L_fin0")
    exec_n(1)
    A(f"v_mov_b32 {vr(vt[0])}, 0")
    A(f"global_store_dword {vr(vt[0])}, {vr(vT)}, {sr(pWS,2)}")
    if amp or dbg: stamp("end")
    if dbg:
        A("s_waitcnt lgkmcnt(0)")
        for j, (nm, r) in enumerate(stamps):
            A(f"s_sub_u32 {sr(st0)}, {sr(r)}, {sr(stamps[0][1])}")
            A(f"v_mov_b32 {vr(vt[1])}, {sr(st0)}")
            A(f"global_store_dword {vr(vt[0])}, {vr(vt[1])}, s[28:29] offset:{4*j}")
    if amp:
        A(f"s_memrealtime {sr(sp1,2)}"); A("s_waitcnt lgkmcnt(0)")
        d = dict(stamps)
        A(f"s_sub_u32 {sr(st0)}, {sr(d[amp[0]])}, {sr(d['start'])}")
        A(f"s_mul_i32 {sr(st0)}, {sr(st0)}, {amp[1]}")
        A(f"s_min_u32 {sr(st0)}, {sr(st0)}, 100000")
        A(f"s_mov_b32 {sr(st1)}, {sr(sp1)}")
        A("L_amp:")
        A(f"s_memrealtime {sr(sp1,2)}"); A("s_waitcnt lgkmcnt(0)")
        A(f"s_sub_u32 {sr(st2)}, {sr(sp1)}, {sr(st1)}")
        A(f"s_cmp_lt_u32 {sr(st2)}, {sr(st0)}")
        A("s_cbranch_scc1 L_amp")
    A("L_fin0:")
    full_exec()
    A("s_branch L_fin")
    A("L_helper:")
    A(f"s_load_dword {sr(sE)}, {sr(pWS,2)}, 0")
    stamp("issued0")
    if wqx: A(f"s_mov_b32 {sr(st0)}, {sr(sX)}")
    else: A(f"s_lshr_b32 {sr(st0)}, {sr(sS)}, 1")
    A(f"s_lshl3_add_u32 {sr(st3)}, {sr(st1)}, {sr(st0)}")
    A(f"s_lshl_b32 {sr(st3)}, {sr(st3)}, 9")
    A(f"s_add_u32 {sr(st3)}, {sr(st3)}, {QOFF}")
    A(f"v_add_u32 {vr(vDa)}, {sr(st3)}, {vr(vL16)}")
    zero4(vD)
    for k in range(6): A(f"ds_write_b128 {vr(vL16)}, {vr(vD,4)} offset:{PT+1024*k}")
    for k in range(4): A(f"v_mov_b32 {vr(vP+k)}, 0x3f80")
    A(f"ds_write_b128 {vr(vL16)}, {vr(vP,4)} offset:{ONES}")
    common_consts()
    x_frag_addr(vt[0]); qpart_addr(vt[1])
    e = vGa
    vh.wait("xm")
    for k in range(4):
        A(f"v_lshlrev_b32 {vr(e+2*k)}, 16, {vr(vX4+k)}")
        A(f"v_and_b32 {vr(e+2*k+1)}, {sr(sHi)}, {vr(vX4+k)}")
    A(f"v_lshlrev_b32 {vr(e+8)}, 16, {vr(vKa)}")
    A(f"v_add_f32 {vr(vt[4])}, {vr(e)}, {vr(e+1)}")
    A(f"v_mul_f32 {vr(vt[5])}, {vr(e)}, {vr(e)}")
    for k in range(1, 9):
        if k >= 2: A(f"v_add_f32 {vr(vt[4])}, {vr(vt[4])}, {vr(e+k)}")
        A(f"v_fmac_f32 {vr(vt[5])}, {vr(e+k)}, {vr(e+k)}")
    wave_sum2(vt[4], vt[5], vt[6])
    A(f"v_mul_f32 {vr(vP)}, {hex(f2u(1.0/576))}, {vr(vt[4])}")
    A(f"v_mov_b32 {vr(vP+1)}, {vr(vP)}")
    A(f"v_lshlrev_b32 {vr(vt[6])}, 16, {vr(vVa)}")
    A(f"v_and_b32 {vr(vt[7])}, {sr(sHi)}, {vr(vVa)}")
    A(f"v_permlane32_swap_b32 {vr(vP)}, {vr(vP+1)}")
    A(f"v_fma_f32 {vr(vP+1)}, -{vr(vP)}, {vr(vP)}, {vr(vP+1)}")
    A(f"v_max_f32 {vr(vP+1)}, 0, {vr(vP+1)}")
    bf16r(vP+1, vP+1)
    A(f"v_add_f32 {vr(vP+1)}, {hex(f2u(1e-5))}, {vr(vP+1)}")
    bf16r(vP+1, vP+1)
    A(f"v_sqrt_f32 {vr(vP+1)}, {vr(vP+1)}")
    bf16r(vP, vP)
    bf16r(vP+1, vP+1)
    A(f"v_rcp_f32 {vr(vP+1)}, {vr(vP+1)}")
    A(f"v_sub_f32 {vr(vt[6])}, {vr(vt[6])}, {vr(vP)}")
    A(f"v_sub_f32 {vr(vt[7])}, {vr(vt[7])}, {vr(vP)}")
    bf16r(vt[6], vt[6]); bf16r(vt[7], vt[7])
    A(f"v_mul_f32 {vr(vt[6])}, {vr(vt[6])}, {vr(vP+1)}")
    A(f"v_mul_f32 {vr(vt[7])}, {vr(vt[7])}, {vr(vP+1)}")
    A(f"v_cvt_pk_bf16_f32 {vr(vt[6])}, {vr(vt[6])}, 0")
    A(f"v_cvt_pk_bf16_f32 {vr(vt[7])}, {vr(vt[7])}, 0")
    A(f"v_add_u32 {vr(vt[8])}, {XE}, {vr(vL16)}")
    exec_n(36)
    A(f"ds_write2_b32 {vr(vt[8])}, {vr(vt[6])}, {vr(vt[7])} offset0:0 offset1:2")
    A(f"ds_write2_b32 {vr(vt[8])}, {vr(vt[6])}, {vr(vt[7])} offset0:{(XO-XE)//4+1} offset1:{(XO-XE)//4+3}")
    full_exec()
    A(f"ds_read_b128 {vr(vAf,4)}, {vr(vt[0])} offset:{XE}")
    A("s_waitcnt lgkmcnt(0)")
    stamp("ln1")
    bar()
    A(f"s_add_u32 {sr(sT)}, {sr(sE)}, 0x01010101")
    A(f"v_mov_b32 {vr(vT)}, {sr(sT)}")
    A("s_waitcnt vmcnt(0)")
    stamp("wq_landed")
    smf(vD, vAf, vWq)
    A(f"s_lshl_b32 {sr(st0)}, {sr(sH)}, 13")
    A(f"s_add_u32 {sr(st0)}, {sr(st0)}, {QOFF}")
    A(f"v_lshrrev_b32 {vr(vt[2])}, 5, {vr(vL)}")
    A(f"v_mul_u32_u24 {vr(vt[3])}, {4096-512}, {vr(vt[2])}")
    A(f"v_add3_u32 {vr(vt[3])}, {vr(vt[3])}, {vr(vL16)}, {sr(st0)}")
    A(f"v_lshlrev_b32 {vr(vt[4])}, 3, {vr(vL)}")
    exec_n(32)
    A(f"ds_write_b128 {vr(vt[1])}, {vr(vD,4)} offset:{PART}")
    A("s_waitcnt lgkmcnt(0)")
    bar()
    for w in range(5): A(f"ds_read_b128 {vr(vGa+4*w,4)}, {vr(vL16)} offset:{PART+512*w}")
    for w in range(1, 5):
        A(f"s_waitcnt lgkmcnt({4-w})")
        pk_add4(vD, vGa if w == 1 else vD, vGa+4*w)
    tag_insert(vD)
    A(f"global_store_dwordx4 {vr(vDa)}, {vr(vD,4)}, {sr(pWS,2)} sc1")
    full_exec()
    stamp("q_pub")
    A(f"s_mul_i32 {sr(st0)}, {sr(sLI)}, 1152")
    A(f"s_add_u32 {sr(st0)}, {sr(st0)}, {OOFF}")
    A(f"v_add_u32 {vr(vDa)}, {sr(st0)}, {vr(vL16)}")
    A(f"v_lshlrev_b32 {vr(vt[5])}, 4, {vr(vt[2])}")
    if qdelay: A("s_waitcnt vmcnt(0)")
    stamp("q_ack")
    A("L_qspin:")
    for p in range(8): A(f"global_load_dwordx4 {vr(vGa+4*p,4)}, {vr(vt[3])}, {sr(pWS,2)} offset:{512*p} sc1")
    for p in range(8):
        A(f"s_waitcnt vmcnt({7-p})")
        if p: pk_add4(vP, vGa if p == 1 else vP, vGa+4*p)
        if p == 7:
            A(f"v_cvt_pk_bf16_f32 {vr(vP)}, {vr(vP)}, {vr(vP+1)}")
            A(f"v_cvt_pk_bf16_f32 {vr(vP+1)}, {vr(vP+2)}, {vr(vP+3)}")
            A(f"ds_write_b64 {vr(vt[4])}, {vr(vP,2)} offset:{QB}")
        tag_check(vGa+4*p, p == 0)
    tag_done()
    loop_tail("L_qspin")
    A("s_waitcnt lgkmcnt(0)")
    stamp("pollret")
    bar()
    A(f"s_mov_b32 {sr(st1)}, {hex(f2u(LOG2E))}")
    A(f"s_mov_b32 {sr(st2)}, 0x05040100")
    A(f"s_mov_b32 {sr(st3)}, 0x07060302")
    bar()
    A(f"ds_read_b128 {vr(vGa,4)}, {vr(vt[5])} offset:{MM}")
    A(f"ds_read_b128 {vr(vGa+4,4)}, {vr(vt[5])} offset:{LL}")
    A("s_waitcnt lgkmcnt(1)")
    A(f"v_max3_f32 {vr(vP)}, {vr(vGa)}, {vr(vGa+1)}, {vr(vGa+2)}")
    A(f"v_max_f32 {vr(vP)}, {vr(vP)}, {vr(vGa+3)}")
    for w in range(4): A(f"v_sub_f32 {vr(vGa+w)}, {vr(vGa+w)}, {vr(vP)}")
    for w in range(4): A(f"v_mul_f32 {vr(vGa+w)}, {sr(st1)}, {vr(vGa+w)}")
    for w in range(4): A(f"v_exp_f32 {vr(vGa+w)}, {vr(vGa+w)}")
    A("s_waitcnt lgkmcnt(0)")
    A(f"v_mul_f32 {vr(vP+1)}, {vr(vGa)}, {vr(vGa+4)}")
    for w in range(1, 4): A(f"v_fmac_f32 {vr(vP+1)}, {vr(vGa+w)}, {vr(vGa+4+w)}")
    A(f"v_rcp_f32 {vr(vt[6])}, {vr(vP+1)}")
    A(f"v_mov_b32 {vr(vP+2)}, 0")
    A(f"v_mov_b32 {vr(vP+3)}, {vr(vT)}")
    A(f"v_and_b32 {vr(vt[7])}, 3, v0")
    A(f"v_lshl_add_u32 {vr(vt[7])}, {vr(vt[7])}, 5, {vr(vt[5])}")
    A(f"v_add_u32 {vr(vt[7])}, {sr(st0)}, {vr(vt[7])}")
    A("s_mov_b32 exec_lo, 15"); A("s_mov_b32 exec_hi, 15")
    A(f"global_store_dwordx4 {vr(vt[7])}, {vr(vP,4)}, {sr(pWS,2)} offset:1024 sc1")
    full_exec()
    for w in range(4): A(f"v_mul_f32 {vr(vX4+w)}, {vr(vGa+w)}, {vr(vt[6])}")
    bar()
    for w in range(4): A(f"ds_read_b128 {vr(vGa+4*w,4)}, {vr(vL16)} offset:{OW+1024*w}")
    for w in range(4):
        A(f"s_waitcnt lgkmcnt({3-w})")
        f = vX4 + (w & ~1); sel = f"op_sel:[0,{w&1}{',0' if w else ''}] op_sel_hi:[1,{w&1}{',1' if w else ''}]"
        for hh in range(2):
            if w == 0: A(f"v_pk_mul_f32 {vr(vD+2*hh,2)}, {vr(vGa+2*hh,2)}, {vr(f,2)} {sel}")
            else: A(f"v_pk_fma_f32 {vr(vD+2*hh,2)}, {vr(vGa+4*w+2*hh,2)}, {vr(f,2)}, {vr(vD+2*hh,2)} {sel}")
    A(f"v_cvt_pk_bf16_f32 {vr(vD+1)}, {vr(vD)}, {vr(vD+1)}")
    A(f"v_cvt_pk_bf16_f32 {vr(vD+2)}, 0, {vr(vD+2)}")
    A(f"v_cvt_pk_bf16_f32 {vr(vD+3)}, 0, {vr(vD+3)}")
    A(f"v_perm_b32 {vr(vD)}, {vr(vD+1)}, {vr(vT)}, {sr(st2)}")
    A(f"v_perm_b32 {vr(vD+1)}, {vr(vD+1)}, {vr(vT)}, {sr(st3)}")
    A(f"global_store_dwordx4 {vr(vDa)}, {vr(vD,4)}, {sr(pWS,2)} sc1")
    stamp("o_pub")
    if b3c: bar()
    A(f"s_cmp_eq_u32 {sr(sRole)}, 1")
    A("s_cbranch_scc0 L_fin")
    A(f"s_lshl3_add_u32 {sr(st0)}, {sr(sC)}, {sr(sX)}")
    A(f"s_lshl_b32 {sr(st0)}, {sr(st0)}, 8")
    A(f"s_add_u32 {sr(st0)}, {sr(st0)}, {HOFF}")
    A(f"v_add_u32 {vr(vDa)}, {sr(st0)}, {vr(vL16)}")
    exec_n(16)
    bar()
    for w in range(4): A(f"ds_read_b128 {vr(vGa+4*w,4)}, {vr(vL16)} offset:{PART+512*w}")
    for w in range(1, 4):
        A(f"s_waitcnt lgkmcnt({3-w})")
        pk_add4(vD, vGa if w == 1 else vD, vGa+4*w)
    tag_insert(vD)
    A(f"global_store_dwordx4 {vr(vDa)}, {vr(vD,4)}, {sr(pWS,2)} sc1")
    full_exec()
    stamp("y_pub")
    A("L_fin:")
    if diag:
        stamp("end")
        A("s_waitcnt lgkmcnt(0)")
        A(f"s_mul_i32 {sr(st0)}, s2, 5")
        A(f"s_add_u32 {sr(st0)}, {sr(st0)}, {sr(sW)}")
        A(f"s_lshl_b32 {sr(st0)}, {sr(st0)}, 7")
        A(f"s_add_u32 {sr(st0)}, {sr(st0)}, {DIAGOFF}")
        A(f"v_mov_b32 {vr(vt[0])}, {sr(st0)}")
        exec_n(1)
        for j, (nm, r) in enumerate(stamps + [("cnt", sCnt), ("role", sRole)]):
            A(f"v_mov_b32 {vr(vt[1])}, {sr(r)}")
            A(f"global_store_dword {vr(vt[0])}, {vr(vt[1])}, {sr(pWS,2)} offset:{4*j}")
    A("L_end:")
    A("s_endpgm")
    A("L_code_end:")
    nv = V.hi
    out = HEADER
    out += f"; @launch grid=(256,1,1) block=(320,1,1) lds={LDS_BYTES}\n"
    out += '.amdgcn_target "amdgcn-amd-amdhsa--gfx950"\n.text\n'
    out += f".globl {NAME}_kernel\n.p2align 8\n.type {NAME}_kernel,@function\n{NAME}_kernel:\n"
    out += A.text()
    out += '.section .rodata,"a"\n.p2align 6\n'
    out += f".amdhsa_kernel {NAME}_kernel\n"
    out += f"  .amdhsa_next_free_vgpr {nv}\n  .amdhsa_next_free_sgpr {S.hi}\n  .amdhsa_accum_offset {(nv+3)//4*4}\n"
    out += "  .amdhsa_group_segment_fixed_size 0\n  .amdhsa_kernarg_size 96\n  .amdhsa_user_sgpr_count 2\n"
    out += "  .amdhsa_user_sgpr_kernarg_segment_ptr 1\n  .amdhsa_system_sgpr_workgroup_id_x 1\n"
    out += "  .amdhsa_float_denorm_mode_32 3\n"
    out += ".end_amdhsa_kernel\n"
    return out, [n for n, _ in stamps] + ["cnt", "role"]

if __name__ == "__main__":
    kw = {}
    for a in sys.argv[2:]:
        k, v = a.split("=", 1); kw[k] = eval(v)
    txt, names = gen(**kw)
    open(sys.argv[1], "w").write(txt)
    print("written", sys.argv[1], names)
```

```python
import sys, struct
from asmlib import *

NAME = "sequential_preLN__sliding_block_cached__glu_gated_geglu__decode"
HEADER = open("cdna_kernels/%s.s.ref" % NAME).read().split("; Override launch")[0]
def f2u(x): return struct.unpack("<I", struct.pack("<f", x))[0]
LOG2E = 1.4426950408889634

QOFF, OOFF, HOFF, YOFF, DIAGOFF = 0x1000, 0x30000, 0x80000, 0x90000, 0x100000
ADELTA = 0x140000
IBW, IBF = 0xE8000, 0xF0000
PART, QB, MM, LL, ST, HD, OW, HT, ONES = 0x0, 0xA00, 0xC00, 0xC20, 0xC40, 0xD00, 0x1000, 0x2000, 0x2C00
PT, XE, XO, ZERO = 0x3000, 0x4000, 0x4280, 0x4600
KL, WB = 0x5000, 0xE000
DB = KL
LDS_BYTES = 0x20000

class VM:
    def __init__(self, A, ops=None): self.A = A; self.ops = list(ops or [])
    def issue(self, name, text): self.A(text); self.ops.append(name)
    def note(self, name): self.ops.append(name)
    def cnt(self, name): return len(self.ops) - 1 - max(i for i, n in enumerate(self.ops) if n == name)
    def wait(self, name): self.A(f"s_waitcnt vmcnt({self.cnt(name)})")
    def copy(self): return VM(self.A, self.ops)

def gen(diag=False, nt="nt", ntG="", ntD="", ntW="", depth=5, b0_after=1,
        earlyF=(1, 1, 1), earlyW=(1, 2, 1), forder=None, fwin=4, wwin=8, ml_at=13, b3c=True, rot=True,
        spin_cap=True, codepf=True, amp=None, dbg=False, help_c3=True, qdelay=True, wqx=False, npf=3, ramp=None, c3_early=False, kvx=7, fmarks=None, sD=3, wD=2, c3rows=40, c3slot=1, ntP='', mlo=False, depth2=None, d2at='K3', hwin=None, sG=0, hpend=2, ntQ=None, kplan=None, qbar='K7', pre2=0, oflag='B3', hflag=5, wpend=4, sWo=0, flags=False, fstart=None, dwin=None, ymask=True, kvseq=None, kvdepth=None, pfirst=True, wramp=None, oflags=False,
        preF=(), preW=(), hold=None, dpos='afterH', hpack=True, lite=False, swait=0, qfast=False, ofast=True, nA=6, prep=True):
    A = Asm()
    if ntQ is None: ntQ = nt
    if kplan is None: kplan = (depth-4, 1, 1, 1, 1)
    V = Regs("v", 1, 256); S = Regs("s", 32, 102)
    pX, pK, pV, pWQ, pWO, pG, pU, pD, pOUT, pWS = 8, 10, 12, 14, 16, 20, 22, 24, 26, 30
    sX, sI, sLI, sH, sS, sW, sT, sE = [S.alloc() for _ in range(8)]
    sRole, sC, sF, sP = [S.alloc() for _ in range(4)]
    st0, st1, st2, st3 = [S.alloc() for _ in range(4)]
    sSelIns = [S.alloc() for _ in range(4)]
    sSelChk = S.alloc(); sCnt = S.alloc(); sHi = S.alloc(); sMb = S.alloc(); sMd = S.alloc()
    sp0 = S.alloc(2, 2); sp1 = S.alloc(2, 2); sStr = S.alloc(2, 2); sWrap = S.alloc(2, 2); sA = S.alloc(2, 2); sAc = S.alloc()
    stamps = []; extra = [4, 6, 18, 28] if not dbg else [4, 6, 18]
    def stamp(name):
        if (diag and (not lite or name in ("start", "end"))) or dbg or (amp and name in ("start", amp[0])):
            d = dict(stamps)
            if name not in d:
                r = extra.pop() if (extra and name != "start") else S.alloc(2, 2); stamps.append((name, r))
            else: r = d[name]
            A(f"s_memrealtime {sr(r,2)}")

    vL, vG, vN, vT, vIdx, vL16, vJunk = [V.alloc() for _ in range(7)]
    vt = [V.alloc() for _ in range(12)]
    vAd = V.alloc(2, 2)
    vKa, vVa, vDa, vRb, vRd, vPf = [V.alloc() for _ in range(6)]
    vD = V.alloc(4, 2); vD2 = V.alloc(4, 2); vP = V.alloc(4, 2); vX4 = V.alloc(4, 2)
    vDn = V.alloc(48, 2)
    vAf = V.alloc(36, 2)
    vGa = V.alloc(32, 2)
    vBig = V.alloc(72, 2)
    vWq = vDn; vKf = vGa; vVv = vBig + 40

    def bar(): A("s_barrier")
    def exec_n(n): A(f"s_bfm_b64 exec, {n}, 0")
    def full_exec(): A("s_mov_b64 exec, -1")
    def zero4(d):
        for k in range(4): A(f"v_mov_b32 {vr(d+k)}, 0")
    def tag_insert(base):
        for k in range(4): A(f"v_perm_b32 {vr(base+k)}, {vr(base+k)}, {vr(vT)}, {sr(sSelIns[k])}")
    def tag_check(base, first):
        A(f"v_perm_b32 {vr(vt[10])}, {vr(base+1)}, {vr(base)}, {sr(sSelChk)}")
        A(f"v_perm_b32 {vr(vt[11])}, {vr(base+3)}, {vr(base+2)}, {sr(sSelChk)}")
        A(f"v_lshl_or_b32 {vr(vt[10])}, {vr(vt[11])}, 16, {vr(vt[10])}")
        if first: A(f"v_xor_b32 {vr(vt[9])}, {vr(vt[10])}, {vr(vT)}")
        else: A(f"v_bitop3_b32 {vr(vt[9])}, {vr(vt[10])}, {vr(vT)}, {vr(vt[9])} bitop3:0xbe      ; (a^b)|c")
    def tag_done(): A(f"v_cmp_ne_u32 vcc, 0, {vr(vt[9])}")
    def set_A():
        A(f"s_add_u32 {sr(sA)}, {sr(pWS)}, {ADELTA}")
        A(f"s_addc_u32 {sr(sA+1)}, {sr(pWS+1)}, 0")
        A(f"s_mov_b32 {sr(sAc)}, 0")
    def loop_tail(lbl, fast=False):
        if fast:
            A(f"s_cbranch_vccz {lbl}_ok")
            A(f"s_add_u32 {sr(sAc)}, {sr(sAc)}, 1")
            A(f"s_cmp_lt_u32 {sr(sAc)}, {nA}")
            A(f"s_cselect_b32 {sr(sA)}, {sr(sA)}, {sr(pWS)}")
            A(f"s_cselect_b32 {sr(sA+1)}, {sr(sA+1)}, {sr(pWS+1)}")
            if spin_cap:
                A(f"s_add_u32 {sr(sCnt)}, {sr(sCnt)}, 1")
                A(f"s_cmp_lt_u32 {sr(sCnt)}, 0x40000")
                A(f"s_cbranch_scc1 {lbl}")
            else: A(f"s_branch {lbl}")
            A(f"{lbl}_ok:")
        elif spin_cap:
            A(f"s_cbranch_vccz {lbl}_ok")
            A(f"s_add_u32 {sr(sCnt)}, {sr(sCnt)}, 1")
            A(f"s_cmp_lt_u32 {sr(sCnt)}, 0x40000")
            A(f"s_cbranch_scc1 {lbl}")
            A(f"{lbl}_ok:")
        else:
            A(f"s_cbranch_vccnz {lbl}")
    def pk_add4(d, a, b):
        A(f"v_pk_add_f32 {vr(d,2)}, {vr(a,2)}, {vr(b,2)}")
        A(f"v_pk_add_f32 {vr(d+2,2)}, {vr(a+2,2)}, {vr(b+2,2)}")
    def smf(d, a, b, mod=""): A(f"v_smfmac_f32_16x16x64_bf16 {vr(d,4)}, {vr(a,4)}, {vr(b,8)}, {vr(vIdx)} {mod}")
    def mfma(d, a, b, first):
        A(f"v_mfma_f32_16x16x32_bf16 {vr(d,4)}, {vr(a,4)}, {vr(b,4)}, {'0' if first else vr(d,4)}")
    def bf16r(dst, src):
        A(f"v_cvt_pk_bf16_f32 {vr(dst)}, 0, {vr(src)}")
    def dpp_red(op, a, first_src=None):
        for i, sh in enumerate((8, 4, 2, 1)):
            s_ = first_src if (i == 0 and first_src is not None) else a
            A(f"{op}_dpp {vr(a)}, {vr(s_)}, {vr(s_)} row_ror:{sh} row_mask:0xf bank_mask:0xf")
    def wave_sum2(a, b, tmp):
        A(f"v_permlane32_swap_b32 {vr(a)}, {vr(b)}")
        A(f"v_add_f32 {vr(a)}, {vr(a)}, {vr(b)}")
        A(f"v_mov_b32 {vr(tmp)}, {vr(a)}")
        A(f"v_permlane16_swap_b32 {vr(a)}, {vr(tmp)}")
        A(f"v_add_f32 {vr(a)}, {vr(a)}, {vr(tmp)}")
        dpp_red("v_add_f32", a)

    def ld_K(vm, t):
        if t:
            A(f"s_addk_i32 m0, 0x400")
            A(f"v_xor_b32 {vr(vt[11])}, {t*1024 + (t&3)*64}, {vr(vKa)}")
        vm.issue(f"K{t}", f"global_load_lds_dwordx4 {vr(vt[11] if t else vKa)}, {sr(pK,2)} {nt}")
    def ld_V(vm, k):
        if k: A(f"v_xor_b32 {vr(vt[11])}, {k*1024}, {vr(vVa)}")
        vm.issue(f"V{k}", f"global_load_dwordx4 {vr(vVv+4*k,4)}, {vr(vt[11] if k else vVa)}, {sr(pV,2)} {nt}")
    def ld_B(vm, j, kind):
        A(f"s_add_u32 m0, {sr(sMb)}, {j*1024}")
        A("s_nop 0")
        vm.issue(f"{kind}{j}", f"global_load_lds_dwordx4 {vr(vAd,2)}, off {ntG if kind == 'G' else ntW}")
        last = 17 if kind == "G" else 15
        if j < last: A(f"v_lshl_add_u64 {vr(vAd,2)}, {sr(sWrap if (kind == 'G' and j == 8) else sStr,2)}, 0, {vr(vAd,2)}")
    def ld_P(vm, j):
        exec_n(16)
        vm.issue(f"P{j}", f"global_load_dword {vr(vJunk)}, {vr(vPf)}, {sr(pWO,2)} {ntP}")
        full_exec()
        if j + 1 < npf: A(f"v_add_u32 {vr(vPf)}, {32*1152}, {vr(vPf)}")
    def rd_B(j):
        for q in range(2): A(f"ds_read_b64 {vr(vBig+4*j+2*q,2)}, {vr(vRb)} offset:{j*1024+q*512}")
    def ld_D(vm, j):
        tt, jj = j >> 2, j & 3
        A(f"s_add_u32 m0, {sr(sMd)}, {j*1024}")
        A(f"v_add_u32 {vr(vt[11])}, {jj*8*1152 + tt*128}, {vr(vDa)}")
        vm.issue(f"D{j}", f"global_load_lds_dwordx4 {vr(vt[11])}, {sr(pD,2)} {ntD}")
    def rd_D(j):
        for q in range(2): A(f"ds_read_b64 {vr(vDn+4*j+2*q,2)}, {vr(vRd)} offset:{j*1024+q*512}")

    stamp("start")
    A("s_cmp_ge_u32 s2, 256")
    A("s_cbranch_scc1 L_end")
    A("s_load_dwordx16 s[8:23], s[0:1], 0")
    A("s_load_dwordx8 s[24:31], s[0:1], 64")
    if codepf:
        A("s_cmp_lt_u32 s2, 248")
        A("s_cbranch_scc1 L_nopf")
        A(f"s_getpc_b64 {sr(sp1,2)}")
        A(f"v_lshlrev_b32 {vr(vt[4])}, 6, v0")
        A(f"v_min_u32 {vr(vt[4])}, L_code_end-.-16, {vr(vt[4])}")
        A(f"global_load_dword {vr(vJunk)}, {vr(vt[4])}, {sr(sp1,2)}")
        A("L_nopf:")
    A(f"v_readfirstlane_b32 {sr(sW)}, v0")
    A(f"v_and_b32 {vr(vN)}, 15, v0")
    A(f"v_bfe_u32 {vr(vG)}, v0, 4, 2")
    A(f"s_and_b32 {sr(sX)}, s2, 7")
    A(f"s_lshr_b32 {sr(sI)}, s2, 3")
    A(f"s_lshl_b32 {sr(sLI)}, {sr(sX)}, 5")
    A(f"s_add_u32 {sr(sLI)}, {sr(sLI)}, {sr(sI)}")
    A(f"s_lshr_b32 {sr(sW)}, {sr(sW)}, 6")
    A(f"s_sub_u32 {sr(sW)}, {sr(sW)}, 1")
    A(f"s_min_u32 {sr(sW)}, {sr(sW)}, 4")
    A(f"s_lshr_b32 {sr(sH)}, {sr(sLI)}, 4")
    A(f"s_and_b32 {sr(sS)}, {sr(sI)}, 15")
    if wqx:
        A(f"s_mul_i32 {sr(st0)}, {sr(sX)}, 72")
        A(f"s_mov_b32 {sr(st1)}, {sr(sI)}")
    else:
        A(f"s_lshr_b32 {sr(st0)}, {sr(sS)}, 1")
        A(f"s_mul_i32 {sr(st0)}, {sr(st0)}, 72")
        A(f"s_and_b32 {sr(st1)}, {sr(sS)}, 1")
        A(f"s_lshl1_add_u32 {sr(st1)}, {sr(sH)}, {sr(st1)}")
    A(f"s_lshl4_add_u32 {sr(st2)}, {sr(sW)}, {sr(st0)}")
    A(f"s_lshl_b32 {sr(st2)}, {sr(st2)}, 5")
    A(f"s_add_u32 {sr(st2)}, {sr(st2)}, {sr(st1)}")
    A(f"s_lshl_b32 {sr(st2)}, {sr(st2)}, 8")
    A(f"v_lshl_add_u32 {vr(vt[0])}, {vr(vN)}, 4, {sr(st2)}")
    A(f"v_lshl_add_u32 {vr(vt[0])}, {vr(vG)}, 13, {vr(vt[0])}")
    A(f"v_and_b32 {vr(vL)}, 63, v0")
    A(f"v_add_u32 {vr(vt[1])}, 0x8000, {vr(vt[0])}")
    A(f"v_lshlrev_b32 {vr(vL16)}, 4, {vr(vL)}")
    A(f"v_lshlrev_b32 {vr(vt[2])}, 1, {vr(vL)}")
    A(f"s_cmp_eq_u32 {sr(sW)}, 4")
    A("s_waitcnt lgkmcnt(0)")
    A("s_cbranch_scc0 L_nx")
    vh = VM(A)
    vh.issue("xa", f"global_load_dwordx4 {vr(vX4,4)}, {vr(vL16)}, {sr(pX,2)}")
    vh.issue("xu", f"global_load_ushort {vr(vKa)}, {vr(vt[2])}, {sr(pX,2)} offset:1024")
    A(f"v_min_u32 {vr(vt[3])}, 35, {vr(vL)}")
    A(f"v_lshl_add_u32 {vr(vt[3])}, {vr(vt[3])}, 1, {sr(st0)}")
    A(f"v_lshlrev_b32 {vr(vt[3])}, 1, {vr(vt[3])}")
    vh.issue("xm", f"global_load_dword {vr(vVa)}, {vr(vt[3])}, {sr(pX,2)}")
    A("L_nx:")
    vm = VM(A)
    for k in range(2):
        vm.issue(f"q{k}", f"global_load_dwordx4 {vr(vWq+4*k,4)}, {vr(vt[k])}, {sr(pWQ,2)} {ntQ}"); vh.note(f"q{k}")
    A("s_cbranch_scc1 L_helper")
    A(f"v_add_u32 {vr(vt[2])}, 0x10000, {vr(vt[0])}")
    A(f"v_add_u32 {vr(vt[3])}, 0x18000, {vr(vt[0])}")
    for k in range(2, 4): vm.issue(f"q{k}", f"global_load_dwordx4 {vr(vWq+4*k,4)}, {vr(vt[k])}, {sr(pWQ,2)} {ntQ}")
    A(f"s_load_dword {sr(sE)}, {sr(pWS,2)}, 0")
    stamp("issued0")
    A(f"s_lshl_b32 {sr(st2)}, {sr(sH)}, 21")
    A(f"s_lshl_b32 {sr(st3)}, {sr(sS)}, 15")
    A(f"s_add_u32 {sr(st2)}, {sr(st2)}, {sr(st3)}")
    A(f"s_lshl_b32 {sr(st3)}, {sr(sW)}, 13")
    A(f"s_add_u32 {sr(st2)}, {sr(st2)}, {sr(st3)}")
    A(f"s_add_u32 {sr(st2)}, {sr(st2)}, 0x180000")
    A(f"s_add_u32 m0, {sr(st3)}, {KL}")
    A(f"s_add_u32 {sr(st3)}, {sr(sS)}, {sr(sW)}")
    A(f"s_and_b32 {sr(st3)}, {sr(st3)}, {kvx}")
    A(f"s_lshl_b32 {sr(st3)}, {sr(st3)}, 10")
    A(f"s_add_u32 {sr(st2)}, {sr(st2)}, {sr(st3)}")
    A(f"v_xor_b32 {vr(vt[0])}, {vr(vN)}, {vr(vG)}")
    A(f"v_lshl_add_u32 {vr(vKa)}, {vr(vt[0])}, 4, {sr(st2)}")
    A(f"v_lshl_add_u32 {vr(vKa)}, {vr(vG)}, 8, {vr(vKa)}")
    seq = [f"K{t}" for t in range(8)] + [f"V{t}" for t in range(8)]
    if kvseq:
        c_ = {"K": 0, "V": 0}; seq = []
        for ch in kvseq: seq.append(f"{ch}{c_[ch]}"); c_[ch] += 1
        assert c_ == {"K": 8, "V": 8}
    nxt = [0]; qpassed = [False]
    def issue_next(n=1):
        for _ in range(n):
            if nxt[0] < len(seq) - (hold if (hold and not qpassed[0]) else 0):
                nm = seq[nxt[0]]; nxt[0] += 1
                (ld_K if nm[0] == "K" else ld_V)(vm, int(nm[1]))
    A(f"v_add_u32 {vr(vVa)}, {sr(st2)}, {vr(vL16)}")
    issue_next(kplan[0])
    def common_consts():
        A(f"s_mov_b32 {sr(sHi)}, 0xffff0000")
        A(f"s_mov_b32 {sr(sCnt)}, 0")
        for k in range(4): A(f"s_mov_b32 {sr(sSelIns[k])}, {hex(0x07060500 + k)}")
        A(f"s_mov_b32 {sr(sSelChk)}, 0x0c0c0400")
        A(f"v_and_b32 {vr(vt[4])}, 3, v0")
        A(f"v_and_b32 {vr(vt[5])}, 1, v0")
        A(f"v_lshlrev_b32 {vr(vt[5])}, 17, {vr(vt[5])}")
        A(f"v_or_b32 {vr(vt[4])}, {vr(vt[4])}, {vr(vt[5])}")
        A(f"v_or_b32 {vr(vt[4])}, 0x10000, {vr(vt[4])}")
        A(f"v_mul_u32_u24 {vr(vIdx)}, 0x5555, {vr(vt[4])}")
        A(f"s_lshr_b32 {sr(sC)}, {sr(sI)}, 4")
        A(f"s_mul_i32 {sr(sC)}, {sr(sC)}, 7")
        A(f"s_add_u32 {sr(sC)}, {sr(sC)}, {sr(sS)}")
        A(f"s_sub_u32 {sr(sC)}, {sr(sC)}, 9")
        A(f"s_mul_i32 {sr(sF)}, {sr(sH)}, 9")
        A(f"s_add_u32 {sr(sF)}, {sr(sF)}, {sr(sS)}")
        A(f"s_cmp_lt_u32 {sr(sC)}, 9")
        A(f"s_cselect_b32 {sr(sRole)}, 1, 2")
        A(f"s_cmp_lt_u32 {sr(sS)}, 9")
        A(f"s_cselect_b32 {sr(sRole)}, 0, {sr(sRole)}")
        A(f"s_and_b32 {sr(sP)}, {sr(sF)}, {1 if rot else 0}")
    common_consts()
    def x_frag_addr(dst):
        A(f"v_bfe_u32 {vr(dst)}, v0, 2, 1")
        A(f"v_mul_u32_u24 {vr(dst)}, {XO-XE}, {vr(dst)}")
        A(f"v_lshl_add_u32 {vr(dst)}, {vr(vG)}, 4, {vr(dst)}")
        A(f"s_lshl_b32 {sr(st0)}, {sr(sW)}, 7")
        A(f"v_add_u32 {vr(dst)}, {sr(st0)}, {vr(dst)}")
    def qpart_addr(dst):
        A(f"v_lshl_add_u32 {vr(dst)}, {vr(vN)}, 1, {vr(vG)}")
        A(f"s_lshl_b32 {sr(st0)}, {sr(sW)}, 9")
        A(f"v_lshl_add_u32 {vr(dst)}, {vr(dst)}, 4, {sr(st0)}")
    x_frag_addr(vt[0]); qpart_addr(vt[1]); zero4(vD)
    for k in range(4):
        if k == b0_after:
            bar()
            A(f"ds_read_b128 {vr(vAf,4)}, {vr(vt[0])} offset:{XE}")
            A(f"ds_read_b128 {vr(vAf+4,4)}, {vr(vt[0])} offset:{XE+64}")
        vm.wait(f"q{k}"); issue_next(kplan[k+1])
    stamp("wq_landed")
    A("s_waitcnt lgkmcnt(0)")
    smf(vD, vAf, vWq); smf(vD, vAf+4, vWq+8)
    A(f"s_add_u32 {sr(sT)}, {sr(sE)}, 0x01010101")
    A(f"v_mov_b32 {vr(vT)}, {sr(sT)}")
    exec_n(32)
    A(f"ds_write_b128 {vr(vt[1])}, {vr(vD,4)} offset:{PART}")
    full_exec()
    A("s_waitcnt lgkmcnt(0)")
    bar()
    done = [0]
    def pace():
        nm = seq[done[0]]
        vm.wait(nm); done[0] += 1
        if nm == qbar: bar(); qpassed[0] = True
        if kvdepth:
            for _ in range(16):
                if nxt[0] - done[0] < kvdepth[min(done[0]-1, len(kvdepth)-1)]: issue_next()
        else:
            issue_next()
            if depth2 and done[0] > seq.index(d2at) and nxt[0] - done[0] < depth2: issue_next()
    pace()
    A(f"v_bfe_u32 {vr(vt[0])}, v0, 3, 2")
    A(f"v_bfe_u32 {vr(vt[1])}, v0, 5, 1")
    A(f"v_lshl_add_u32 {vr(vt[0])}, {vr(vt[0])}, 1, {vr(vt[1])}")
    A(f"v_and_b32 {vr(vt[1])}, 7, v0")
    A(f"v_lshlrev_b32 {vr(vt[1])}, 4, {vr(vt[1])}")
    A(f"s_movk_i32 {sr(st1)}, 1152")
    A(f"v_mad_u32_u24 {vr(vt[2])}, {vr(vt[0])}, {sr(st1)}, {vr(vt[1])}   ; row*1152 + c8*16")
    A(f"s_mul_i32 {sr(st0)}, {sr(sF)}, {32*1152}")
    A(f"s_mul_i32 {sr(st1)}, {sr(sW)}, 384")
    A(f"s_add_u32 {sr(st0)}, {sr(st0)}, {sr(st1)}")
    A(f"v_add_u32 {vr(vDa)}, {sr(st0)}, {vr(vt[2])}")
    A(f"s_mul_i32 {sr(sMb)}, {sr(sW)}, {18*1024}")
    A(f"s_add_u32 {sr(sMb)}, {sr(sMb)}, {WB}")
    A(f"s_mul_i32 {sr(sMd)}, {sr(sW)}, {12*1024}")
    A(f"s_add_u32 {sr(sMd)}, {sr(sMd)}, {DB}")
    A(f"v_lshl_add_u32 {vr(vRb)}, {vr(vL)}, 3, {sr(sMb)}")
    A(f"v_lshl_add_u32 {vr(vRd)}, {vr(vL)}, 3, {sr(sMd)}")
    pace()
    A(f"s_mov_b32 {sr(sStr+1)}, 0")
    A(f"s_cmp_eq_u32 {sr(sRole)}, 0")
    A("s_cbranch_scc1 L_adF")
    A(f"s_lshl_b32 {sr(st0)}, {sr(sX)}, 2")
    A(f"s_add_u32 {sr(st0)}, {sr(st0)}, {sr(sW)}")
    A(f"s_mul_i32 {sr(st0)}, {sr(st0)}, {128*1152}")
    A(f"s_lshl_b32 {sr(st1)}, {sr(sC)}, 7")
    A(f"s_add_u32 {sr(st0)}, {sr(st0)}, {sr(st1)}")
    A(f"v_add_u32 {vr(vt[2])}, {sr(st0)}, {vr(vt[2])}")
    A(f"v_mov_b32 {vr(vAd)}, {sr(pWO)}")
    A(f"v_mov_b32 {vr(vAd+1)}, {sr(pWO+1)}")
    A(f"s_movk_i32 {sr(sStr)}, {8*1152}")
    A(f"s_sub_u32 {sr(st0)}, {sr(sC)}, 9")
    A(f"s_lshl2_add_u32 {sr(st0)}, {sr(st0)}, {sr(sW)}")
    A(f"s_and_b32 {sr(st0)}, {sr(st0)}, 15")
    A(f"s_bitcmp1_b32 {sr(st0)}, 0")
    A(f"s_cselect_b32 {sr(sp0)}, {sr(pU)}, {sr(pG)}")
    A(f"s_cselect_b32 {sr(sp0+1)}, {sr(pU+1)}, {sr(pG+1)}")
    A(f"s_lshr_b32 {sr(st0)}, {sr(st0)}, 1")
    A(f"s_mul_i32 {sr(st0)}, {sr(st0)}, {72*9216}")
    A(f"s_sub_u32 {sr(st1)}, 3, {sr(sX)}")
    A(f"s_and_b32 {sr(st1)}, {sr(st1)}, 7")
    A(f"s_mul_i32 {sr(st2)}, {sr(sX)}, 9")
    A(f"s_add_u32 {sr(st1)}, {sr(st1)}, {sr(st2)}")
    A(f"s_lshl_b32 {sr(st1)}, {sr(st1)}, 7")
    A(f"s_add_u32 {sr(st0)}, {sr(st0)}, {sr(st1)}")
    A(f"s_add_u32 {sr(st0)}, {sr(st0)}, {(72-8*sG-c3rows)*9216}")
    A(f"v_min_u32 {vr(vPf)}, {c3rows-1}, {vr(vL)}")
    A(f"v_mul_u32_u24 {vr(vPf)}, 9216, {vr(vPf)}")
    A(f"v_add_u32 {vr(vPf)}, {sr(st0)}, {vr(vPf)}")
    A("s_branch L_adX")
    A("L_adF:")
    A(f"s_lshl1_add_u32 {sr(st0)}, {sr(sW)}, {sr(sP)}")
    A(f"s_mul_i32 {sr(st0)}, {sr(st0)}, {72*9216}")
    A(f"s_lshl_b32 {sr(st1)}, {sr(sF)}, 6")
    A(f"s_add_u32 {sr(st0)}, {sr(st0)}, {sr(st1)}")
    A(f"v_and_b32 {vr(vt[2])}, 48, {vr(vt[1])}")
    A(f"v_add_u32 {vr(vt[2])}, {sr(st0)}, {vr(vt[2])}")
    A(f"s_movk_i32 {sr(st1)}, 9216")
    A(f"v_mad_u32_u24 {vr(vt[2])}, {vr(vt[0])}, {sr(st1)}, {vr(vt[2])}")
    A(f"v_cmp_gt_u32 vcc, 64, {vr(vt[1])}")
    A(f"v_mov_b32 {vr(vt[3])}, {sr(pU)}")
    A(f"v_mov_b32 {vr(vt[4])}, {sr(pU+1)}")
    A(f"v_mov_b32 {vr(vt[5])}, {sr(pG)}")
    A(f"v_mov_b32 {vr(vt[6])}, {sr(pG+1)}")
    A(f"v_cndmask_b32 {vr(vAd)}, {vr(vt[3])}, {vr(vt[5])}, vcc")
    A(f"v_cndmask_b32 {vr(vAd+1)}, {vr(vt[4])}, {vr(vt[6])}, vcc")
    A(f"s_lshl2_add_u32 {sr(st0)}, {sr(sX)}, {sr(sW)}")
    A(f"s_mul_i32 {sr(st0)}, {sr(st0)}, {128*1152}")
    A(f"s_mul_i32 {sr(st1)}, {sr(sX)}, 18")
    A(f"s_sub_u32 {sr(st1)}, {sr(sF)}, {sr(st1)}")
    A(f"s_lshl_b32 {sr(st1)}, {sr(st1)}, 11")
    A(f"s_add_u32 {sr(st0)}, {sr(st0)}, {sr(st1)}")
    A(f"s_add_u32 {sr(st0)}, {sr(st0)}, {(4-npf)*32*1152}")
    A(f"v_lshl_add_u32 {vr(vPf)}, {vr(vN)}, 7, {sr(st0)}")
    A(f"s_mov_b64 {sr(sp0,2)}, {sr(pG,2)}")
    A(f"s_mov_b32 {sr(sStr)}, {8*9216}")
    A(f"s_mul_i32 {sr(st0)}, {sr(sP)}, {144*9216}")
    A(f"s_sub_u32 {sr(sWrap)}, {8*9216}, {sr(st0)}")
    A(f"s_subb_u32 {sr(sWrap+1)}, 0, 0")
    A("L_adX:")
    A(f"v_add_co_u32 {vr(vAd)}, vcc, {vr(vAd)}, {vr(vt[2])}")
    A(f"v_addc_co_u32 {vr(vAd+1)}, vcc, 0, {vr(vAd+1)}, vcc")
    pace()
    A(f"v_xor_b32 {vr(vt[0])}, {vr(vN)}, {vr(vG)}")
    A(f"s_lshl_b32 {sr(st0)}, {sr(sW)}, 13")
    A(f"s_add_u32 {sr(st0)}, {sr(st0)}, {KL}")
    A(f"v_lshl_add_u32 {vr(vt[0])}, {vr(vt[0])}, 4, {sr(st0)}")
    A(f"v_lshl_add_u32 {vr(vt[0])}, {vr(vN)}, 8, {vr(vt[0])}")
    for i in range(1, 4): A(f"v_xor_b32 {vr(vt[i])}, {64*i}, {vr(vt[0])}")
    A(f"v_bfe_u32 {vr(vt[8])}, v0, 2, 1                        ; (m>>2)&1")
    A(f"v_lshlrev_b32 {vr(vt[4])}, 4, {vr(vG)}")
    A(f"v_lshl_add_u32 {vr(vt[4])}, {vr(vt[8])}, 8, {vr(vt[4])}")
    A(f"s_lshl_b32 {sr(st0)}, {sr(sW)}, 10")
    A(f"v_bfe_u32 {vr(vt[5])}, v0, 2, 2")
    A(f"v_lshl_add_u32 {vr(vt[5])}, {vr(vt[5])}, 8, {sr(st0)}")
    A(f"v_lshl_add_u32 {vr(vt[5])}, {vr(vG)}, 4, {vr(vt[5])}")
    A(f"v_and_b32 {vr(vt[7])}, 1, {vr(vG)}")
    A(f"v_lshl_add_u32 {vr(vt[6])}, {vr(vt[7])}, 9, {sr(st0)}")
    A(f"v_lshl_add_u32 {vr(vt[6])}, {vr(vN)}, 3, {vr(vt[6])}")
    A(f"v_lshrrev_b32 {vr(vt[8])}, 1, {vr(vG)}")
    A(f"v_lshl_add_u32 {vr(vt[6])}, {vr(vt[8])}, 7, {vr(vt[6])}")
    A(f"v_add_u32 {vr(vt[6])}, {PT}, {vr(vt[6])}")
    A(f"v_lshl_add_u32 {vr(vX4)}, {vr(vN)}, 1, {vr(vt[7])}")
    A(f"v_lshl_add_u32 {vr(vX4)}, {vr(vt[8])}, 5, {vr(vX4)}")
    A(f"v_lshl_add_u32 {vr(vX4)}, {vr(vX4)}, 4, {sr(st0)}")
    A(f"s_lshl_b32 {sr(st0)}, {sr(sW)}, 2")
    A(f"v_lshl_add_u32 {vr(vt[7])}, {vr(vt[7])}, 4, {sr(st0)}")
    A(f"s_bfm_b64 {sr(sp1,2)}, 32, 32")
    assert seq.index("K3") >= done[0]
    while nxt[0] < len(seq) or done[0] <= seq.index("K7") or (qbar and done[0] <= seq.index(qbar)):
        nm = seq[done[0]]
        pace()
        if nm in ("K3", "K7"):
            tl = 0 if nm == "K3" else 1
            for i in range(4): A(f"ds_read_b128 {vr(vKf+16*tl+4*i,4)}, {vr(vt[i])} offset:{4096*tl}")
            if tl: stamp("k_landed")
    stamp("v_issued")
    vmF, vmW, vmS = vm.copy(), vm.copy(), vm.copy()
    if forder is None:
        forder = [f"G{j}" for j in range(18)]
    else:
        fo = []
        for tok in forder.split():
            if "-" in tok:
                a, b = tok[1:].split("-"); fo += [f"{tok[0]}{j}" for j in range(int(a), int(b)+1)]
            else: fo.append(tok)
        forder = fo
    if pfirst: forder = [f"P{j}" for j in range(npf)] + forder
    npre = max(len(preF), len(preW))
    earlyF = tuple(preF) + (0,)*(npre-len(preF)) + tuple(earlyF) + (0,)*(5-len(earlyF))
    earlyW = tuple(preW) + (0,)*(npre-len(preW)) + tuple(earlyW) + (0,)*(5-len(earlyW))
    assert all(n[0] in "GP" for n in forder[:sum(earlyF)])
    def ld_any(v_, n):
        j = int(n[1:])
        if n[0] == "G": ld_B(v_, j, "G")
        elif n[0] == "D": ld_D(v_, j)
        else: ld_P(v_, j)
    lab = [0]
    def ld_C3(v_, part):
        h_ = c3rows // 2
        A(f"s_bfm_b64 exec, {h_ if part == 0 else c3rows - h_}, {0 if part == 0 else h_}")
        v_.issue(f"C{part}", f"global_load_dword {vr(vJunk)}, {vr(vPf)}, {sr(sp0,2)} {ntP}")
        full_exec()
    def early_slot(k0):
        k = k0 + npre
        nf, nw = earlyF[k], earlyW[k]
        ns = 1 if (help_c3 and k0 == c3slot) else 0
        if nf == 0 and nw == 0 and ns == 0: return
        lab[0] += 1; L = f"L_E{lab[0]}"
        A(f"s_cmp_eq_u32 {sr(sRole)}, 1"); A(f"s_cbranch_scc1 {L}w")
        A(f"s_cmp_eq_u32 {sr(sRole)}, 0"); A(f"s_cbranch_scc0 {L}{'s' if ns else 'x'}")
        for j in range(nf): ld_any(vmF, forder[sum(earlyF[:k]) + j])
        A(f"s_branch {L}x")
        if ns:
            A(f"{L}s:")
            ld_C3(vmS, 0)
            A(f"s_branch {L}x")
        A(f"{L}w:")
        for j in range(nw): ld_B(vmW, sum(earlyW[:k]) + j, "W")
        A(f"{L}x:")
        return True
    def wait_multi(name):
        c = {0: vmF.cnt(name), 1: vmW.cnt(name), 2: vmS.cnt(name)}
        order = sorted(set(c.values()), reverse=True)
        lab[0] += 1; L = f"L_M{lab[0]}"
        for i, v in enumerate(order):
            A(f"s_waitcnt vmcnt({v})")
            if i + 1 < len(order):
                for r in c:
                    if c[r] == v:
                        A(f"s_cmp_eq_u32 {sr(sRole)}, {r}"); A(f"s_cbranch_scc1 {L}")
        A(f"{L}:")
    for k in range(npre):
        if k: wait_multi(seq[done[0]]); done[0] += 1
        early_slot(k - npre)
    A("s_waitcnt lgkmcnt(0)")
    bar()
    stamp("q_ready")
    for i in range(4): A(f"ds_read_b128 {vr(vAf+4*i,4)}, {vr(vt[4])} offset:{QB+64*i}")
    early_slot(0)
    for i in range(4):
        A(f"s_waitcnt lgkmcnt({3-i})")
        mfma(vD, vAf+4*i, vKf+4*i, i == 0)
        mfma(vD2, vAf+4*i, vKf+16+4*i, i == 0)
    early_slot(1)
    A(f"s_mov_b32 {sr(st1)}, {hex(f2u(128**-0.5))}")
    A(f"s_mov_b32 {sr(st2)}, {hex(f2u(LOG2E))}")
    A("s_nop 4")
    A(f"v_cndmask_b32 {vr(vP)}, {vr(vD)}, {vr(vD2)}, {sr(sp1,2)}")
    bf16r(vP, vP)
    A(f"v_mul_f32 {vr(vP)}, {sr(st1)}, {vr(vP)}")
    bf16r(vP, vP)
    A(f"v_mov_b32 {vr(vP+1)}, {vr(vP)}")
    A(f"v_mov_b32 {vr(vP+2)}, {vr(vP)}")
    zero4(vD)
    A(f"v_permlane32_swap_b32 {vr(vP+1)}, {vr(vP+2)}")
    A(f"v_max_f32 {vr(vP+1)}, {vr(vP+1)}, {vr(vP+2)}")
    dpp_red("v_max_f32", vP+1)
    A(f"v_sub_f32 {vr(vP)}, {vr(vP)}, {vr(vP+1)}")
    A(f"v_mul_f32 {vr(vP)}, {sr(st2)}, {vr(vP)}")
    A(f"v_exp_f32 {vr(vP)}, {vr(vP)}")
    A(f"ds_write_b32 {vr(vt[7])}, {vr(vP+1)} offset:{MM}")
    A(f"v_cvt_pk_bf16_f32 {vr(vP+2)}, {vr(vP)}, 0")
    A(f"ds_write2_b32 {vr(vt[6])}, {vr(vP+2)}, {vr(vP+2)} offset0:0 offset1:65")
    for t in range(4): A(f"ds_read_b128 {vr(vAf+4*t,4)}, {vr(vt[5])} offset:{PT+64*t}")
    A(f"v_mov_b32 {vr(vP+1)}, {vr(vP)}")
    A(f"v_permlane32_swap_b32 {vr(vP)}, {vr(vP+1)}")
    A(f"v_add_f32 {vr(vP)}, {vr(vP)}, {vr(vP+1)}")
    dpp_red("v_add_f32", vP)
    A(f"ds_write_b32 {vr(vt[7])}, {vr(vP)} offset:{LL}")
    stamp("p_ready")
    early_slot(2)
    A("s_waitcnt lgkmcnt(0)")
    bar()
    if seq.index("V5") >= done[0]: wait_multi("V5")
    if oflags and oflag == "V5": bar()
    for t in range(3): smf(vD, vAf+4*t, vVv+8*t)
    early_slot(3)
    if seq.index("V7") >= done[0]: wait_multi("V7")
    smf(vD, vAf+12, vVv+24)
    stamp("v_landed")
    if early_slot(4): A("s_nop 4")
    A(f"s_cmp_eq_u32 {sr(sRole)}, 0")
    A(f"ds_write_b128 {vr(vX4)}, {vr(vD,4)} offset:{OW}")
    A("s_waitcnt lgkmcnt(0)")
    bar()
    if b3c: bar()
    stamp("o_pub")
    A("s_cbranch_scc1 L_roleF")
    A(f"s_cmp_eq_u32 {sr(sRole)}, 2")
    A("s_cbranch_scc1 L_roleS")
    A(f"s_lshr_b32 {sr(st0)}, {sr(sW)}, 1")
    A(f"s_lshl1_add_u32 {sr(st0)}, {sr(sX)}, {sr(st0)}")
    A(f"s_mul_i32 {sr(st0)}, {sr(st0)}, {16*1152}")
    A(f"s_add_u32 {sr(st0)}, {sr(st0)}, {OOFF}")
    A(f"s_and_b32 {sr(st1)}, {sr(sW)}, 1")
    A(f"s_lshl_b32 {sr(st2)}, {sr(st1)}, 9")
    A(f"s_add_u32 {sr(st2)}, {sr(st2)}, {sr(st0)}")
    A(f"s_lshl4_add_u32 {sr(st1)}, {sr(st1)}, {sr(st0)}")
    A(f"s_movk_i32 {sr(st3)}, 1152")
    vw = vmW
    wi = sum(earlyW); wr = 0
    def w_setup():
        A(f"v_lshl_add_u32 {vr(vt[0])}, {vr(vN)}, 4, {sr(st2)}")
        A(f"v_mad_u32_u24 {vr(vt[0])}, {vr(vG)}, {sr(st3)}, {vr(vt[0])}")
        for u in range(1, 4): A(f"v_add_u32 {vr(vt[u])}, {u*4*1152}, {vr(vt[0])}")
        A(f"v_lshlrev_b32 {vr(vt[4])}, 1, {vr(vG)}")
        A(f"v_xor_b32 {vr(vt[4])}, {vr(vN)}, {vr(vt[4])}")
        A(f"v_mov_b32 {vr(vt[5])}, {sr(st1)}")
        A(f"v_mad_u32_u24 {vr(vt[4])}, {vr(vt[4])}, {sr(st3)}, {vr(vt[5])}")
        A(f"s_mul_i32 {sr(st0)}, {sr(sW)}, 640")
        A(f"v_add_u32 {vr(vt[5])}, {sr(st0)}, {vr(vL16)}")
        A(f"v_lshl_add_u32 {vr(vt[6])}, {vr(vG)}, 4, {sr(st0)}")
        A(f"s_lshl_b32 {sr(st0)}, {sr(sW)}, 9")
        A(f"v_add_u32 {vr(vt[7])}, {sr(st0)}, {vr(vL16)}")
        A(f"s_mov_b32 {sr(st1)}, {hex(f2u(LOG2E))}")
        A(f"s_mov_b32 {sr(st2)}, 0x05040100")
        A(f"v_bfe_u32 {vr(vt[8])}, v0, 1, 3")
        for k in range(4):
            A(f"v_cmp_eq_u32 vcc, {k}, {vr(vt[8])}")
            A(f"v_cndmask_b32 {vr(vX4+k)}, 0, -1, vcc")
    def ld_ML(v_): v_.issue("ML", f"global_load_dwordx4 {vr(vP,4)}, {vr(vt[4])}, {sr(sA if ofast else pWS,2)} offset:1024 sc1")
    def ld_O(v_):
        for u in range(2):
            for blk in range(2):
                for l_ in range(2):
                    v_.issue(f"O{u}{blk}{l_}", f"global_load_dwordx4 {vr(vGa+16*u+8*blk+4*l_,4)}, {vr(vt[2*u+l_])}, {sr(sA if ofast else pWS,2)} offset:{256*blk} sc1")
    first = True
    while wi < 16:
        if wi - wr >= wwin:
            if first: w_setup(); first = False
            vw.wait(f"W{wr}"); rd_B(wr); wr += 1
        ld_B(vw, wi, "W"); wi += 1
    if first: w_setup(); first = False
    A(f"s_lshl2_add_u32 {sr(st0)}, {sr(sC)}, {sr(sW)}")
    A(f"s_lshl_b32 {sr(st0)}, {sr(st0)}, 9")
    A(f"s_lshl2_add_u32 {sr(st0)}, {sr(sX)}, {sr(st0)}")
    A(f"s_add_u32 {sr(st0)}, {sr(st0)}, {IBF}")
    A(f"v_and_b32 {vr(vKa)}, 3, v0")
    A(f"v_lshl_add_u32 {vr(vKa)}, {vr(vKa)}, 7, {sr(st0)}")
    zero4(vD2)
    if ofast: set_A()
    while wr < 16 - wpend:
        vw.wait(f"W{wr}"); rd_B(wr); wr += 1
    stamp("ml_ret")
    if oflags: bar()
    A("L_ospin:")
    ld_ML(vw); ld_O(vw)
    stamp("ph2_a")
    while wr < 16:
        vw.wait(f"W{wr}"); rd_B(wr); wr += 1
    zero4(vD)
    def h_flag():
        exec_n(4)
        vw.issue("hf", f"global_store_dword {vr(vKa)}, {vr(vT)}, {sr(pWS,2)} sc1")
        full_exec()
    vw.wait("ML")
    if flags and hflag == 0: h_flag()
    dpp_red("v_max_f32", vt[8], vP)
    A(f"v_sub_f32 {vr(vt[8])}, {vr(vP)}, {vr(vt[8])}")
    A(f"v_mul_f32 {vr(vt[8])}, {sr(st1)}, {vr(vt[8])}")
    A(f"v_exp_f32 {vr(vt[8])}, {vr(vt[8])}")
    A(f"v_xor_b32 {vr(vt[9])}, {vr(vP+3)}, {vr(vT)}")
    A(f"v_mul_f32 {vr(vt[8])}, {vr(vt[8])}, {vr(vP+1)}")
    dpp_red("v_add_f32", vt[10], vt[8])
    A(f"v_rcp_f32 {vr(vt[10])}, {vr(vt[10])}")
    A(f"v_mul_f32 {vr(vt[8])}, {vr(vt[8])}, {vr(vt[10])}")
    bf16r(vt[10], vt[8])
    A(f"v_sub_f32 {vr(vt[10])}, {vr(vt[8])}, {vr(vt[10])}")
    A(f"v_cvt_pk_bf16_f32 {vr(vt[8])}, {vr(vt[8])}, {vr(vt[10])}")
    for u in range(2):
        for blk in range(2):
            for q in range(4):
                A(f"v_and_b32_dpp {vr(vAf+8*u+4*blk+q)}, {vr(vt[8])}, {vr(vX4+2*blk+(q&1))} row_newbcast:{8*u+(q>>1)} row_mask:0xf bank_mask:0xf")
    k_ = 0
    for u in range(2):
        for blk in range(2):
            vw.wait(f"O{u}{blk}1")
            b = vGa + 16*u + 8*blk
            smf(vD, vAf+8*u+4*blk, b, "abid:1")
            k_ += 1
            if flags and hflag == k_: h_flag()
            for l_ in range(2):
                A(f"v_perm_b32 {vr(vt[10])}, {vr(b+4*l_+1)}, {vr(b+4*l_)}, {sr(st2)}")
                A(f"v_bitop3_b32 {vr(vt[9])}, {vr(vt[10])}, {vr(vT)}, {vr(vt[9])} bitop3:0xbe")
    tag_done()
    loop_tail("L_ospin", ofast)
    if flags and hflag == 5: h_flag()
    stamp("gath")
    A("s_nop 1")
    for k in range(4): A(f"v_cvt_pk_bf16_f32 {vr(vD+k)}, {vr(vD+k)}, 0")
    exec_n(32)
    A(f"ds_write_b128 {vr(vt[5])}, {vr(vD,4)} offset:{HT}")
    full_exec()
    for t in range(8): A(f"ds_read_b128 {vr(vAf+4*t,4)}, {vr(vt[6])} offset:{HT+64*t}")
    for t in range(8):
        A(f"s_waitcnt lgkmcnt({7-t})")
        smf(vD2, vAf+4*t, vBig+8*t)
    exec_n(16)
    A(f"ds_write_b128 {vr(vt[7])}, {vr(vD2,4)} offset:{PART}")
    A("s_waitcnt lgkmcnt(0)")
    bar()
    full_exec()
    A("s_branch L_fin")
    A("L_roleS:")
    if help_c3:
        A(f"s_cmp_eq_u32 {sr(sC)}, 13"); A("s_cbranch_scc1 L_c3x")
        if c3slot > 4: ld_C3(vmS, 0)
        ld_C3(vmS, 1)
        A(f"s_cmp_eq_u32 {sr(sX)}, 3"); A("s_cbranch_scc0 L_c3x")
        exec_n(c3rows)
        A(f"global_load_dword {vr(vJunk)}, {vr(vPf)}, {sr(sp0,2)} offset:1024 {ntP}")
        full_exec()
        A("L_c3x:")
    if sG:
        for k in range(sG):
            A(f"s_sub_u32 {sr(st0)}, 13, {sr(sC)}")
            A(f"s_lshl2_add_u32 {sr(st0)}, {sr(st0)}, {sr(sW)}")
            A(f"s_cmp_ge_u32 {sr(st0)}, 18"); A(f"s_cbranch_scc1 L_sg{k}")
            A(f"s_cmp_ge_u32 {sr(st0)}, 9")
            A(f"s_cselect_b32 {sr(sp0)}, {sr(pU)}, {sr(pG)}")
            A(f"s_cselect_b32 {sr(sp0+1)}, {sr(pU+1)}, {sr(pG+1)}")
            A(f"s_cselect_b32 {sr(st1)}, 9, 0")
            A(f"s_sub_u32 {sr(st0)}, {sr(st0)}, {sr(st1)}")
            A(f"s_lshl_b32 {sr(st0)}, {sr(st0)}, 6")
            A(f"v_add_u32 {vr(vt[0])}, {sr(st0)}, {vr(vL)}")
            A(f"v_mul_u32_u24 {vr(vt[1])}, 7282, {vr(vt[0])}")
            A(f"v_lshrrev_b32 {vr(vt[1])}, 16, {vr(vt[1])}             ; /9")
            A(f"v_lshrrev_b32 {vr(vt[2])}, 3, {vr(vt[1])}")
            A(f"v_mul_u32_u24 {vr(vt[2])}, {64*9216}, {vr(vt[2])}")
            A(f"v_mul_u32_u24 {vr(vt[1])}, {9216-1152}, {vr(vt[1])}")
            A(f"v_lshl_add_u32 {vr(vt[0])}, {vr(vt[0])}, 7, {vr(vt[1])}")
            A(f"s_mul_i32 {sr(st1)}, {sr(sX)}, 1152")
            A(f"s_add_u32 {sr(st1)}, {sr(st1)}, {(9-sG+k)*8*9216}")
            A(f"v_add3_u32 {vr(vt[0])}, {vr(vt[0])}, {vr(vt[2])}, {sr(st1)}")
            A(f"global_load_dword {vr(vJunk)}, {vr(vt[0])}, {sr(sp0,2)} {ntP}")
            A(f"L_sg{k}:")
    if swait: A("s_waitcnt vmcnt(0)")
    if sD:
        A(f"s_sub_u32 {sr(st0)}, {sr(sC)}, 9")
        A(f"s_lshl2_add_u32 {sr(st0)}, {sr(st0)}, {sr(sW)}")
        A(f"s_lshl_b32 {sr(st0)}, {sr(st0)}, 13")
        A(f"s_mul_i32 {sr(st1)}, {sr(sX)}, {5184*128}")
        A(f"s_add_u32 {sr(st0)}, {sr(st0)}, {sr(st1)}")
        A(f"v_lshl_add_u32 {vr(vt[0])}, {vr(vL)}, 7, {sr(st0)}")
        for k in range(sD):
            A(f"global_load_dword {vr(vJunk)}, {vr(vt[0])}, {sr(pD,2)} {ntP}")
            if k + 1 < sD: A(f"v_add_u32 {vr(vt[0])}, {20*8192}, {vr(vt[0])}")
    A("s_branch L_fin")
    A("L_roleF:")
    vf = vmF
    def f_setup():
        A(f"s_mul_i32 {sr(st0)}, {sr(sW)}, 36")
        A(f"s_mul_i32 {sr(st1)}, {sr(sP)}, 18")
        A(f"s_mul_i32 {sr(st2)}, {sr(sW)}, 640")
        A(f"v_lshrrev_b32 {vr(vt[8])}, 5, {vr(vL)}                     ; half")
        for (src, dA, dT, sub, shx) in ((f"v_and_b32 {vr(vt[3])}, 31, v0", vt[1], vt[0], vt[8], 2), (f"v_and_or_b32 {vr(vt[3])}, v0, 3, 32", vPf, vDa, vG, 1)):
            A(src)
            A(f"v_add_u32 {vr(vt[4])}, {sr(st0)}, {vr(vt[3])}          ; granule")
            A(f"v_lshlrev_b32 {vr(vt[5])}, 3, {vr(vt[4])}")
            A(f"v_lshl_add_u32 {vr(vt[5])}, {vr(sub)}, {shx}, {vr(vt[5])}")
            if shx == 2: vf.issue("xh", f"global_load_dword {vr(vX4+1)}, {vr(vt[5])}, {sr(pX,2)}")
            else: vf.issue("xh", f"global_load_ushort {vr(vX4+2)}, {vr(vt[5])}, {sr(pX,2)}")
            A(f"v_lshrrev_b32 {vr(vt[5])}, 4, {vr(vt[4])}")
            A(f"v_and_b32 {vr(vt[4])}, 15, {vr(vt[4])}")
            A(f"v_lshlrev_b32 {vr(vt[4])}, 4, {vr(vt[4])}")
            A(f"v_lshl_add_u32 {vr(vt[4])}, {vr(vt[5])}, 11, {vr(vt[4])}")
            if shx == 2: A(f"v_lshl_add_u32 {vr(vt[4])}, {vr(vt[8])}, 10, {vr(vt[4])}   ; producers p, p+4")
            else:
                A(f"v_lshrrev_b32 {vr(vt[5])}, 3, {vr(vL)}")
                A(f"v_lshl_add_u32 {vr(vt[4])}, {vr(vt[5])}, 8, {vr(vt[4])}    ; producer l>>3")
            A(f"v_add_u32 {vr(dA)}, {HOFF}, {vr(vt[4])}")
            A(f"v_add_u32 {vr(vt[3])}, {sr(st1)}, {vr(vt[3])}")
            A(f"v_subrev_u32 {vr(vt[4])}, 36, {vr(vt[3])}")
            A(f"v_min_u32 {vr(vt[3])}, {vr(vt[3])}, {vr(vt[4])}        ; (g + 18p) mod 36")
            A(f"v_lshl_add_u32 {vr(vt[3])}, {vr(vt[3])}, 4, {sr(st2)}")
            A(f"v_lshl_add_u32 {vr(dT)}, {vr(sub)}, {shx+1}, {vr(vt[3])}")
        A(f"s_lshl_b32 {sr(st0)}, {sr(sW)}, 3")
        A(f"v_lshl_add_u32 {vr(vVa)}, {vr(vt[8])}, 2, {sr(st0)}")
        A(f"v_lshl_add_u32 {vr(vt[2])}, {vr(vG)}, 4, {sr(st2)}")
        A(f"v_bfe_u32 {vr(vt[8])}, v0, 2, 2                            ; m>>2")
        A(f"v_mov_b32 {vr(vt[3])}, {ONES-HT}")
        A(f"v_cmp_eq_u32 vcc, 1, {vr(vt[8])}")
        A(f"v_cndmask_b32 {vr(vt[2])}, {vr(vt[2])}, {vr(vt[3])}, vcc")
        A(f"s_lshl_b32 {sr(st0)}, {sr(sW)}, 9")
        A(f"v_add_u32 {vr(vt[3])}, {sr(st0)}, {vr(vL16)}")
        A(f"s_lshl_b32 {sr(st0)}, {sr(sW)}, 7")
        A(f"v_lshl_add_u32 {vr(vt[4])}, {vr(vG)}, 4, {sr(st0)}")
        A(f"v_mov_b32 {vr(vKa)}, {ZERO-HD}")
        for tt in range(3):
            A(f"v_cmp_eq_u32 vcc, {tt}, {vr(vt[8])}")
            A(f"v_cndmask_b32 {vr(vt[5+tt])}, {vr(vKa)}, {vr(vt[4])}, vcc")
        A(f"v_lshl_add_u32 {vr(vt[4])}, {vr(vL)}, 2, {sr(st0)}")
        A(f"s_mul_i32 {sr(st0)}, {sr(sW)}, {6*144*128}")
        A(f"s_lshl_b32 {sr(st1)}, {sr(sF)}, 7")
        A(f"s_add_u32 {sr(st0)}, {sr(st0)}, {sr(st1)}")
        A(f"s_add_u32 {sr(st0)}, {sr(st0)}, {YOFF}")
        A(f"v_and_b32 {vr(vKa)}, 0x70, {vr(vL16)}")
        A(f"v_add_u32 {vr(vKa)}, {sr(st0)}, {vr(vKa)}")
        A(f"v_lshrrev_b32 {vr(vt[8])}, 3, {vr(vL)}")
        A(f"s_movk_i32 {sr(st1)}, {144*128}")
        A(f"v_mad_u32_u24 {vr(vKa)}, {vr(vt[8])}, {sr(st1)}, {vr(vKa)}")
        A(f"s_mov_b32 {sr(sp0)}, 0x000f000f")
        A(f"s_mov_b32 {sr(sp0+1)}, 0x000f000f")
        zero4(vD); zero4(vD2)
    order = [n for n in forder if n[0] in "GP"]
    pend = list(order[:sum(earlyF)]); setup = False
    def retire():
        n = pend.pop(0); vf.wait(n)
        if fmarks and n in fmarks: stamp(["ln1", "k_landed", "q_ack", "pollret"][fmarks.index(n)])
        if n[0] == "G": rd_B(int(n[1:]))
    for k, n in enumerate(order[sum(earlyF):]):
        win = ramp[k] if (ramp and k < len(ramp)) else fwin
        if hwin and n[0] == "G" and int(n[1:]) >= 9: win = hwin
        if len(pend) >= win and not setup and n[0] == "G": f_setup(); setup = True
        while len(pend) >= win: retire()
        ld_any(vf, n); pend.append(n)
        if n == dpos: bar()
        if flags and n == fstart: bar()
    if not setup: f_setup()
    while len(pend) > hpend: retire()
    vf.wait("xh")
    A(f"v_lshlrev_b32 {vr(vX4)}, 16, {vr(vX4+1)}")
    A(f"v_and_b32 {vr(vX4+1)}, {sr(sHi)}, {vr(vX4+1)}")
    A(f"v_lshlrev_b32 {vr(vX4+2)}, 16, {vr(vX4+2)}")
    A(f"s_movk_i32 {sr(st0)}, 0x3f80")
    stamp("ml_ret")
    if flags: bar()
    stamp("ph2_a")
    def ld_H(v_):
        v_.issue("HX", f"global_load_dwordx4 {vr(vGa+16,4)}, {vr(vPf)}, {sr(pWS,2)} sc1")
        for p in range(4): v_.issue(f"H{p}", f"global_load_dwordx4 {vr(vGa+4*p,4)}, {vr(vt[1])}, {sr(pWS,2)} offset:{256*p} sc1")
    ld_H(vf)
    if dpos == "afterH": bar()
    while pend: retire()
    A("s_branch L_hsum")
    A("L_hspin:")
    ld_H(VM(A))
    A("L_hsum:")
    e_ = vGa + 16
    vf.wait("HX")
    tag_check(e_, True)
    A(f"v_permlane32_swap_b32 {vr(e_)}, {vr(e_+2)}")
    A(f"v_permlane32_swap_b32 {vr(e_+1)}, {vr(e_+3)}")
    A(f"v_pk_add_f32 {vr(e_,2)}, {vr(e_,2)}, {vr(e_+2,2)}")
    vf.wait("H0")
    tag_check(vGa, False)
    A(f"v_permlane16_swap_b32 {vr(e_)}, {vr(e_+1)}")
    A(f"v_add_f32 {vr(e_)}, {vr(e_)}, {vr(e_+1)}")
    vf.wait("H1")
    pk_add4(vP, vGa, vGa+4)
    A(f"v_add_f32_dpp {vr(e_)}, {vr(e_)}, {vr(e_)} row_ror:8 row_mask:0xf bank_mask:0xf")
    tag_check(vGa+4, False)
    A(f"v_add_f32 {vr(e_)}, {vr(e_)}, {vr(vX4+2)}")
    A(f"v_cvt_pk_bf16_f32 {vr(e_)}, {vr(e_)}, 0")
    A(f"ds_write_b32 {vr(vDa)}, {vr(e_)} offset:{HT}")
    vf.wait("H2")
    pk_add4(vP, vP, vGa+8)
    tag_check(vGa+8, False)
    vf.wait("H3")
    pk_add4(vP, vP, vGa+12)
    A(f"v_perm_b32 {vr(vt[10])}, {vr(vGa+13)}, {vr(vGa+12)}, {sr(sSelChk)}")
    A(f"v_perm_b32 {vr(vt[11])}, {vr(vGa+15)}, {vr(vGa+14)}, {sr(sSelChk)}")
    A(f"v_permlane32_swap_b32 {vr(vP)}, {vr(vP+2)}")
    A(f"v_permlane32_swap_b32 {vr(vP+1)}, {vr(vP+3)}")
    A(f"v_pk_add_f32 {vr(vP,2)}, {vr(vP,2)}, {vr(vX4,2)}")
    A(f"v_pk_add_f32 {vr(vP,2)}, {vr(vP,2)}, {vr(vP+2,2)}")
    for k in range(2): A(f"v_cvt_pk_bf16_f32 {vr(vP+k)}, {vr(vP+k)}, 0")
    A(f"ds_write_b64 {vr(vt[0])}, {vr(vP,2)} offset:{HT}")
    for t in range(9): A(f"ds_read_b128 {vr(vAf+4*t,4)}, {vr(vt[2])} offset:{HT+64*t}")
    A(f"v_lshl_or_b32 {vr(vt[10])}, {vr(vt[11])}, 16, {vr(vt[10])}")
    A(f"v_bitop3_b32 {vr(vt[9])}, {vr(vt[10])}, {vr(vT)}, {vr(vt[9])} bitop3:0xbe")
    tag_done()
    loop_tail("L_hspin")
    stamp("gath")
    A(f"v_cndmask_b32 {vr(e_)}, 0, {vr(e_)}, {sr(sp0,2)}")
    A(f"v_dot2_f32_bf16 {vr(vt[8])}, {vr(vP)}, {sr(st0)}, 0")
    A(f"v_dot2_f32_bf16 {vr(vt[9])}, {vr(vP)}, {vr(vP)}, 0")
    for r_ in (vP+1, e_):
        A(f"v_dot2_f32_bf16 {vr(vt[8])}, {vr(r_)}, {sr(st0)}, {vr(vt[8])}")
        A(f"v_dot2_f32_bf16 {vr(vt[9])}, {vr(r_)}, {vr(r_)}, {vr(vt[9])}")
    red = [f"v_permlane32_swap_b32 {vr(vt[8])}, {vr(vt[9])}", f"v_add_f32 {vr(vt[8])}, {vr(vt[8])}, {vr(vt[9])}\nv_mov_b32 {vr(vt[9])}, {vr(vt[8])}",
           f"v_permlane16_swap_b32 {vr(vt[8])}, {vr(vt[9])}", f"v_add_f32 {vr(vt[8])}, {vr(vt[8])}, {vr(vt[9])}"]
    red += [f"v_add_f32_dpp {vr(vt[8])}, {vr(vt[8])}, {vr(vt[8])} row_ror:{sh} row_mask:0xf bank_mask:0xf" for sh in (8, 4, 2, 1)]
    for t in range(9):
        A(f"s_waitcnt lgkmcnt({8-t})")
        smf(vD, vAf+4*t, vBig+8*t)
        if t >= 1: A(red[t-1])
    A(f"ds_write_b32 {vr(vVa)}, {vr(vt[8])} offset:{ST}")
    stamp("g_done")
    A(f"v_lshlrev_b32 {vr(vt[8])}, 2, {vr(vL)}")
    A(f"v_mov_b32 {vr(vt[9])}, 0")
    A(f"s_cmp_eq_u32 {sr(sW)}, 3")
    exec_n(32)
    A(f"ds_write_b128 {vr(vt[3])}, {vr(vD,4)} offset:{PART}")
    full_exec()
    A("s_waitcnt lgkmcnt(0)")
    bar()
    A("s_cbranch_scc1 L_fin")
    A(f"ds_read_b128 {vr(vGa+8,4)}, {vr(vt[9])} offset:{ST}")
    A(f"ds_read_b128 {vr(vGa+12,4)}, {vr(vt[9])} offset:{ST+16}")
    for w in range(4): A(f"ds_read2st64_b32 {vr(vGa+2*w,2)}, {vr(vt[8])} offset0:{PART//256+2*w} offset1:{PART//256+2*w+1}")
    for j in range(4): rd_D(j)
    c0 = -2.0 * 0.7978845608028654 * LOG2E
    A(f"s_mov_b32 {sr(st0)}, {hex(f2u(1.0/576))}")
    A(f"s_mov_b32 {sr(st1)}, {hex(f2u(c0*0.044715))}")
    A(f"v_mov_b32 {vr(vt[10])}, {hex(f2u(c0))}")
    A(f"v_mov_b32 {vr(vt[11])}, {hex(f2u(1e-5))}")
    A("s_waitcnt lgkmcnt(12)")
    pk_add4(vGa+8, vGa+8, vGa+12)
    A(f"v_pk_add_f32 {vr(vGa+8,2)}, {vr(vGa+8,2)}, {vr(vGa+10,2)}")
    A(f"v_mul_f32 {vr(vGa+8)}, {sr(st0)}, {vr(vGa+8)}                 ; mean")
    A(f"v_mul_f32 {vr(vGa+9)}, {sr(st0)}, {vr(vGa+9)}")
    A(f"v_fma_f32 {vr(vGa+9)}, -{vr(vGa+8)}, {vr(vGa+8)}, {vr(vGa+9)}")
    A(f"v_max_f32 {vr(vGa+9)}, 0, {vr(vGa+9)}")
    A(f"v_add_f32 {vr(vGa+9)}, {vr(vGa+9)}, {vr(vt[11])}")
    A(f"v_rsq_f32 {vr(vGa+9)}, {vr(vGa+9)}")
    A("s_waitcnt lgkmcnt(8)")
    pk_add4(vGa, vGa, vGa+4)
    A(f"v_pk_add_f32 {vr(vGa,2)}, {vr(vGa,2)}, {vr(vGa+2,2)}")
    A(f"v_fma_f32 {vr(vGa)}, -{vr(vGa+8)}, {vr(vGa+1)}, {vr(vGa)}")
    A(f"v_mul_f32 {vr(vGa)}, {vr(vGa)}, {vr(vGa+9)}")
    A(f"v_mul_f32 {vr(vGa+2)}, {vr(vGa)}, {vr(vGa)}")
    A(f"v_fma_f32 {vr(vGa+2)}, {vr(vGa+2)}, {sr(st1)}, {vr(vt[10])}")
    A(f"v_mul_f32 {vr(vGa+2)}, {vr(vGa+2)}, {vr(vGa)}")
    A(f"v_exp_f32 {vr(vGa+2)}, {vr(vGa+2)}")
    A(f"v_permlane32_swap_b32 {vr(vGa)}, {vr(vGa+1)}")
    A(f"v_add_f32 {vr(vGa+2)}, 1.0, {vr(vGa+2)}")
    A(f"v_rcp_f32 {vr(vGa+2)}, {vr(vGa+2)}")
    A(f"v_mul_f32 {vr(vGa)}, {vr(vGa)}, {vr(vGa+1)}")
    A(f"v_mul_f32 {vr(vGa)}, {vr(vGa)}, {vr(vGa+2)}")
    A(f"v_cvt_pk_bf16_f32 {vr(vGa)}, {vr(vGa)}, 0")
    exec_n(32)
    A(f"ds_write_b32 {vr(vt[4])}, {vr(vGa)} offset:{HD}")
    full_exec()
    for tt in range(3):
        for kb in range(2): A(f"ds_read_b128 {vr(vAf+8*tt+4*kb,4)}, {vr(vt[5+tt])} offset:{HD+64*kb}")
    for j in range(4, 8): rd_D(j)
    for u in range(2):
        A(f"s_waitcnt lgkmcnt({13-u})")
        smf(vD2, vAf+4*u, vDn+8*u)
    for u in range(2, 6):
        if u < 4:
            for j in range(2): rd_D(2*u+4+j)
        A(f"s_waitcnt lgkmcnt({[8, 8, 4, 0][u-2]})")
        smf(vD2, vAf+4*u, vDn+8*u)
    A(f"s_lshr_b32 {sr(st0)}, {sr(sF)}, 3")
    A(f"s_mul_i32 {sr(st0)}, {sr(st0)}, {144*128}")
    A(f"s_and_b32 {sr(st1)}, {sr(sF)}, 7")
    A(f"s_lshl4_add_u32 {sr(st0)}, {sr(st1)}, {sr(st0)}")
    A(f"s_add_u32 {sr(st0)}, {sr(st0)}, {YOFF}")
    A(f"v_lshl_add_u32 {vr(vt[0])}, {vr(vL)}, 7, {sr(st0)}")
    exec_n(48)
    tag_insert(vD2)
    A(f"global_store_dwordx4 {vr(vKa)}, {vr(vD2,4)}, {sr(pWS,2)} sc1")
    full_exec()
    stamp("y_pub")
    A(f"s_cmp_eq_u32 {sr(sW)}, 0")
    A("s_cbranch_scc0 L_fin")
    A(f"v_add_u32 {vr(vt[1])}, {48*128}, {vr(vt[0])}")
    A(f"v_add_u32 {vr(vt[2])}, {96*128}, {vr(vt[0])}")
    A(f"s_mul_i32 {sr(st0)}, {sr(sF)}, 1821")
    A(f"s_lshr_b32 {sr(st0)}, {sr(st0)}, 16")
    A(f"s_mul_i32 {sr(st1)}, {sr(st0)}, 36")
    A(f"s_sub_u32 {sr(st1)}, {sr(sF)}, {sr(st1)}")
    A(f"s_mul_i32 {sr(st2)}, {sr(sP)}, 18")
    A(f"s_add_u32 {sr(st1)}, {sr(st1)}, {sr(st2)}")
    A(f"s_sub_u32 {sr(st2)}, {sr(st1)}, 36")
    A(f"s_min_u32 {sr(st1)}, {sr(st1)}, {sr(st2)}")
    A(f"s_mul_i32 {sr(st0)}, {sr(st0)}, 640")
    A(f"s_lshl4_add_u32 {sr(st0)}, {sr(st1)}, {sr(st0)}")
    A(f"v_lshl_add_u32 {vr(vt[3])}, {vr(vG)}, 2, {sr(st0)}")
    A(f"ds_read_b32 {vr(vt[4])}, {vr(vt[3])} offset:{HT}")
    A(f"s_lshl_b32 {sr(st0)}, {sr(sF)}, 3")
    A(f"v_lshl_add_u32 {vr(vt[3])}, {vr(vG)}, 1, {sr(st0)}")
    zero4(vP)
    A("s_waitcnt lgkmcnt(0)")
    A(f"v_lshlrev_b32 {vr(vt[4])}, 16, {vr(vt[4])}")
    exec_n(48)
    A("s_waitcnt vmcnt(0)")
    A("L_rspin:")
    for k in range(3): A(f"global_load_dwordx4 {vr(vGa+4*k,4)}, {vr(vt[k])}, {sr(pWS,2)} sc1")
    A("s_waitcnt vmcnt(2)"); tag_check(vGa, True)
    A("s_waitcnt vmcnt(1)"); pk_add4(vP, vGa, vGa+4); tag_check(vGa+4, False)
    A("s_waitcnt vmcnt(0)"); pk_add4(vP, vP, vGa+8); tag_check(vGa+8, False)
    tag_done()
    loop_tail("L_rspin")
    full_exec()
    stamp("y_gath")
    A(f"v_permlane32_swap_b32 {vr(vP)}, {vr(vP+2)}")
    A(f"v_permlane32_swap_b32 {vr(vP+1)}, {vr(vP+3)}")
    A(f"v_pk_add_f32 {vr(vP,2)}, {vr(vP,2)}, {vr(vP+2,2)}")
    A(f"v_permlane16_swap_b32 {vr(vP)}, {vr(vP+1)}")
    A(f"v_add_f32 {vr(vP)}, {vr(vP)}, {vr(vP+1)}")
    dpp_red("v_add_f32", vP)
    bf16r(vP, vP)
    A(f"v_add_f32 {vr(vP)}, {vr(vP)}, {vr(vt[4])}")
    A(f"v_cvt_pk_bf16_f32 {vr(vP)}, {vr(vP)}, 0")
    A("s_mov_b32 exec_lo, 0x00010001"); A("s_mov_b32 exec_hi, 0x00010001")
    A(f"global_store_short {vr(vt[3])}, {vr(vP)}, {sr(pOUT,2)}")
    A(f"s_cmp_eq_u32 {sr(sF)}, 0")
    A("s_cbranch_scc0 L_fin0")
    exec_n(1)
    A(f"v_mov_b32 {vr(vt[0])}, 0")
    A(f"global_store_dword {vr(vt[0])}, {vr(vT)}, {sr(pWS,2)}")
    if amp or dbg: stamp("end")
    if dbg:
        A("s_waitcnt lgkmcnt(0)")
        for j, (nm, r) in enumerate(stamps):
            A(f"s_sub_u32 {sr(st0)}, {sr(r)}, {sr(stamps[0][1])}")
            A(f"v_mov_b32 {vr(vt[1])}, {sr(st0)}")
            A(f"global_store_dword {vr(vt[0])}, {vr(vt[1])}, s[28:29] offset:{4*j}")
    if amp:
        A(f"s_memrealtime {sr(sp1,2)}"); A("s_waitcnt lgkmcnt(0)")
        d = dict(stamps)
        A(f"s_sub_u32 {sr(st0)}, {sr(d[amp[0]])}, {sr(d['start'])}")
        A(f"s_mul_i32 {sr(st0)}, {sr(st0)}, {amp[1]}")
        A(f"s_min_u32 {sr(st0)}, {sr(st0)}, 100000")
        A(f"s_mov_b32 {sr(st1)}, {sr(sp1)}")
        A("L_amp:")
        A(f"s_memrealtime {sr(sp1,2)}"); A("s_waitcnt lgkmcnt(0)")
        A(f"s_sub_u32 {sr(st2)}, {sr(sp1)}, {sr(st1)}")
        A(f"s_cmp_lt_u32 {sr(st2)}, {sr(st0)}")
        A("s_cbranch_scc1 L_amp")
    A("L_fin0:")
    full_exec()
    A("s_branch L_fin")
    A("L_helper:")
    A(f"s_load_dword {sr(sE)}, {sr(pWS,2)}, 0")
    stamp("issued0")
    if wqx: A(f"s_mov_b32 {sr(st0)}, {sr(sX)}")
    else: A(f"s_lshr_b32 {sr(st0)}, {sr(sS)}, 1")
    A(f"s_lshl3_add_u32 {sr(st3)}, {sr(st1)}, {sr(st0)}")
    A(f"s_lshl_b32 {sr(st3)}, {sr(st3)}, 9")
    A(f"s_add_u32 {sr(st3)}, {sr(st3)}, {QOFF}")
    A(f"v_add_u32 {vr(vDa)}, {sr(st3)}, {vr(vL16)}")
    set_A()
    zero4(vD)
    for k in range(6): A(f"ds_write_b128 {vr(vL16)}, {vr(vD,4)} offset:{PT+1024*k}")
    for k in range(4): A(f"v_mov_b32 {vr(vP+k)}, 0x3f80")
    A(f"ds_write_b128 {vr(vL16)}, {vr(vP,4)} offset:{ONES}")
    common_consts()
    x_frag_addr(vt[0]); qpart_addr(vt[1])
    e = vGa
    vh.wait("xm")
    for k in range(4):
        A(f"v_lshlrev_b32 {vr(e+2*k)}, 16, {vr(vX4+k)}")
        A(f"v_and_b32 {vr(e+2*k+1)}, {sr(sHi)}, {vr(vX4+k)}")
    A(f"v_lshlrev_b32 {vr(e+8)}, 16, {vr(vKa)}")
    A(f"v_add_f32 {vr(vt[4])}, {vr(e)}, {vr(e+1)}")
    A(f"v_mul_f32 {vr(vt[5])}, {vr(e)}, {vr(e)}")
    for k in range(1, 9):
        if k >= 2: A(f"v_add_f32 {vr(vt[4])}, {vr(vt[4])}, {vr(e+k)}")
        A(f"v_fmac_f32 {vr(vt[5])}, {vr(e+k)}, {vr(e+k)}")
    wave_sum2(vt[4], vt[5], vt[6])
    A(f"v_mul_f32 {vr(vP)}, {hex(f2u(1.0/576))}, {vr(vt[4])}")
    A(f"v_mov_b32 {vr(vP+1)}, {vr(vP)}")
    A(f"v_lshlrev_b32 {vr(vt[6])}, 16, {vr(vVa)}")
    A(f"v_and_b32 {vr(vt[7])}, {sr(sHi)}, {vr(vVa)}")
    A(f"v_permlane32_swap_b32 {vr(vP)}, {vr(vP+1)}")
    A(f"v_fma_f32 {vr(vP+1)}, -{vr(vP)}, {vr(vP)}, {vr(vP+1)}")
    A(f"v_max_f32 {vr(vP+1)}, 0, {vr(vP+1)}")
    bf16r(vP+1, vP+1)
    A(f"v_add_f32 {vr(vP+1)}, {hex(f2u(1e-5))}, {vr(vP+1)}")
    bf16r(vP+1, vP+1)
    A(f"v_sqrt_f32 {vr(vP+1)}, {vr(vP+1)}")
    bf16r(vP, vP)
    bf16r(vP+1, vP+1)
    A(f"v_rcp_f32 {vr(vP+1)}, {vr(vP+1)}")
    A(f"v_sub_f32 {vr(vt[6])}, {vr(vt[6])}, {vr(vP)}")
    A(f"v_sub_f32 {vr(vt[7])}, {vr(vt[7])}, {vr(vP)}")
    bf16r(vt[6], vt[6]); bf16r(vt[7], vt[7])
    A(f"v_mul_f32 {vr(vt[6])}, {vr(vt[6])}, {vr(vP+1)}")
    A(f"v_mul_f32 {vr(vt[7])}, {vr(vt[7])}, {vr(vP+1)}")
    A(f"v_cvt_pk_bf16_f32 {vr(vt[6])}, {vr(vt[6])}, 0")
    A(f"v_cvt_pk_bf16_f32 {vr(vt[7])}, {vr(vt[7])}, 0")
    A(f"v_add_u32 {vr(vt[8])}, {XE}, {vr(vL16)}")
    exec_n(36)
    A(f"ds_write2_b32 {vr(vt[8])}, {vr(vt[6])}, {vr(vt[7])} offset0:0 offset1:2")
    A(f"ds_write2_b32 {vr(vt[8])}, {vr(vt[6])}, {vr(vt[7])} offset0:{(XO-XE)//4+1} offset1:{(XO-XE)//4+3}")
    full_exec()
    A(f"ds_read_b128 {vr(vAf,4)}, {vr(vt[0])} offset:{XE}")
    A("s_waitcnt lgkmcnt(0)")
    stamp("ln1")
    bar()
    A(f"s_add_u32 {sr(sT)}, {sr(sE)}, 0x01010101")
    A(f"v_mov_b32 {vr(vT)}, {sr(sT)}")
    def prep_lines(base_v, nlanes, nlines, off=0):
        exec_n(nlanes) if nlanes < 64 else None
        vh.issue("pw", f"global_store_dwordx4 {vr(base_v)}, {vr(vP,4)}, {sr(sA,2)} offset:{off} sc1")
        if nlanes < 64: full_exec()
    if prep and (qfast or ofast):
        for k in range(4): A(f"v_mov_b32 {vr(vP+k)}, {sr(sE)}")
    if prep and qfast:
        prep_lines(vDa, 32, 4)
        A("s_mov_b64 exec, 0x01010101")
        vh.issue("pr", f"global_load_dword {vr(vJunk)}, {vr(vDa)}, {sr(sA,2)} sc1")
        full_exec()
    vh.wait("q1")
    stamp("wq_landed")
    smf(vD, vAf, vWq)
    A(f"s_lshl_b32 {sr(st0)}, {sr(sH)}, 13")
    A(f"s_add_u32 {sr(st0)}, {sr(st0)}, {QOFF}")
    A(f"v_lshrrev_b32 {vr(vt[2])}, 5, {vr(vL)}")
    A(f"v_mul_u32_u24 {vr(vt[3])}, {4096-512}, {vr(vt[2])}")
    A(f"v_add3_u32 {vr(vt[3])}, {vr(vt[3])}, {vr(vL16)}, {sr(st0)}")
    A(f"v_lshlrev_b32 {vr(vt[4])}, 3, {vr(vL)}")
    exec_n(32)
    A(f"ds_write_b128 {vr(vt[1])}, {vr(vD,4)} offset:{PART}")
    A("s_waitcnt lgkmcnt(0)")
    bar()
    for w in range(5): A(f"ds_read_b128 {vr(vGa+4*w,4)}, {vr(vL16)} offset:{PART+512*w}")
    for w in range(1, 5):
        A(f"s_waitcnt lgkmcnt({4-w})")
        pk_add4(vD, vGa if w == 1 else vD, vGa+4*w)
    tag_insert(vD)
    if qfast: A(f"global_store_dwordx4 {vr(vDa)}, {vr(vD,4)}, {sr(sA,2)}")
    A(f"global_store_dwordx4 {vr(vDa)}, {vr(vD,4)}, {sr(pWS,2)} sc1")
    full_exec()
    stamp("q_pub")
    A(f"s_mul_i32 {sr(st0)}, {sr(sLI)}, 1152")
    A(f"s_add_u32 {sr(st0)}, {sr(st0)}, {OOFF}")
    A(f"v_add_u32 {vr(vDa)}, {sr(st0)}, {vr(vL16)}")
    A(f"v_lshlrev_b32 {vr(vt[5])}, 4, {vr(vt[2])}")
    if prep and ofast:
        prep_lines(vDa, 64, 8); prep_lines(vDa, 8, 1, 1024)
        A(f"v_lshl_add_u32 {vr(vt[6])}, {vr(vN)}, 7, {sr(st0)}")
    if qbar: bar()
    elif qdelay: A("s_waitcnt vmcnt(0)")
    stamp("q_ack")
    if prep and ofast:
        exec_n(9)
        A(f"global_load_dword {vr(vJunk)}, {vr(vt[6])}, {sr(sA,2)} sc1")
        full_exec()
    A("L_qspin:")
    for p in range(8): A(f"global_load_dwordx4 {vr(vGa+4*p,4)}, {vr(vt[3])}, {sr(sA if qfast else pWS,2)} offset:{512*p} sc1")
    for p in range(8):
        A(f"s_waitcnt vmcnt({7-p})")
        if p: pk_add4(vP, vGa if p == 1 else vP, vGa+4*p)
        if p == 7:
            A(f"v_cvt_pk_bf16_f32 {vr(vP)}, {vr(vP)}, {vr(vP+1)}")
            A(f"v_cvt_pk_bf16_f32 {vr(vP+1)}, {vr(vP+2)}, {vr(vP+3)}")
            A(f"ds_write_b64 {vr(vt[4])}, {vr(vP,2)} offset:{QB}")
        tag_check(vGa+4*p, p == 0)
    tag_done()
    loop_tail("L_qspin", qfast)
    A("s_waitcnt lgkmcnt(0)")
    stamp("pollret")
    bar()
    A(f"s_mov_b32 {sr(st1)}, {hex(f2u(LOG2E))}")
    A(f"s_mov_b32 {sr(st2)}, 0x05040100")
    A(f"s_mov_b32 {sr(st3)}, 0x07060302")
    set_A()
    A(f"s_mul_i32 {sr(sMb)}, {sr(sX)}, {9*128}")
    A(f"s_lshl2_add_u32 {sr(sMd)}, {sr(sI)}, {sr(sMb)}")
    A(f"s_add_u32 {sr(sMd)}, {sr(sMd)}, {IBW}")
    A(f"v_lshl_add_u32 {vr(vKa)}, {vr(vN)}, 7, {sr(sMd)}")
    bar()
    A(f"ds_read_b128 {vr(vGa,4)}, {vr(vt[5])} offset:{MM}")
    A(f"ds_read_b128 {vr(vGa+4,4)}, {vr(vt[5])} offset:{LL}")
    A("s_waitcnt lgkmcnt(1)")
    A(f"v_max3_f32 {vr(vP)}, {vr(vGa)}, {vr(vGa+1)}, {vr(vGa+2)}")
    A(f"v_max_f32 {vr(vP)}, {vr(vP)}, {vr(vGa+3)}")
    for w in range(4): A(f"v_sub_f32 {vr(vGa+w)}, {vr(vGa+w)}, {vr(vP)}")
    for w in range(4): A(f"v_mul_f32 {vr(vGa+w)}, {sr(st1)}, {vr(vGa+w)}")
    for w in range(4): A(f"v_exp_f32 {vr(vGa+w)}, {vr(vGa+w)}")
    A("s_waitcnt lgkmcnt(0)")
    A(f"v_mul_f32 {vr(vP+1)}, {vr(vGa)}, {vr(vGa+4)}")
    for w in range(1, 4): A(f"v_fmac_f32 {vr(vP+1)}, {vr(vGa+w)}, {vr(vGa+4+w)}")
    A(f"v_rcp_f32 {vr(vt[6])}, {vr(vP+1)}")
    A(f"v_mov_b32 {vr(vP+2)}, 0")
    A(f"v_mov_b32 {vr(vP+3)}, {vr(vT)}")
    A(f"v_and_b32 {vr(vt[7])}, 3, v0")
    A(f"v_lshl_add_u32 {vr(vt[7])}, {vr(vt[7])}, 5, {vr(vt[5])}")
    A(f"v_add_u32 {vr(vt[7])}, {sr(st0)}, {vr(vt[7])}")
    A("s_mov_b32 exec_lo, 15"); A("s_mov_b32 exec_hi, 15")
    if ofast: A(f"global_store_dwordx4 {vr(vt[7])}, {vr(vP,4)}, {sr(sA,2)} offset:1024")
    A(f"global_store_dwordx4 {vr(vt[7])}, {vr(vP,4)}, {sr(pWS,2)} offset:1024 sc1")
    full_exec()
    def o_flag():
        exec_n(9)
        A(f"global_store_dword {vr(vKa)}, {vr(vT)}, {sr(pWS,2)} sc1")
        full_exec()
    if oflags and oflag == "B2c": o_flag()
    for w in range(4): A(f"v_mul_f32 {vr(vX4+w)}, {vr(vGa+w)}, {vr(vt[6])}")
    if oflags and oflag == "V5": bar(); o_flag()
    bar()
    for w in range(4): A(f"ds_read_b128 {vr(vGa+4*w,4)}, {vr(vL16)} offset:{OW+1024*w}")
    if oflags and oflag == "B3": o_flag()
    for w in range(4):
        A(f"s_waitcnt lgkmcnt({3-w})")
        f = vX4 + (w & ~1); sel = f"op_sel:[0,{w&1}{',0' if w else ''}] op_sel_hi:[1,{w&1}{',1' if w else ''}]"
        for hh in range(2):
            if w == 0: A(f"v_pk_mul_f32 {vr(vD+2*hh,2)}, {vr(vGa+2*hh,2)}, {vr(f,2)} {sel}")
            else: A(f"v_pk_fma_f32 {vr(vD+2*hh,2)}, {vr(vGa+4*w+2*hh,2)}, {vr(f,2)}, {vr(vD+2*hh,2)} {sel}")
    A(f"v_cvt_pk_bf16_f32 {vr(vD+1)}, {vr(vD)}, {vr(vD+1)}")
    A(f"v_cvt_pk_bf16_f32 {vr(vD+2)}, 0, {vr(vD+2)}")
    A(f"v_cvt_pk_bf16_f32 {vr(vD+3)}, 0, {vr(vD+3)}")
    A(f"v_perm_b32 {vr(vD)}, {vr(vD+1)}, {vr(vT)}, {sr(st2)}")
    A(f"v_perm_b32 {vr(vD+1)}, {vr(vD+1)}, {vr(vT)}, {sr(st3)}")
    if ofast: A(f"global_store_dwordx4 {vr(vDa)}, {vr(vD,4)}, {sr(sA,2)}")
    A(f"global_store_dwordx4 {vr(vDa)}, {vr(vD,4)}, {sr(pWS,2)} sc1")
    stamp("o_pub")
    if b3c: bar()
    A(f"s_cmp_eq_u32 {sr(sRole)}, 2")
    A("s_cbranch_scc1 L_fin")
    A(f"s_cmp_eq_u32 {sr(sRole)}, 1")
    A("s_cbranch_scc1 L_hW")
    A(f"v_bfe_u32 {vr(vt[0])}, v0, 3, 2")
    A(f"v_bfe_u32 {vr(vt[1])}, v0, 5, 1")
    A(f"v_lshl_add_u32 {vr(vt[0])}, {vr(vt[0])}, 1, {vr(vt[1])}")
    A(f"v_and_b32 {vr(vt[1])}, 0x70, {vr(vL16)}")
    A(f"s_mul_i32 {sr(st0)}, {sr(sF)}, {32*1152}")
    A(f"v_mul_u32_u24 {vr(vDa)}, 1152, {vr(vt[0])}")
    A(f"v_add3_u32 {vr(vDa)}, {vr(vDa)}, {vr(vt[1])}, {sr(st0)}")
    def d_loads():
        bar()
        for jj in range(4):
            if jj: A(f"v_add_u32 {vr(vDa)}, {8*1152}, {vr(vDa)}")
            for c in range(9):
                m_ = DB + (4*c + jj)*1024 - 128*c
                A(f"s_movk_i32 m0, {m_}" if m_ < 32768 else f"s_mov_b32 m0, {m_}")
                A(f"global_load_lds_dwordx4 {vr(vDa)}, {sr(pD,2)} offset:{128*c} {ntD}")
    if dpos != "afterH": d_loads()
    if flags:
        A(f"s_lshl_b32 {sr(st1)}, {sr(sF)}, 7")
        A(f"s_add_u32 {sr(st1)}, {sr(st1)}, {IBF}")
        A(f"v_lshl_add_u32 {vr(vKa)}, {vr(vN)}, 2, {sr(st1)}")
        A(f"v_mov_b32 {vr(vt[0])}, 0")
        if fstart: bar()
        exec_n(8)
        A("L_ibspin:")
        A(f"global_atomic_add {vr(vt[1])}, {vr(vKa)}, {vr(vt[0])}, {sr(pWS,2)} sc0 sc1")
        A("s_waitcnt vmcnt(0)")
        A(f"v_cmp_ne_u32 vcc, {vr(vt[1])}, {vr(vT)}")
        loop_tail("L_ibspin")
        full_exec()
        bar()
    if dpos == "afterH": d_loads()
    A("s_waitcnt vmcnt(0)")
    stamp("y_gath")
    bar()
    A("s_branch L_fin")
    A("L_hW:")
    A(f"s_lshl3_add_u32 {sr(st0)}, {sr(sC)}, {sr(sX)}")
    A(f"s_lshl_b32 {sr(st0)}, {sr(st0)}, 8")
    A(f"s_add_u32 {sr(st0)}, {sr(st0)}, {HOFF}")
    A(f"v_add_u32 {vr(vDa)}, {sr(st0)}, {vr(vL16)}")
    exec_n(16)
    bar()
    for w in range(4): A(f"ds_read_b128 {vr(vGa+4*w,4)}, {vr(vL16)} offset:{PART+512*w}")
    for w in range(1, 4):
        A(f"s_waitcnt lgkmcnt({3-w})")
        pk_add4(vD, vGa if w == 1 else vD, vGa+4*w)
    tag_insert(vD)
    A(f"global_store_dwordx4 {vr(vDa)}, {vr(vD,4)}, {sr(pWS,2)} sc1")
    full_exec()
    stamp("y_pub")
    if wD:
        A(f"s_add_u32 {sr(st0)}, {sr(sX)}, 1")
        A(f"s_mul_i32 {sr(st0)}, {sr(st0)}, {5184*128}")
        A(f"s_lshl_b32 {sr(st1)}, {sr(sC)}, 13")
        A(f"s_add_u32 {sr(st0)}, {sr(st0)}, {sr(st1)}")
        A(f"s_sub_u32 {sr(st0)}, {sr(st0)}, {wD*9*8192}")
        A(f"v_lshl_add_u32 {vr(vt[0])}, {vr(vL)}, 7, {sr(st0)}")
        for k in range(wD):
            A(f"global_load_dword {vr(vJunk)}, {vr(vt[0])}, {sr(pD,2)} {ntP}")
            if k + 1 < wD: A(f"v_add_u32 {vr(vt[0])}, {9*8192}, {vr(vt[0])}")
    A("L_fin:")
    if diag:
        stamp("end")
        A("s_waitcnt lgkmcnt(0)")
        A(f"s_mul_i32 {sr(st0)}, s2, 5")
        A(f"s_add_u32 {sr(st0)}, {sr(st0)}, {sr(sW)}")
        A(f"s_lshl_b32 {sr(st0)}, {sr(st0)}, 7")
        A(f"s_add_u32 {sr(st0)}, {sr(st0)}, {DIAGOFF}")
        A(f"v_mov_b32 {vr(vt[0])}, {sr(st0)}")
        exec_n(1)
        for j, (nm, r) in enumerate(stamps + [("cnt", sCnt), ("role", sRole)]):
            A(f"v_mov_b32 {vr(vt[1])}, {sr(r)}")
            A(f"global_store_dword {vr(vt[0])}, {vr(vt[1])}, {sr(pWS,2)} offset:{4*j}")
    A("L_end:")
    A("s_endpgm")
    A("L_code_end:")
    nv = V.hi
    out = HEADER
    out += f"; @launch grid=(256,1,1) block=(320,1,1) lds={LDS_BYTES}\n"
    out += '.amdgcn_target "amdgcn-amd-amdhsa--gfx950"\n.text\n'
    out += f".globl {NAME}_kernel\n.p2align 8\n.type {NAME}_kernel,@function\n{NAME}_kernel:\n"
    out += A.text()
    out += '.section .rodata,"a"\n.p2align 6\n'
    out += f".amdhsa_kernel {NAME}_kernel\n"
    out += f"  .amdhsa_next_free_vgpr {nv}\n  .amdhsa_next_free_sgpr {S.hi}\n  .amdhsa_accum_offset {(nv+3)//4*4}\n"
    out += "  .amdhsa_group_segment_fixed_size 0\n  .amdhsa_kernarg_size 96\n  .amdhsa_user_sgpr_count 2\n"
    out += "  .amdhsa_user_sgpr_kernarg_segment_ptr 1\n  .amdhsa_system_sgpr_workgroup_id_x 1\n"
    out += "  .amdhsa_float_denorm_mode_32 3\n"
    out += ".end_amdhsa_kernel\n"
    return out, [n for n, _ in stamps] + ["cnt", "role"]

if __name__ == "__main__":
    kw = {}
    for a in sys.argv[2:]:
        k, v = a.split("=", 1); kw[k] = eval(v)
    txt, names = gen(**kw)
    open(sys.argv[1], "w").write(txt)
    print("written", sys.argv[1], names)
```

```python
import sys, struct
from asmlib import *

NAME = "sequential_preLN__sliding_block_cached__glu_gated_geglu__decode"
HEADER = open("cdna_kernels/%s.s.ref" % NAME).read().split("; Override launch")[0]
def f2u(x): return struct.unpack("<I", struct.pack("<f", x))[0]
LOG2E = 1.4426950408889634

QOFF, OOFF, HOFF, YOFF, DIAGOFF = 0x1000, 0x30000, 0x80000, 0x90000, 0x100000
HREP = 0x1B8000
ADELTA = 0x140000
IBW, IBF = 0xE8000, 0xF0000
PART, QB, MM, LL, ST, HD, OW, HT, ONES = 0x0, 0xA00, 0xC00, 0xC20, 0xC40, 0xD00, 0x1000, 0x2000, 0x2C00
PT, XE, XO, ZERO, NEED = 0x3000, 0x4000, 0x4280, 0x4600, 0x4700
KL, WB = 0x5000, 0xE000
DB = KL
LDS_BYTES = 0x20000

class VM:
    def __init__(self, A, ops=None): self.A = A; self.ops = list(ops or [])
    def issue(self, name, text): self.A(text); self.ops.append(name)
    def note(self, name): self.ops.append(name)
    def cnt(self, name): return len(self.ops) - 1 - max(i for i, n in enumerate(self.ops) if n == name)
    def wait(self, name): self.A(f"s_waitcnt vmcnt({min(63, self.cnt(name))})")
    def copy(self): return VM(self.A, self.ops)

def gen(diag=False, nt="nt", ntG="", ntD="", ntW="", depth=5, b0_after=1,
        earlyF=(1, 1, 1), earlyW=(4, 0, 0), forder=None, fwin=4, wwin=12, ml_at=13, b3c=True, rot=True,
        spin_cap=True, codepf=True, amp=None, dbg=False, help_c3=True, qdelay=True, wqx=False, npf=3, ramp=None, c3_early=False, kvx=7, fmarks=None, sD=1, wD=7, c3rows=32, c3slot=1, ntP='', mlo=False, depth2=None, d2at='K3', hwin=None, sG=2, hpend=4, ntQ=None, kplan=(2,1,1,1,0), qbar=None, pre2=0, oflag='B3', hflag=5, wpend=12, sWo=0, flags=False, fstart=None, dwin=None, ymask=True, kvseq='KKKKVKVKVKVKVVVV', kvdepth=(5,5,5,5,5,5,5,7), pfirst=True, wramp=None, oflags=False,
        preF=(), preW=(), hold=None, dpos='afterH', hpack=True, lite=False, swait=0, qfast=True, ofast=True, nA=6, prep=True, x_noffn=False, x_nohwait=False, x_nowo=False, x_nod=False, omask=False, tlb=0, nSW=0, preS=(), earlyS=(), x_noo=False, x_now=False, x_noh=False, fine=False, dat='post', dsplit=2, clk=False, stouch=True, bdefer=True, bat='need', kB=3, hat='G15', ytouch=True, hrep=False, htouch=0, wDe=0, kQ=2, pilots=0):
    A = Asm()
    if ntQ is None: ntQ = nt
    NWV = 6 if qfast else 5
    assert not (qfast and wqx)
    PADTO = 12800 if qfast else 10752
    if kplan is None: kplan = (depth-4, 1, 1, 1, 1)
    V = Regs("v", 1, 256); S = Regs("s", 32, 102)
    pX, pK, pV, pWQ, pWO, pG, pU, pD, pOUT, pWS = 8, 10, 12, 14, 16, 20, 22, 24, 26, 30
    sX, sI, sLI, sH, sS, sW, sT, sE = [S.alloc() for _ in range(8)]
    sRole, sC, sF, sP = [S.alloc() for _ in range(4)]
    st0, st1, st2, st3 = [S.alloc() for _ in range(4)]
    sSelIns = [S.alloc() for _ in range(4)]
    sSelChk = S.alloc(); sCnt = S.alloc(); sHi = S.alloc(); sMb = S.alloc(); sMd = S.alloc()
    sp0 = S.alloc(2, 2); sp1 = S.alloc(2, 2); sStr = S.alloc(2, 2); sWrap = S.alloc(2, 2); sA = S.alloc(2, 2); sAc = S.alloc()
    stamps = []; extra = ([18, 28, 4, 6] if not dbg else [4, 6, 18])
    def stamp(name):
        if (diag and (not lite or name in ("start", "end", "prewait", "postwait", "issued0x"))) or dbg or (amp and name in ("start", amp[0])):
            d = dict(stamps)
            if name not in d:
                r = extra.pop() if (extra and name != "start") else S.alloc(2, 2); stamps.append((name, r))
            else: r = d[name]
            A(f"s_memrealtime {sr(r,2)}")

    vL, vG, vN, vT, vIdx, vL16, vJunk = [V.alloc() for _ in range(7)]
    vt = [V.alloc() for _ in range(12)]
    vAd = V.alloc(2, 2)
    vKa, vVa, vDa, vRb, vRd, vPf, vUa = [V.alloc() for _ in range(7)]
    vD = V.alloc(4, 2); vD2 = V.alloc(4, 2); vD3 = V.alloc(4, 2); vD4 = V.alloc(4, 2); vP = V.alloc(4, 2); vX4 = V.alloc(4, 2)
    vDn = V.alloc(48, 2)
    vAf = V.alloc(36, 2)
    vGa = V.alloc(32, 2)
    vBig = V.alloc(72, 2)
    vWq = vDn; vKf = vGa; vVv = vBig + 40

    def bar(): A("s_barrier")
    def exec_n(n): A(f"s_bfm_b64 exec, {n}, 0")
    def full_exec(): A("s_mov_b64 exec, -1")
    def zero4(d):
        for k in range(4): A(f"v_mov_b32 {vr(d+k)}, 0")
    def tag_insert(base):
        for k in range(4): A(f"v_perm_b32 {vr(base+k)}, {vr(base+k)}, {vr(vT)}, {sr(sSelIns[k])}")
    def tag_check(base, first):
        A(f"v_perm_b32 {vr(vt[10])}, {vr(base+1)}, {vr(base)}, {sr(sSelChk)}")
        A(f"v_perm_b32 {vr(vt[11])}, {vr(base+3)}, {vr(base+2)}, {sr(sSelChk)}")
        A(f"v_lshl_or_b32 {vr(vt[10])}, {vr(vt[11])}, 16, {vr(vt[10])}")
        if first: A(f"v_xor_b32 {vr(vt[9])}, {vr(vt[10])}, {vr(vT)}")
        else: A(f"v_bitop3_b32 {vr(vt[9])}, {vr(vt[10])}, {vr(vT)}, {vr(vt[9])} bitop3:0xbe      ; (a^b)|c")
    def tag_done(): A(f"v_cmp_ne_u32 vcc, 0, {vr(vt[9])}")
    def set_A():
        A(f"s_add_u32 {sr(sA)}, {sr(pWS)}, {ADELTA}")
        A(f"s_addc_u32 {sr(sA+1)}, {sr(pWS+1)}, 0")
        A(f"s_mov_b32 {sr(sAc)}, 0")
    def bb_once(lbl):
        A(f"s_cmp_ge_u32 {sr(sAc)}, {kB}")
        A(f"s_cbranch_scc1 {lbl}_bbx")
        bar()
        A(f"{lbl}_bbx:")
    def loop_tail(lbl, fast=False, need=False):
        if fast or need:
            A(f"s_cbranch_vccz {lbl}_ok")
            A(f"s_add_u32 {sr(sAc)}, {sr(sAc)}, 1")
            if fast:
                A(f"s_max_u32 {sr(sA)}, {sr(sAc)}, {nA - 1 + nA % 2}")
                A(f"s_bitcmp1_b32 {sr(sA)}, 0")
                A(f"s_cselect_b32 {sr(sA)}, {ADELTA}, 0")
                A(f"s_add_u32 {sr(sA)}, {sr(pWS)}, {sr(sA)}")
                A(f"s_addc_u32 {sr(sA+1)}, {sr(pWS+1)}, 0")
            if need:
                A(f"s_cmp_eq_u32 {sr(sAc)}, {kB}")
                A(f"s_cbranch_scc0 {lbl}_nb")
                A(f"v_mov_b32 {vr(vt[10])}, {NEED}")
                A(f"ds_write_b32 {vr(vt[10])}, {vr(vt[10])}")
                A("s_waitcnt lgkmcnt(0)")
                bar()
                A(f"{lbl}_nb:")
            if spin_cap:
                A(f"s_add_u32 {sr(sCnt)}, {sr(sCnt)}, 1")
                A(f"s_cmp_lt_u32 {sr(sCnt)}, 0x40000")
                A(f"s_cbranch_scc1 {lbl}")
            else: A(f"s_branch {lbl}")
            A(f"{lbl}_ok:")
        elif spin_cap:
            A(f"s_cbranch_vccz {lbl}_ok")
            A(f"s_add_u32 {sr(sCnt)}, {sr(sCnt)}, 1")
            A(f"s_cmp_lt_u32 {sr(sCnt)}, 0x40000")
            A(f"s_cbranch_scc1 {lbl}")
            A(f"{lbl}_ok:")
        else:
            A(f"s_cbranch_vccnz {lbl}")
    def pk_add4(d, a, b):
        A(f"v_pk_add_f32 {vr(d,2)}, {vr(a,2)}, {vr(b,2)}")
        A(f"v_pk_add_f32 {vr(d+2,2)}, {vr(a+2,2)}, {vr(b+2,2)}")
    def smf(d, a, b, mod=""): A(f"v_smfmac_f32_16x16x64_bf16 {vr(d,4)}, {vr(a,4)}, {vr(b,8)}, {vr(vIdx)} {mod}")
    def mfma(d, a, b, first):
        A(f"v_mfma_f32_16x16x32_bf16 {vr(d,4)}, {vr(a,4)}, {vr(b,4)}, {'0' if first else vr(d,4)}")
    def bf16r(dst, src):
        A(f"v_cvt_pk_bf16_f32 {vr(dst)}, 0, {vr(src)}")
    def dpp_red(op, a, first_src=None):
        for i, sh in enumerate((8, 4, 2, 1)):
            s_ = first_src if (i == 0 and first_src is not None) else a
            A(f"{op}_dpp {vr(a)}, {vr(s_)}, {vr(s_)} row_ror:{sh} row_mask:0xf bank_mask:0xf")
    def wave_sum2(a, b, tmp):
        A(f"v_permlane32_swap_b32 {vr(a)}, {vr(b)}")
        A(f"v_add_f32 {vr(a)}, {vr(a)}, {vr(b)}")
        A(f"v_mov_b32 {vr(tmp)}, {vr(a)}")
        A(f"v_permlane16_swap_b32 {vr(a)}, {vr(tmp)}")
        A(f"v_add_f32 {vr(a)}, {vr(a)}, {vr(tmp)}")
        dpp_red("v_add_f32", a)

    def ld_K(vm, t):
        if t:
            A(f"s_addk_i32 m0, 0x400")
            A(f"v_xor_b32 {vr(vt[11])}, {t*1024 + (t&3)*64}, {vr(vKa)}")
        vm.issue(f"K{t}", f"global_load_lds_dwordx4 {vr(vt[11] if t else vKa)}, {sr(pK,2)} {nt}")
        if t < pilots:
            if t == 0: A(f"v_xor_b32 {vr(vUa)}, 0x1000, {vr(vt[1])}")
            A(f"s_bfm_b64 exec, 1, {(16*t + 8*(t >> 2)) & 63}")
            vm.issue("pilot", f"global_load_dword {vr(vJunk)}, {vr(vUa)}, {sr(pWQ,2)} nt")
            full_exec()
    def ld_V(vm, k):
        if k: A(f"v_xor_b32 {vr(vt[11])}, {k*1024}, {vr(vVa)}")
        vm.issue(f"V{k}", f"global_load_dwordx4 {vr(vVv+4*k,4)}, {vr(vt[11] if k else vVa)}, {sr(pV,2)} {nt}")
    def ld_B(vm, j, kind):
        A(f"s_add_u32 m0, {sr(sMb)}, {j*1024}")
        A("s_nop 0")
        vm.issue(f"{kind}{j}", f"global_load_lds_dwordx4 {vr(vAd,2)}, off {ntG if kind == 'G' else ntW}")
        last = 17 if kind == "G" else 15
        if j < last: A(f"v_lshl_add_u64 {vr(vAd,2)}, {sr(sWrap if (kind == 'G' and j == 8) else sStr,2)}, 0, {vr(vAd,2)}")
    def ld_P(vm, j):
        exec_n(16)
        vm.issue(f"P{j}", f"global_load_dword {vr(vJunk)}, {vr(vPf)}, {sr(pWO,2)} {ntP}")
        full_exec()
        if j + 1 < npf: A(f"v_add_u32 {vr(vPf)}, {32*1152}, {vr(vPf)}")
    def rd_B(j):
        for q in range(2): A(f"ds_read_b64 {vr(vBig+4*j+2*q,2)}, {vr(vRb)} offset:{j*1024+q*512}")
    def ld_D(vm, j):
        tt, jj = j >> 2, j & 3
        A(f"s_add_u32 m0, {sr(sMd)}, {j*1024}")
        A(f"v_add_u32 {vr(vt[11])}, {jj*8*1152 + tt*128}, {vr(vDa)}")
        vm.issue(f"D{j}", f"global_load_lds_dwordx4 {vr(vt[11])}, {sr(pD,2)} {ntD}")
    def rd_D(j):
        for q in range(2): A(f"ds_read_b64 {vr(vDn+4*j+2*q,2)}, {vr(vRd)} offset:{j*1024+q*512}")

    stamp("start")
    if clk: A("s_memtime s[100:101]")
    A("s_cmpk_ge_u32 s2, 256")
    A("s_cbranch_scc1 L_end")
    A("s_load_dwordx16 s[8:23], s[0:1], 0")
    A("s_load_dwordx8 s[24:31], s[0:1], 64")
    if codepf:
        A("s_cmpk_lt_u32 s2, 248")
        A("s_cbranch_scc1 L_nopf")
        A(f"s_getpc_b64 {sr(sp1,2)}")
        A(f"v_lshlrev_b32 {vr(vt[4])}, 5, v0")
        A(f"global_load_dword {vr(vJunk)}, {vr(vt[4])}, {sr(sp1,2)} offset:192")
        A("L_nopf:")
    A(f"v_readfirstlane_b32 {sr(sW)}, v0")
    A(f"v_and_b32 {vr(vN)}, 15, v0")
    A(f"v_lshrrev_b32 {vr(vG)}, 4, v0")
    A(f"s_and_b32 {sr(sX)}, s2, 7")
    A(f"s_lshr_b32 {sr(sI)}, s2, 3")
    if qfast:
        A(f"s_cmpk_eq_u32 {sr(sW)}, 320")
        A("s_cbranch_scc1 L_toucher")
    if wqx:
        A(f"s_mov_b32 {sr(st0)}, {sr(sX)}")
        A(f"s_mulk_i32 {sr(st0)}, {72*32}")
        A(f"s_add_u32 {sr(st2)}, {sr(st0)}, {sr(sI)}")
    else:
        A(f"s_and_b32 {sr(st0)}, {sr(sI)}, 7")
        A(f"s_mulk_i32 {sr(st0)}, {72*32}")
        A(f"s_lshr_b32 {sr(st1)}, {sr(sI)}, 3")
        A(f"s_lshl2_add_u32 {sr(st1)}, {sr(sX)}, {sr(st1)}")
        A(f"s_add_u32 {sr(st2)}, {sr(st0)}, {sr(st1)}")
    A(f"s_lshl_b32 {sr(st2)}, {sr(st2)}, 8")
    A(f"v_lshl_add_u32 {vr(vt[0])}, {vr(vN)}, 4, {sr(st2)}")
    A(f"v_lshl_add_u32 {vr(vt[0])}, {vr(vG)}, 13, {vr(vt[0])}")
    for k, o_ in ((1, 20), (2, 36), (3, 52)): A(f"v_add_u32 {vr(vt[k])}, {o_*8192}, {vr(vt[0])}")
    A(f"v_lshlrev_b32 {vr(vL16)}, 4, v0")
    A(f"v_lshlrev_b32 {vr(vt[5])}, 1, v0")
    A(f"s_cmp_eq_u32 {sr(sW)}, 0")
    if clk: stamp("prewait")
    A("s_waitcnt lgkmcnt(0)")
    if clk: stamp("postwait")
    A("s_cbranch_scc0 L_nx")
    vh = VM(A)
    vh.issue("xa", f"global_load_dwordx4 {vr(vX4,4)}, {vr(vL16)}, {sr(pX,2)}")
    vh.issue("xu", f"global_load_ushort {vr(vKa)}, {vr(vt[5])}, {sr(pX,2)} offset:1024")
    A("L_nx:")
    vm = VM(A)
    for k in range(2):
        vm.issue(f"q{k}", f"global_load_dwordx4 {vr(vWq+4*k,4)}, {vr(vt[k])}, {sr(pWQ,2)} {ntQ}"); vh.note(f"q{k}")
    A(f"s_load_dword {sr(sE)}, {sr(pWS,2)}, 0")
    A("s_cbranch_scc1 L_nq")
    for k in range(2, 4): vm.issue(f"q{k}", f"global_load_dwordx4 {vr(vWq+4*k,4)}, {vr(vt[k])}, {sr(pWQ,2)} {ntQ}")
    A("L_nq:")
    A(f"v_and_b32 {vr(vL)}, 63, v0")
    A(f"v_and_b32 {vr(vG)}, 3, {vr(vG)}")
    A(f"v_lshlrev_b32 {vr(vL16)}, 4, {vr(vL)}")
    A(f"s_lshl_b32 {sr(sLI)}, {sr(sX)}, 5")
    A(f"s_add_u32 {sr(sLI)}, {sr(sLI)}, {sr(sI)}")
    A(f"s_lshr_b32 {sr(sH)}, {sr(sLI)}, 4")
    A(f"s_and_b32 {sr(sS)}, {sr(sI)}, 15")
    A(f"s_lshr_b32 {sr(sW)}, {sr(sW)}, 6")
    A(f"s_sub_u32 {sr(sW)}, {sr(sW)}, 1")
    A("s_cbranch_scc1 L_helper")
    stamp("issued0")
    if tlb in (1, 3):
        for p_ in (pG, pU, pWO, pD):
            A(f"s_load_dword {sr(sAc)}, {sr(p_,2)}, 0")
            for o_ in (0x200000, 0x400000):
                A(f"s_mov_b32 {sr(st2)}, {o_}")
                A(f"s_load_dword {sr(sAc)}, {sr(p_,2)}, {sr(st2)}")
        A(f"s_lshl_b32 {sr(st2)}, {sr(sH)}, 21")
        A(f"s_load_dword {sr(sAc)}, {sr(pV,2)}, {sr(st2)}")
    A(f"s_lshl_b32 {sr(st2)}, {sr(sH)}, 21")
    A(f"s_lshl_b32 {sr(st3)}, {sr(sS)}, 15")
    A(f"s_add_u32 {sr(st2)}, {sr(st2)}, {sr(st3)}")
    A(f"s_lshl_b32 {sr(st3)}, {sr(sW)}, 13")
    A(f"s_add_u32 {sr(st2)}, {sr(st2)}, {sr(st3)}")
    A(f"s_add_u32 {sr(st2)}, {sr(st2)}, 0x180000")
    A(f"s_add_u32 m0, {sr(st3)}, {KL}")
    A(f"s_add_u32 {sr(st3)}, {sr(sS)}, {sr(sW)}")
    A(f"s_and_b32 {sr(st3)}, {sr(st3)}, {kvx}")
    A(f"s_lshl_b32 {sr(st3)}, {sr(st3)}, 10")
    A(f"s_add_u32 {sr(st2)}, {sr(st2)}, {sr(st3)}")
    A(f"v_xor_b32 {vr(vt[0])}, {vr(vN)}, {vr(vG)}")
    A(f"v_lshl_add_u32 {vr(vKa)}, {vr(vt[0])}, 4, {sr(st2)}")
    A(f"v_lshl_add_u32 {vr(vKa)}, {vr(vG)}, 8, {vr(vKa)}")
    seq = [f"K{t}" for t in range(8)] + [f"V{t}" for t in range(8)]
    if kvseq:
        c_ = {"K": 0, "V": 0, "U": 0}; seq = []
        for ch in kvseq: seq.append(f"{ch}{c_[ch]}"); c_[ch] += 1
        assert c_["K"] == 8 and c_["V"] == 8
    nU = sum(1 for n in seq if n[0] == "U")
    def ld_U(vm, j):
        per = 36 // nU
        if j == 0:
            A(f"s_lshl2_add_u32 {sr(sAc)}, {sr(sLI)}, {sr(sW)}")
            A(f"s_mul_i32 {sr(sAc)}, {sr(sAc)}, 4608")
            A(f"v_lshl_add_u32 {vr(vUa)}, {vr(vL)}, 7, {sr(sAc)}")
        A(f"s_bfm_b64 exec, {per}, {per*j}")
        vm.issue(f"U{j}", f"global_load_dword {vr(vJunk)}, {vr(vUa)}, {sr(pWO,2)} {ntP}")
        full_exec()
    nxt = [0]; qpassed = [False]
    def issue_next(n=1):
        for _ in range(n):
            if nxt[0] < len(seq) - (hold if (hold and not qpassed[0]) else 0):
                nm = seq[nxt[0]]; nxt[0] += 1
                {"K": ld_K, "V": ld_V, "U": ld_U}[nm[0]](vm, int(nm[1]))
    A(f"v_add_u32 {vr(vVa)}, {sr(st2)}, {vr(vL16)}")
    issue_next(kplan[0])
    def common_consts():
        A(f"s_mov_b32 {sr(sHi)}, 0xffff0000")
        A(f"s_mov_b32 {sr(sCnt)}, 0")
        for k in range(4): A(f"s_mov_b32 {sr(sSelIns[k])}, {hex(0x07060500 + k)}")
        A(f"s_mov_b32 {sr(sSelChk)}, 0x0c0c0400")
        A(f"v_and_b32 {vr(vt[4])}, 3, v0")
        A(f"v_and_b32 {vr(vt[5])}, 1, v0")
        A(f"v_lshlrev_b32 {vr(vt[5])}, 17, {vr(vt[5])}")
        A(f"v_or_b32 {vr(vt[4])}, {vr(vt[4])}, {vr(vt[5])}")
        A(f"v_or_b32 {vr(vt[4])}, 0x10000, {vr(vt[4])}")
        A(f"v_mul_u32_u24 {vr(vIdx)}, 0x5555, {vr(vt[4])}")
        A(f"s_lshr_b32 {sr(sC)}, {sr(sI)}, 4")
        A(f"s_mul_i32 {sr(sC)}, {sr(sC)}, 7")
        A(f"s_add_u32 {sr(sC)}, {sr(sC)}, {sr(sS)}")
        A(f"s_sub_u32 {sr(sC)}, {sr(sC)}, 9")
        A(f"s_mul_i32 {sr(sF)}, {sr(sH)}, 9")
        A(f"s_add_u32 {sr(sF)}, {sr(sF)}, {sr(sS)}")
        A(f"s_cmp_lt_u32 {sr(sC)}, 9")
        A(f"s_cselect_b32 {sr(sRole)}, 1, 2")
        A(f"s_cmp_lt_u32 {sr(sS)}, 9")
        A(f"s_cselect_b32 {sr(sRole)}, 0, {sr(sRole)}")
        A(f"s_and_b32 {sr(sP)}, {sr(sF)}, {1 if rot else 0}")
    common_consts()
    def x_frag_addr(dst):
        A(f"v_bfe_u32 {vr(dst)}, v0, 2, 1")
        A(f"v_mul_u32_u24 {vr(dst)}, {XO-XE}, {vr(dst)}")
        A(f"v_lshl_add_u32 {vr(dst)}, {vr(vG)}, 4, {vr(dst)}")
        A(f"s_lshl_b32 {sr(st0)}, {sr(sW)}, 7")
        A(f"v_add_u32 {vr(dst)}, {sr(st0)}, {vr(dst)}")
    def qpart_addr(dst):
        A(f"v_lshl_add_u32 {vr(dst)}, {vr(vN)}, 1, {vr(vG)}")
        A(f"s_lshl_b32 {sr(st0)}, {sr(sW)}, 9")
        A(f"v_lshl_add_u32 {vr(dst)}, {vr(dst)}, 4, {sr(st0)}")
    x_frag_addr(vt[0]); qpart_addr(vt[1]); zero4(vD)
    for k in range(4):
        if k == b0_after:
            bar()
            A(f"ds_read_b128 {vr(vAf,4)}, {vr(vt[0])} offset:{XE}")
            A(f"ds_read_b128 {vr(vAf+4,4)}, {vr(vt[0])} offset:{XE+64}")
        vm.wait(f"q{k}"); issue_next(kplan[k+1])
    stamp("wq_landed")
    A("s_waitcnt lgkmcnt(0)")
    smf(vD, vAf, vWq); smf(vD, vAf+4, vWq+8)
    A(f"s_add_u32 {sr(sT)}, {sr(sE)}, 0x01010101")
    A(f"v_mov_b32 {vr(vT)}, {sr(sT)}")
    exec_n(32)
    A(f"ds_write_b128 {vr(vt[1])}, {vr(vD,4)} offset:{PART}")
    full_exec()
    A("s_waitcnt lgkmcnt(0)")
    bar()
    done = [0]
    def pace():
        nm = seq[done[0]]
        vm.wait(nm); done[0] += 1
        if nm == qbar: bar(); qpassed[0] = True
        if kvdepth:
            for _ in range(16):
                if nxt[0] - done[0] < kvdepth[min(done[0]-1, len(kvdepth)-1)]: issue_next()
        else:
            issue_next()
            if depth2 and done[0] > seq.index(d2at) and nxt[0] - done[0] < depth2: issue_next()
    pace()
    A(f"v_bfe_u32 {vr(vt[0])}, v0, 3, 2")
    A(f"v_bfe_u32 {vr(vt[1])}, v0, 5, 1")
    A(f"v_lshl_add_u32 {vr(vt[0])}, {vr(vt[0])}, 1, {vr(vt[1])}")
    A(f"v_and_b32 {vr(vt[1])}, 7, v0")
    A(f"v_lshlrev_b32 {vr(vt[1])}, 4, {vr(vt[1])}")
    A(f"s_movk_i32 {sr(st1)}, 1152")
    A(f"v_mad_u32_u24 {vr(vt[2])}, {vr(vt[0])}, {sr(st1)}, {vr(vt[1])}   ; row*1152 + c8*16")
    A(f"s_mul_i32 {sr(st0)}, {sr(sF)}, {32*1152}")
    A(f"s_mul_i32 {sr(st1)}, {sr(sW)}, 384")
    A(f"s_add_u32 {sr(st0)}, {sr(st0)}, {sr(st1)}")
    A(f"v_add_u32 {vr(vDa)}, {sr(st0)}, {vr(vt[2])}")
    A(f"s_mul_i32 {sr(sMb)}, {sr(sW)}, {18*1024}")
    A(f"s_add_u32 {sr(sMb)}, {sr(sMb)}, {WB}")
    A(f"s_mul_i32 {sr(sMd)}, {sr(sW)}, {12*1024}")
    A(f"s_add_u32 {sr(sMd)}, {sr(sMd)}, {DB}")
    A(f"v_lshl_add_u32 {vr(vRb)}, {vr(vL)}, 3, {sr(sMb)}")
    A(f"v_lshl_add_u32 {vr(vRd)}, {vr(vL)}, 3, {sr(sMd)}")
    pace()
    A(f"s_mov_b32 {sr(sStr+1)}, 0")
    A(f"s_cmp_eq_u32 {sr(sRole)}, 0")
    A("s_cbranch_scc1 L_adF")
    A(f"s_lshl_b32 {sr(st0)}, {sr(sX)}, 2")
    A(f"s_add_u32 {sr(st0)}, {sr(st0)}, {sr(sW)}")
    A(f"s_mul_i32 {sr(st0)}, {sr(st0)}, {128*1152}")
    A(f"s_lshl_b32 {sr(st1)}, {sr(sC)}, 7")
    A(f"s_add_u32 {sr(st0)}, {sr(st0)}, {sr(st1)}")
    A(f"v_add_u32 {vr(vt[2])}, {sr(st0)}, {vr(vt[2])}")
    A(f"v_mov_b32 {vr(vAd)}, {sr(pWO)}")
    A(f"v_mov_b32 {vr(vAd+1)}, {sr(pWO+1)}")
    A(f"s_movk_i32 {sr(sStr)}, {8*1152}")
    if nSW:
        A(f"s_lshl2_add_u32 {sr(st0)}, {sr(sX)}, {sr(sW)}")
        A(f"s_mul_i32 {sr(st0)}, {sr(st0)}, {128*1152}")
        A(f"s_sub_u32 {sr(st1)}, {sr(sC)}, 9")
        A(f"s_min_u32 {sr(st1)}, {sr(st1)}, 4")
        A(f"s_lshl_b32 {sr(st1)}, {sr(st1)}, 11")
        A(f"s_add_u32 {sr(st0)}, {sr(st0)}, {sr(st1)}")
        A(f"s_add_u32 {sr(st0)}, {sr(st0)}, {(1152-80*nSW)*128}")
        A(f"v_lshl_add_u32 {vr(vUa)}, {vr(vN)}, 7, {sr(st0)}")
    A(f"s_sub_u32 {sr(st0)}, {sr(sC)}, 9")
    A(f"s_lshl2_add_u32 {sr(st0)}, {sr(st0)}, {sr(sW)}")
    A(f"s_and_b32 {sr(st0)}, {sr(st0)}, 15")
    A(f"s_bitcmp1_b32 {sr(st0)}, 0")
    A(f"s_cselect_b32 {sr(sp0)}, {sr(pU)}, {sr(pG)}")
    A(f"s_cselect_b32 {sr(sp0+1)}, {sr(pU+1)}, {sr(pG+1)}")
    A(f"s_lshr_b32 {sr(st0)}, {sr(st0)}, 1")
    A(f"s_mul_i32 {sr(st0)}, {sr(st0)}, {72*9216}")
    A(f"s_sub_u32 {sr(st1)}, 3, {sr(sX)}")
    A(f"s_and_b32 {sr(st1)}, {sr(st1)}, 7")
    A(f"s_mul_i32 {sr(st2)}, {sr(sX)}, 9")
    A(f"s_add_u32 {sr(st1)}, {sr(st1)}, {sr(st2)}")
    A(f"s_lshl_b32 {sr(st1)}, {sr(st1)}, 7")
    A(f"s_add_u32 {sr(st0)}, {sr(st0)}, {sr(st1)}")
    A(f"s_add_u32 {sr(st0)}, {sr(st0)}, {(72-8*sG-c3rows)*9216}")
    A(f"v_min_u32 {vr(vPf)}, {c3rows-1}, {vr(vL)}")
    A(f"v_mul_u32_u24 {vr(vPf)}, 9216, {vr(vPf)}")
    A(f"v_add_u32 {vr(vPf)}, {sr(st0)}, {vr(vPf)}")
    A("s_branch L_adX")
    A("L_adF:")
    if nSW: A(f"v_mov_b32 {vr(vUa)}, 0")
    A(f"s_lshl1_add_u32 {sr(st0)}, {sr(sW)}, {sr(sP)}")
    A(f"s_mul_i32 {sr(st0)}, {sr(st0)}, {72*9216}")
    A(f"s_lshl_b32 {sr(st1)}, {sr(sF)}, 6")
    A(f"s_add_u32 {sr(st0)}, {sr(st0)}, {sr(st1)}")
    A(f"v_and_b32 {vr(vt[2])}, 48, {vr(vt[1])}")
    A(f"v_add_u32 {vr(vt[2])}, {sr(st0)}, {vr(vt[2])}")
    A(f"s_movk_i32 {sr(st1)}, 9216")
    A(f"v_mad_u32_u24 {vr(vt[2])}, {vr(vt[0])}, {sr(st1)}, {vr(vt[2])}")
    A(f"v_cmp_gt_u32 vcc, 64, {vr(vt[1])}")
    A(f"v_mov_b32 {vr(vt[3])}, {sr(pU)}")
    A(f"v_mov_b32 {vr(vt[4])}, {sr(pU+1)}")
    A(f"v_mov_b32 {vr(vt[5])}, {sr(pG)}")
    A(f"v_mov_b32 {vr(vt[6])}, {sr(pG+1)}")
    A(f"v_cndmask_b32 {vr(vAd)}, {vr(vt[3])}, {vr(vt[5])}, vcc")
    A(f"v_cndmask_b32 {vr(vAd+1)}, {vr(vt[4])}, {vr(vt[6])}, vcc")
    A(f"s_lshl2_add_u32 {sr(st0)}, {sr(sX)}, {sr(sW)}")
    A(f"s_mul_i32 {sr(st0)}, {sr(st0)}, {128*1152}")
    A(f"s_mul_i32 {sr(st1)}, {sr(sX)}, 18")
    A(f"s_sub_u32 {sr(st1)}, {sr(sF)}, {sr(st1)}")
    A(f"s_lshl_b32 {sr(st1)}, {sr(st1)}, 11")
    A(f"s_add_u32 {sr(st0)}, {sr(st0)}, {sr(st1)}")
    A(f"s_add_u32 {sr(st0)}, {sr(st0)}, {(4-npf)*32*1152}")
    A(f"v_lshl_add_u32 {vr(vPf)}, {vr(vN)}, 7, {sr(st0)}")
    A(f"s_mov_b64 {sr(sp0,2)}, {sr(pG,2)}")
    A(f"s_mov_b32 {sr(sStr)}, {8*9216}")
    A(f"s_mul_i32 {sr(st0)}, {sr(sP)}, {144*9216}")
    A(f"s_sub_u32 {sr(sWrap)}, {8*9216}, {sr(st0)}")
    A(f"s_subb_u32 {sr(sWrap+1)}, 0, 0")
    A("L_adX:")
    A(f"v_add_co_u32 {vr(vAd)}, vcc, {vr(vAd)}, {vr(vt[2])}")
    A(f"v_addc_co_u32 {vr(vAd+1)}, vcc, 0, {vr(vAd+1)}, vcc")
    pace()
    A(f"v_xor_b32 {vr(vt[0])}, {vr(vN)}, {vr(vG)}")
    A(f"s_lshl_b32 {sr(st0)}, {sr(sW)}, 13")
    A(f"s_add_u32 {sr(st0)}, {sr(st0)}, {KL}")
    A(f"v_lshl_add_u32 {vr(vt[0])}, {vr(vt[0])}, 4, {sr(st0)}")
    A(f"v_lshl_add_u32 {vr(vt[0])}, {vr(vN)}, 8, {vr(vt[0])}")
    for i in range(1, 4): A(f"v_xor_b32 {vr(vt[i])}, {64*i}, {vr(vt[0])}")
    A(f"v_bfe_u32 {vr(vt[8])}, v0, 2, 1                        ; (m>>2)&1")
    A(f"v_lshlrev_b32 {vr(vt[4])}, 4, {vr(vG)}")
    A(f"v_lshl_add_u32 {vr(vt[4])}, {vr(vt[8])}, 8, {vr(vt[4])}")
    A(f"s_lshl_b32 {sr(st0)}, {sr(sW)}, 10")
    A(f"v_bfe_u32 {vr(vt[5])}, v0, 2, 2")
    A(f"v_lshl_add_u32 {vr(vt[5])}, {vr(vt[5])}, 8, {sr(st0)}")
    A(f"v_lshl_add_u32 {vr(vt[5])}, {vr(vG)}, 4, {vr(vt[5])}")
    A(f"v_and_b32 {vr(vt[7])}, 1, {vr(vG)}")
    A(f"v_lshl_add_u32 {vr(vt[6])}, {vr(vt[7])}, 9, {sr(st0)}")
    A(f"v_lshl_add_u32 {vr(vt[6])}, {vr(vN)}, 3, {vr(vt[6])}")
    A(f"v_lshrrev_b32 {vr(vt[8])}, 1, {vr(vG)}")
    A(f"v_lshl_add_u32 {vr(vt[6])}, {vr(vt[8])}, 7, {vr(vt[6])}")
    A(f"v_add_u32 {vr(vt[6])}, {PT}, {vr(vt[6])}")
    A(f"v_lshl_add_u32 {vr(vX4)}, {vr(vN)}, 1, {vr(vt[7])}")
    A(f"v_lshl_add_u32 {vr(vX4)}, {vr(vt[8])}, 5, {vr(vX4)}")
    A(f"v_lshl_add_u32 {vr(vX4)}, {vr(vX4)}, 4, {sr(st0)}")
    A(f"s_lshl_b32 {sr(st0)}, {sr(sW)}, 2")
    A(f"v_lshl_add_u32 {vr(vt[7])}, {vr(vt[7])}, 4, {sr(st0)}")
    A(f"s_bfm_b64 {sr(sp1,2)}, 32, 32")
    assert seq.index("K3") >= done[0]
    while nxt[0] < len(seq) or done[0] <= seq.index("K7") or (qbar and done[0] <= seq.index(qbar)):
        nm = seq[done[0]]
        pace()
        if nm in ("K3", "K7"):
            tl = 0 if nm == "K3" else 1
            for i in range(4): A(f"ds_read_b128 {vr(vKf+16*tl+4*i,4)}, {vr(vt[i])} offset:{4096*tl}")
            if tl: stamp("k_landed")
    stamp("v_issued")
    vmF, vmW, vmS = vm.copy(), vm.copy(), vm.copy()
    if forder is None:
        forder = [f"G{j}" for j in range(18)]
    else:
        fo = []
        for tok in forder.split():
            if "-" in tok:
                a, b = tok[1:].split("-"); fo += [f"{tok[0]}{j}" for j in range(int(a), int(b)+1)]
            else: fo.append(tok)
        forder = fo
    if pfirst: forder = [f"P{j}" for j in range(npf)] + forder
    npre = max(len(preF), len(preW), len(preS))
    earlyS = tuple(preS) + (0,)*(npre-len(preS)) + tuple(earlyS) + (0,)*(5-len(earlyS))
    assert sum(earlyS) <= nSW
    earlyF = tuple(preF) + (0,)*(npre-len(preF)) + tuple(earlyF) + (0,)*(5-len(earlyF))
    earlyW = tuple(preW) + (0,)*(npre-len(preW)) + tuple(earlyW) + (0,)*(5-len(earlyW))
    assert all(n[0] in "GP" for n in forder[:sum(earlyF)])
    def ld_any(v_, n):
        j = int(n[1:])
        if n[0] == "G": ld_B(v_, j, "G")
        elif n[0] == "D": ld_D(v_, j)
        else: ld_P(v_, j)
    lab = [0]
    def ld_SW(v_, j):
        exec_n(16)
        v_.issue(f"SW{j}", f"global_load_dword {vr(vJunk)}, {vr(vUa)}, {sr(pWO,2)} {ntP}")
        full_exec()
        if j + 1 < nSW: A(f"v_add_u32 {vr(vUa)}, {80*128}, {vr(vUa)}")
    def ld_C3(v_, part):
        h_ = c3rows // 2
        A(f"s_bfm_b64 exec, {h_ if part == 0 else c3rows - h_}, {0 if part == 0 else h_}")
        v_.issue(f"C{part}", f"global_load_dword {vr(vJunk)}, {vr(vPf)}, {sr(sp0,2)} {ntP}")
        full_exec()
    def early_slot(k0):
        k = k0 + npre
        nf, nw = earlyF[k], earlyW[k]
        ns = 1 if ((help_c3 and k0 == c3slot) or earlyS[k]) else 0
        if nf == 0 and nw == 0 and ns == 0: return
        lab[0] += 1; L = f"L_E{lab[0]}"
        A(f"s_cmp_eq_u32 {sr(sRole)}, 1"); A(f"s_cbranch_scc1 {L}w")
        A(f"s_cmp_eq_u32 {sr(sRole)}, 0"); A(f"s_cbranch_scc0 {L}{'s' if ns else 'x'}")
        for j in range(nf): ld_any(vmF, forder[sum(earlyF[:k]) + j])
        A(f"s_branch {L}x")
        if ns:
            A(f"{L}s:")
            for j in range(earlyS[k]): ld_SW(vmS, sum(earlyS[:k]) + j)
            if help_c3 and k0 == c3slot: ld_C3(vmS, 0)
            A(f"s_branch {L}x")
        A(f"{L}w:")
        for j in range(nw): ld_B(vmW, sum(earlyW[:k]) + j, "W")
        A(f"{L}x:")
        return True
    def wait_multi(name):
        c = {0: vmF.cnt(name), 1: vmW.cnt(name), 2: vmS.cnt(name)}
        order = sorted(set(c.values()), reverse=True)
        lab[0] += 1; L = f"L_M{lab[0]}"
        for i, v in enumerate(order):
            A(f"s_waitcnt vmcnt({v})")
            if i + 1 < len(order):
                for r in c:
                    if c[r] == v:
                        A(f"s_cmp_eq_u32 {sr(sRole)}, {r}"); A(f"s_cbranch_scc1 {L}")
        A(f"{L}:")
    for k in range(npre):
        if k: wait_multi(seq[done[0]]); done[0] += 1
        early_slot(k - npre)
    A("s_waitcnt lgkmcnt(0)")
    bar()
    stamp("q_ready")
    for i in range(4): A(f"ds_read_b128 {vr(vAf+4*i,4)}, {vr(vt[4])} offset:{QB+64*i}")
    early_slot(0)
    for i in range(4):
        A(f"s_waitcnt lgkmcnt({3-i})")
        mfma(vD, vAf+4*i, vKf+4*i, i == 0)
        mfma(vD2, vAf+4*i, vKf+16+4*i, i == 0)
    early_slot(1)
    A(f"s_mov_b32 {sr(st1)}, {hex(f2u(128**-0.5))}")
    A(f"s_mov_b32 {sr(st2)}, {hex(f2u(LOG2E))}")
    A("s_nop 4")
    A(f"v_cndmask_b32 {vr(vP)}, {vr(vD)}, {vr(vD2)}, {sr(sp1,2)}")
    bf16r(vP, vP)
    A(f"v_mul_f32 {vr(vP)}, {sr(st1)}, {vr(vP)}")
    bf16r(vP, vP)
    A(f"v_mov_b32 {vr(vP+1)}, {vr(vP)}")
    A(f"v_mov_b32 {vr(vP+2)}, {vr(vP)}")
    zero4(vD)
    A(f"v_permlane32_swap_b32 {vr(vP+1)}, {vr(vP+2)}")
    A(f"v_max_f32 {vr(vP+1)}, {vr(vP+1)}, {vr(vP+2)}")
    dpp_red("v_max_f32", vP+1)
    A(f"v_sub_f32 {vr(vP)}, {vr(vP)}, {vr(vP+1)}")
    A(f"v_mul_f32 {vr(vP)}, {sr(st2)}, {vr(vP)}")
    A(f"v_exp_f32 {vr(vP)}, {vr(vP)}")
    A(f"ds_write_b32 {vr(vt[7])}, {vr(vP+1)} offset:{MM}")
    A(f"v_cvt_pk_bf16_f32 {vr(vP+2)}, {vr(vP)}, 0")
    A(f"ds_write2_b32 {vr(vt[6])}, {vr(vP+2)}, {vr(vP+2)} offset0:0 offset1:65")
    for t in range(4): A(f"ds_read_b128 {vr(vAf+4*t,4)}, {vr(vt[5])} offset:{PT+64*t}")
    A(f"v_mov_b32 {vr(vP+1)}, {vr(vP)}")
    A(f"v_permlane32_swap_b32 {vr(vP)}, {vr(vP+1)}")
    A(f"v_add_f32 {vr(vP)}, {vr(vP)}, {vr(vP+1)}")
    dpp_red("v_add_f32", vP)
    A(f"ds_write_b32 {vr(vt[7])}, {vr(vP)} offset:{LL}")
    stamp("p_ready")
    early_slot(2)
    A("s_waitcnt lgkmcnt(0)")
    bar()
    if seq.index("V5") >= done[0]: wait_multi("V5")
    if oflags and oflag == "V5": bar()
    for t in range(3): smf(vD, vAf+4*t, vVv+8*t)
    early_slot(3)
    if seq.index("V7") >= done[0]: wait_multi("V7")
    smf(vD, vAf+12, vVv+24)
    stamp("v_landed")
    if early_slot(4): A("s_nop 4")
    A(f"s_cmp_eq_u32 {sr(sRole)}, 0")
    A(f"ds_write_b128 {vr(vX4)}, {vr(vD,4)} offset:{OW}")
    A("s_waitcnt lgkmcnt(0)")
    bar()
    if b3c: bar()
    stamp("o_pub")
    A("s_cbranch_scc1 L_roleF")
    A(f"s_cmp_eq_u32 {sr(sRole)}, 2")
    A("s_cbranch_scc1 L_roleS")
    if x_now:
        bar(); A("s_branch L_fin")
    A(f"s_lshr_b32 {sr(st0)}, {sr(sW)}, 1")
    A(f"s_lshl1_add_u32 {sr(st0)}, {sr(sX)}, {sr(st0)}")
    A(f"s_mul_i32 {sr(st0)}, {sr(st0)}, {16*1152}")
    A(f"s_add_u32 {sr(st0)}, {sr(st0)}, {OOFF}")
    A(f"s_and_b32 {sr(st1)}, {sr(sW)}, 1")
    A(f"s_lshl_b32 {sr(st2)}, {sr(st1)}, 9")
    A(f"s_add_u32 {sr(st2)}, {sr(st2)}, {sr(st0)}")
    A(f"s_lshl4_add_u32 {sr(st1)}, {sr(st1)}, {sr(st0)}")
    A(f"s_movk_i32 {sr(st3)}, 1152")
    vw = vmW
    wi = sum(earlyW); wr = 0
    def w_setup():
        A(f"v_lshl_add_u32 {vr(vt[0])}, {vr(vN)}, 4, {sr(st2)}")
        A(f"v_mad_u32_u24 {vr(vt[0])}, {vr(vG)}, {sr(st3)}, {vr(vt[0])}")
        for u in range(1, 4): A(f"v_add_u32 {vr(vt[u])}, {u*4*1152}, {vr(vt[0])}")
        A(f"v_lshlrev_b32 {vr(vt[4])}, 1, {vr(vG)}")
        A(f"v_xor_b32 {vr(vt[4])}, {vr(vN)}, {vr(vt[4])}")
        A(f"v_mov_b32 {vr(vt[5])}, {sr(st1)}")
        A(f"v_mad_u32_u24 {vr(vt[4])}, {vr(vt[4])}, {sr(st3)}, {vr(vt[5])}")
        A(f"s_mul_i32 {sr(st0)}, {sr(sW)}, 640")
        A(f"v_add_u32 {vr(vt[5])}, {sr(st0)}, {vr(vL16)}")
        A(f"v_lshl_add_u32 {vr(vt[6])}, {vr(vG)}, 4, {sr(st0)}")
        A(f"s_lshl_b32 {sr(st0)}, {sr(sW)}, 9")
        A(f"v_add_u32 {vr(vt[7])}, {sr(st0)}, {vr(vL16)}")
        A(f"s_mov_b32 {sr(st1)}, {hex(f2u(LOG2E))}")
        A(f"s_mov_b32 {sr(st2)}, 0x05040100")
        A(f"v_bfe_u32 {vr(vt[8])}, v0, 1, 3")
        for k in range(4):
            A(f"v_cmp_eq_u32 vcc, {k}, {vr(vt[8])}")
            A(f"v_cndmask_b32 {vr(vX4+k)}, 0, -1, vcc")
    def ld_ML(v_): v_.issue("ML", f"global_load_dwordx4 {vr(vP,4)}, {vr(vt[4])}, {sr(sA if ofast else pWS,2)} offset:1024 sc1")
    def ld_O(v_):
        for u in range(2):
            for blk in range(2):
                for l_ in range(2):
                    v_.issue(f"O{u}{blk}{l_}", f"global_load_dwordx4 {vr(vGa+16*u+8*blk+4*l_,4)}, {vr(vt[2*u+l_])}, {sr(sA if ofast else pWS,2)} offset:{256*blk} sc1")
    first = True
    if x_nowo:
        for j in range(wi, 16): vw.ops.insert(0, f"W{j}")
        wi = 16
    while wi < 16:
        if wi - wr >= wwin:
            if first: w_setup(); first = False
            vw.wait(f"W{wr}"); rd_B(wr); wr += 1
        ld_B(vw, wi, "W"); wi += 1
    if first: w_setup(); first = False
    A(f"s_lshl2_add_u32 {sr(st0)}, {sr(sC)}, {sr(sW)}")
    A(f"s_lshl_b32 {sr(st0)}, {sr(st0)}, 9")
    A(f"s_lshl2_add_u32 {sr(st0)}, {sr(sX)}, {sr(st0)}")
    A(f"s_add_u32 {sr(st0)}, {sr(st0)}, {IBF}")
    A(f"v_and_b32 {vr(vKa)}, 3, v0")
    A(f"v_lshl_add_u32 {vr(vKa)}, {vr(vKa)}, 7, {sr(st0)}")
    zero4(vD2)
    if ofast: set_A()
    while wr < 16 - wpend:
        vw.wait(f"W{wr}"); rd_B(wr); wr += 1
    stamp("ml_ret")
    if oflags: bar()
    A("L_ospin:")
    ld_ML(vw); ld_O(vw)
    stamp("ph2_a")
    while wr < 16:
        vw.wait(f"W{wr}"); rd_B(wr); wr += 1
    zero4(vD)
    def h_flag():
        exec_n(4)
        vw.issue("hf", f"global_store_dword {vr(vKa)}, {vr(vT)}, {sr(pWS,2)} sc1")
        full_exec()
    vw.wait("ML")
    if flags and hflag == 0: h_flag()
    dpp_red("v_max_f32", vt[8], vP)
    A(f"v_sub_f32 {vr(vt[8])}, {vr(vP)}, {vr(vt[8])}")
    A(f"v_mul_f32 {vr(vt[8])}, {sr(st1)}, {vr(vt[8])}")
    A(f"v_exp_f32 {vr(vt[8])}, {vr(vt[8])}")
    A(f"v_xor_b32 {vr(vt[9])}, {vr(vP+3)}, {vr(vT)}")
    A(f"v_mul_f32 {vr(vt[8])}, {vr(vt[8])}, {vr(vP+1)}")
    dpp_red("v_add_f32", vt[10], vt[8])
    A(f"v_rcp_f32 {vr(vt[10])}, {vr(vt[10])}")
    A(f"v_mul_f32 {vr(vt[8])}, {vr(vt[8])}, {vr(vt[10])}")
    bf16r(vt[10], vt[8])
    A(f"v_sub_f32 {vr(vt[10])}, {vr(vt[8])}, {vr(vt[10])}")
    A(f"v_cvt_pk_bf16_f32 {vr(vt[8])}, {vr(vt[8])}, {vr(vt[10])}")
    for u in range(2):
        for blk in range(2):
            for q in range(4):
                A(f"v_and_b32_dpp {vr(vAf+8*u+4*blk+q)}, {vr(vt[8])}, {vr(vX4+2*blk+(q&1))} row_newbcast:{8*u+(q>>1)} row_mask:0xf bank_mask:0xf")
    k_ = 0
    for u in range(2):
        for blk in range(2):
            vw.wait(f"O{u}{blk}1")
            b = vGa + 16*u + 8*blk
            smf(vD, vAf+8*u+4*blk, b, "abid:1")
            k_ += 1
            if flags and hflag == k_: h_flag()
            for l_ in range(2):
                A(f"v_perm_b32 {vr(vt[10])}, {vr(b+4*l_+1)}, {vr(b+4*l_)}, {sr(st2)}")
                A(f"v_bitop3_b32 {vr(vt[9])}, {vr(vt[10])}, {vr(vT)}, {vr(vt[9])} bitop3:0xbe")
    tag_done()
    if not x_noo: loop_tail("L_ospin", ofast, ofast and bdefer)
    if flags and hflag == 5: h_flag()
    stamp("gath")
    A("s_nop 1")
    for k in range(4): A(f"v_cvt_pk_bf16_f32 {vr(vD+k)}, {vr(vD+k)}, 0")
    exec_n(32)
    A(f"ds_write_b128 {vr(vt[5])}, {vr(vD,4)} offset:{HT}")
    full_exec()
    for t in range(8): A(f"ds_read_b128 {vr(vAf+4*t,4)}, {vr(vt[6])} offset:{HT+64*t}")
    if ofast and bdefer: bb_once("L_ospin")
    for t in range(8):
        A(f"s_waitcnt lgkmcnt({7-t})")
        smf(vD2, vAf+4*t, vBig+8*t)
    exec_n(16)
    A(f"ds_write_b128 {vr(vt[7])}, {vr(vD2,4)} offset:{PART}")
    A("s_waitcnt lgkmcnt(0)")
    bar()
    full_exec()
    A("s_branch L_fin")
    A("L_roleS:")
    if htouch == 1:
        A(f"s_cmp_eq_u32 {sr(sC)}, 13"); A("s_cbranch_scc0 L_ht")
        A(f"s_mul_i32 {sr(st0)}, {sr(sW)}, {36*128}")
        if hrep:
            A(f"s_mul_i32 {sr(st1)}, {sr(sX)}, 18432"); A(f"s_add_u32 {sr(st0)}, {sr(st0)}, {sr(st1)}")
        A(f"s_add_u32 {sr(st0)}, {sr(st0)}, {HREP if hrep else HOFF}")
        A(f"v_lshl_add_u32 {vr(vt[0])}, {vr(vL)}, 7, {sr(st0)}")
        exec_n(36)
        A(f"global_load_dword {vr(vJunk)}, {vr(vt[0])}, {sr(pWS,2)}")
        full_exec()
        A("L_ht:")
    for j in range(sum(earlyS), nSW): ld_SW(vmS, j)
    if help_c3:
        A(f"s_cmp_eq_u32 {sr(sC)}, 13"); A("s_cbranch_scc1 L_c3x")
        if c3slot > 4: ld_C3(vmS, 0)
        ld_C3(vmS, 1)
        A(f"s_cmp_eq_u32 {sr(sX)}, 3"); A("s_cbranch_scc0 L_c3x")
        exec_n(c3rows)
        A(f"global_load_dword {vr(vJunk)}, {vr(vPf)}, {sr(sp0,2)} offset:1024 {ntP}")
        full_exec()
        A("L_c3x:")
    if sG:
        for k in range(sG):
            A(f"s_sub_u32 {sr(st0)}, 13, {sr(sC)}")
            A(f"s_lshl2_add_u32 {sr(st0)}, {sr(st0)}, {sr(sW)}")
            A(f"s_cmp_ge_u32 {sr(st0)}, 18"); A(f"s_cbranch_scc1 L_sg{k}")
            A(f"s_cmp_ge_u32 {sr(st0)}, 9")
            A(f"s_cselect_b32 {sr(sp0)}, {sr(pU)}, {sr(pG)}")
            A(f"s_cselect_b32 {sr(sp0+1)}, {sr(pU+1)}, {sr(pG+1)}")
            A(f"s_cselect_b32 {sr(st1)}, 9, 0")
            A(f"s_sub_u32 {sr(st0)}, {sr(st0)}, {sr(st1)}")
            A(f"s_lshl_b32 {sr(st0)}, {sr(st0)}, 6")
            A(f"v_add_u32 {vr(vt[0])}, {sr(st0)}, {vr(vL)}")
            A(f"v_mul_u32_u24 {vr(vt[1])}, 7282, {vr(vt[0])}")
            A(f"v_lshrrev_b32 {vr(vt[1])}, 16, {vr(vt[1])}             ; /9")
            A(f"v_lshrrev_b32 {vr(vt[2])}, 3, {vr(vt[1])}")
            A(f"v_mul_u32_u24 {vr(vt[2])}, {64*9216}, {vr(vt[2])}")
            A(f"v_mul_u32_u24 {vr(vt[1])}, {9216-1152}, {vr(vt[1])}")
            A(f"v_lshl_add_u32 {vr(vt[0])}, {vr(vt[0])}, 7, {vr(vt[1])}")
            A(f"s_mul_i32 {sr(st1)}, {sr(sX)}, 1152")
            A(f"s_add_u32 {sr(st1)}, {sr(st1)}, {(9-sG+k)*8*9216}")
            A(f"v_add3_u32 {vr(vt[0])}, {vr(vt[0])}, {vr(vt[2])}, {sr(st1)}")
            A(f"global_load_dword {vr(vJunk)}, {vr(vt[0])}, {sr(sp0,2)} {ntP}")
            A(f"L_sg{k}:")
    if swait: A("s_waitcnt vmcnt(0)")
    if sD:
        A(f"s_sub_u32 {sr(st0)}, {sr(sC)}, 9")
        A(f"s_lshl2_add_u32 {sr(st0)}, {sr(st0)}, {sr(sW)}")
        A(f"s_lshl_b32 {sr(st0)}, {sr(st0)}, 13")
        A(f"s_mul_i32 {sr(st1)}, {sr(sX)}, {5184*128}")
        A(f"s_add_u32 {sr(st0)}, {sr(st0)}, {sr(st1)}")
        A(f"v_lshl_add_u32 {vr(vt[0])}, {vr(vL)}, 7, {sr(st0)}")
        for k in range(sD):
            A(f"global_load_dword {vr(vJunk)}, {vr(vt[0])}, {sr(pD,2)} {ntP}")
            if k + 1 < sD: A(f"v_add_u32 {vr(vt[0])}, {20*8192}, {vr(vt[0])}")
    A("s_branch L_fin")
    A("L_roleF:")
    vf = vmF
    def f_setup():
        A(f"s_mul_i32 {sr(st0)}, {sr(sW)}, 36")
        A(f"s_mul_i32 {sr(st1)}, {sr(sP)}, 18")
        A(f"s_mul_i32 {sr(st2)}, {sr(sW)}, 640")
        A(f"v_lshrrev_b32 {vr(vt[8])}, 5, {vr(vL)}                     ; half")
        for (src, dA, dT, sub, shx) in ((f"v_and_b32 {vr(vt[3])}, 31, v0", vt[1], vt[0], vt[8], 2), (f"v_and_or_b32 {vr(vt[3])}, v0, 3, 32", vPf, vDa, vG, 1)):
            A(src)
            A(f"v_add_u32 {vr(vt[4])}, {sr(st0)}, {vr(vt[3])}          ; granule")
            A(f"v_lshlrev_b32 {vr(vt[5])}, 3, {vr(vt[4])}")
            A(f"v_lshl_add_u32 {vr(vt[5])}, {vr(sub)}, {shx}, {vr(vt[5])}")
            if shx == 2: vf.issue("xh", f"global_load_dword {vr(vX4+1)}, {vr(vt[5])}, {sr(pX,2)}")
            else: vf.issue("xh", f"global_load_ushort {vr(vX4+2)}, {vr(vt[5])}, {sr(pX,2)}")
            A(f"v_lshrrev_b32 {vr(vt[5])}, 4, {vr(vt[4])}")
            A(f"v_and_b32 {vr(vt[4])}, 15, {vr(vt[4])}")
            A(f"v_lshlrev_b32 {vr(vt[4])}, 4, {vr(vt[4])}")
            A(f"v_lshl_add_u32 {vr(vt[4])}, {vr(vt[5])}, 11, {vr(vt[4])}")
            if shx == 2: A(f"v_lshl_add_u32 {vr(vt[4])}, {vr(vt[8])}, 10, {vr(vt[4])}   ; producers p, p+4")
            else:
                A(f"v_lshrrev_b32 {vr(vt[5])}, 3, {vr(vL)}")
                A(f"v_lshl_add_u32 {vr(vt[4])}, {vr(vt[5])}, 8, {vr(vt[4])}    ; producer l>>3")
            if hrep:
                A(f"s_mul_i32 {sr(st3)}, {sr(sX)}, 18432")
                A(f"s_add_u32 {sr(st3)}, {sr(st3)}, {HREP}")
                A(f"v_add_u32 {vr(dA)}, {sr(st3)}, {vr(vt[4])}")
            else: A(f"v_add_u32 {vr(dA)}, {HOFF}, {vr(vt[4])}")
            A(f"v_add_u32 {vr(vt[3])}, {sr(st1)}, {vr(vt[3])}")
            A(f"v_subrev_u32 {vr(vt[4])}, 36, {vr(vt[3])}")
            A(f"v_min_u32 {vr(vt[3])}, {vr(vt[3])}, {vr(vt[4])}        ; (g + 18p) mod 36")
            A(f"v_lshl_add_u32 {vr(vt[3])}, {vr(vt[3])}, 4, {sr(st2)}")
            A(f"v_lshl_add_u32 {vr(dT)}, {vr(sub)}, {shx+1}, {vr(vt[3])}")
        A(f"s_lshl_b32 {sr(st0)}, {sr(sW)}, 3")
        A(f"v_lshl_add_u32 {vr(vVa)}, {vr(vt[8])}, 2, {sr(st0)}")
        A(f"v_lshl_add_u32 {vr(vt[2])}, {vr(vG)}, 4, {sr(st2)}")
        A(f"v_bfe_u32 {vr(vt[8])}, v0, 2, 2                            ; m>>2")
        A(f"v_mov_b32 {vr(vt[3])}, {ONES-HT}")
        A(f"v_cmp_eq_u32 vcc, 1, {vr(vt[8])}")
        A(f"v_cndmask_b32 {vr(vt[2])}, {vr(vt[2])}, {vr(vt[3])}, vcc")
        A(f"s_lshl_b32 {sr(st0)}, {sr(sW)}, 9")
        A(f"v_add_u32 {vr(vt[3])}, {sr(st0)}, {vr(vL16)}")
        A(f"s_lshl_b32 {sr(st0)}, {sr(sW)}, 10")
        A(f"s_add_u32 {sr(st0)}, {sr(st0)}, {PT}")
        A(f"v_lshl_add_u32 {vr(vt[4])}, {vr(vL)}, 3, {sr(st0)}")
        A(f"v_and_b32 {vr(vt[5])}, 1, {vr(vt[8])}")
        A(f"v_lshl_add_u32 {vr(vt[5])}, {vr(vt[5])}, 8, {sr(st0)}")
        A(f"v_lshl_add_u32 {vr(vt[5])}, {vr(vG)}, 4, {vr(vt[5])}")
        A(f"v_lshrrev_b32 {vr(vt[8])}, 1, {vr(vt[8])}                  ; s = n>>3")
        A(f"v_lshl_add_u32 {vr(vt[5])}, {vr(vt[8])}, 6, {vr(vt[5])}")
        A(f"s_min_u32 {sr(st2)}, {sr(sW)}, 2")
        A(f"s_mul_i32 {sr(st0)}, {sr(sF)}, {32*1152}")
        A(f"s_mul_i32 {sr(st1)}, {sr(st2)}, 384")
        A(f"s_add_u32 {sr(st0)}, {sr(st0)}, {sr(st1)}")
        A(f"v_and_b32 {vr(vKa)}, 0x70, {vr(vL16)}")
        A(f"v_mul_u32_u24 {vr(vt[6])}, 1152, {vr(vG)}")
        A(f"v_add3_u32 {vr(vt[6])}, {vr(vt[6])}, {vr(vKa)}, {sr(st0)}")
        A(f"v_mul_u32_u24 {vr(vRd)}, {8*1152}, {vr(vt[8])}")
        A(f"v_sub_u32 {vr(vt[7])}, {vr(vt[6])}, {vr(vRd)}")
        A(f"v_add_u32 {vr(vt[7])}, {8*1152}, {vr(vt[7])}")
        A(f"v_add_u32 {vr(vt[6])}, {vr(vt[6])}, {vr(vRd)}")
        A(f"v_cmp_gt_u32 vcc, 32, {vr(vL)}")
        A(f"v_cndmask_b32 {vr(vt[8])}, 2, {vr(vt[8])}, vcc")
        A(f"v_bfe_u32 {vr(vRd)}, v0, 2, 1")
        A(f"v_lshl_add_u32 {vr(vt[8])}, {vr(vt[8])}, 1, {vr(vRd)}      ; line 0..5")
        A(f"s_mul_i32 {sr(st0)}, {sr(st2)}, {6*144*128}")
        A(f"s_lshl_b32 {sr(st1)}, {sr(sF)}, 7")
        A(f"s_add_u32 {sr(st0)}, {sr(st0)}, {sr(st1)}")
        A(f"s_add_u32 {sr(st0)}, {sr(st0)}, {YOFF}")
        A(f"v_and_b32 {vr(vKa)}, 3, v0")
        A(f"v_lshl_add_u32 {vr(vKa)}, {vr(vKa)}, 4, {sr(st0)}")
        A(f"v_and_b32 {vr(vRd)}, 16, v0")
        A(f"v_lshl_add_u32 {vr(vKa)}, {vr(vRd)}, 2, {vr(vKa)}")
        A(f"s_movk_i32 {sr(st1)}, {144*128}")
        A(f"v_mad_u32_u24 {vr(vKa)}, {vr(vt[8])}, {sr(st1)}, {vr(vKa)}")
        A(f"s_mov_b32 {sr(sAc)}, 0")
        A(f"s_mov_b32 {sr(sp1)}, 0x00ff00ff")
        A(f"s_mov_b32 {sr(sp1+1)}, 0xff00ff00")
        zero4(vD3); zero4(vD4)
        A(f"s_mov_b32 {sr(sp0)}, 0x000f000f")
        A(f"s_mov_b32 {sr(sp0+1)}, 0x000f000f")
        zero4(vD); zero4(vD2)
    order = [n for n in forder if n[0] in ("P" if x_noffn else "GP")]
    pend = list(order[:sum(earlyF)]); setup = False
    def retire():
        n = pend.pop(0); vf.wait(n)
        if fmarks and n in fmarks: stamp(["ln1", "k_landed", "q_ack", "pollret"][fmarks.index(n)])
        if n[0] == "G": rd_B(int(n[1:]))
    later = order[order.index(hat)+1:] if hat in order else []
    for k, n in enumerate(order[sum(earlyF):len(order)-len(later)]):
        win = ramp[k] if (ramp and k < len(ramp)) else fwin
        if hwin and n[0] == "G" and int(n[1:]) >= 9: win = hwin
        if len(pend) >= win and not setup and n[0] == "G": f_setup(); setup = True
        while len(pend) >= win: retire()
        ld_any(vf, n); pend.append(n)
        if ofast and bdefer and n == bat: bar()
        if flags and n == fstart: bar()
    if not setup: f_setup()
    while len(pend) > hpend: retire()
    vf.wait("xh")
    A(f"v_lshlrev_b32 {vr(vX4)}, 16, {vr(vX4+1)}")
    A(f"v_and_b32 {vr(vX4+1)}, {sr(sHi)}, {vr(vX4+1)}")
    A(f"v_lshlrev_b32 {vr(vX4+2)}, 16, {vr(vX4+2)}")
    A(f"s_movk_i32 {sr(st0)}, 0x3f80")
    def d_loads(k0=0, k1=4):
        if k0 == k1: return
        A(f"s_cmp_eq_u32 {sr(sW)}, 3")
        A(f"s_cbranch_scc1 L_nod{k0}")
        if not (x_nod or x_noffn):
            for k in range(k0, k1):
                for tt in range(3):
                    A(f"global_load_dwordx4 {vr(vDn+16*tt+4*k,4)}, {vr(vt[7] if tt == 1 else vt[6])}, {sr(pD,2)} offset:{128*tt} {ntD}")
                if k < 3:
                    st_ = (4 if k != 1 else 12)*1152
                    A(f"v_add_u32 {vr(vt[6])}, {st_}, {vr(vt[6])}"); A(f"v_add_u32 {vr(vt[7])}, {st_}, {vr(vt[7])}")
        A(f"L_nod{k0}:")
    if dat == "pre":
        assert hpend == 0
        d_loads()
    stamp("ml_ret")
    if flags: bar()
    stamp("ph2_a")
    def ld_H(v_):
        v_.issue("HX", f"global_load_dwordx4 {vr(vGa+16,4)}, {vr(vPf)}, {sr(pWS,2)} sc1")
        for p in range(4): v_.issue(f"H{p}", f"global_load_dwordx4 {vr(vGa+4*p,4)}, {vr(vt[1])}, {sr(pWS,2)} offset:{256*p} sc1")
    if x_noh:
        for n_ in ("HX", "H0", "H1", "H2", "H3"): vf.ops.insert(0, n_)
    else: ld_H(vf)
    for n in later: ld_any(vf, n)
    if fine: stamp("ln1")
    while pend: retire()
    pend = list(later)
    if fine: stamp("k_landed")
    A("s_branch L_hsum")
    A("L_hspin:")
    ld_H(VM(A))
    if later: A("s_waitcnt vmcnt(0)")
    A("L_hsum:")
    e_ = vGa + 16
    vf.wait("HX")
    tag_check(e_, True)
    A(f"v_permlane32_swap_b32 {vr(e_)}, {vr(e_+2)}")
    A(f"v_permlane32_swap_b32 {vr(e_+1)}, {vr(e_+3)}")
    A(f"v_pk_add_f32 {vr(e_,2)}, {vr(e_,2)}, {vr(e_+2,2)}")
    vf.wait("H0")
    tag_check(vGa, False)
    A(f"v_permlane16_swap_b32 {vr(e_)}, {vr(e_+1)}")
    A(f"v_add_f32 {vr(e_)}, {vr(e_)}, {vr(e_+1)}")
    vf.wait("H1")
    pk_add4(vP, vGa, vGa+4)
    A(f"v_add_f32_dpp {vr(e_)}, {vr(e_)}, {vr(e_)} row_ror:8 row_mask:0xf bank_mask:0xf")
    tag_check(vGa+4, False)
    A(f"v_add_f32 {vr(e_)}, {vr(e_)}, {vr(vX4+2)}")
    A(f"v_cvt_pk_bf16_f32 {vr(e_)}, {vr(e_)}, 0")
    A(f"ds_write_b32 {vr(vDa)}, {vr(e_)} offset:{HT}")
    if fine: stamp("q_ack")
    vf.wait("H2")
    pk_add4(vP, vP, vGa+8)
    tag_check(vGa+8, False)
    vf.wait("H3")
    pk_add4(vP, vP, vGa+12)
    A(f"v_perm_b32 {vr(vt[10])}, {vr(vGa+13)}, {vr(vGa+12)}, {sr(sSelChk)}")
    A(f"v_perm_b32 {vr(vt[11])}, {vr(vGa+15)}, {vr(vGa+14)}, {sr(sSelChk)}")
    A(f"v_permlane32_swap_b32 {vr(vP)}, {vr(vP+2)}")
    A(f"v_permlane32_swap_b32 {vr(vP+1)}, {vr(vP+3)}")
    A(f"v_pk_add_f32 {vr(vP,2)}, {vr(vP,2)}, {vr(vX4,2)}")
    A(f"v_pk_add_f32 {vr(vP,2)}, {vr(vP,2)}, {vr(vP+2,2)}")
    for k in range(2): A(f"v_cvt_pk_bf16_f32 {vr(vP+k)}, {vr(vP+k)}, 0")
    if fine: stamp("pollret")
    A(f"ds_write_b64 {vr(vt[0])}, {vr(vP,2)} offset:{HT}")
    for t in range(9): A(f"ds_read_b128 {vr(vAf+4*t,4)}, {vr(vt[2])} offset:{HT+64*t}")
    A(f"v_lshl_or_b32 {vr(vt[10])}, {vr(vt[11])}, 16, {vr(vt[10])}")
    A(f"v_bitop3_b32 {vr(vt[9])}, {vr(vt[10])}, {vr(vT)}, {vr(vt[9])} bitop3:0xbe")
    tag_done()
    fneed = ofast and bdefer and bat == "need"
    if not x_nohwait: loop_tail("L_hspin", False, fneed)
    stamp("gath")
    if dat == "post" and not later: d_loads(0, dsplit)
    A(f"v_cndmask_b32 {vr(e_)}, 0, {vr(e_)}, {sr(sp0,2)}")
    A(f"v_dot2_f32_bf16 {vr(vt[8])}, {vr(vP)}, {sr(st0)}, 0")
    A(f"v_dot2_f32_bf16 {vr(vt[9])}, {vr(vP)}, {vr(vP)}, 0")
    for r_ in (vP+1, e_):
        A(f"v_dot2_f32_bf16 {vr(vt[8])}, {vr(r_)}, {sr(st0)}, {vr(vt[8])}")
        A(f"v_dot2_f32_bf16 {vr(vt[9])}, {vr(r_)}, {vr(r_)}, {vr(vt[9])}")
    red = [f"v_permlane32_swap_b32 {vr(vt[8])}, {vr(vt[9])}", f"v_add_f32 {vr(vt[8])}, {vr(vt[8])}, {vr(vt[9])}\nv_mov_b32 {vr(vt[9])}, {vr(vt[8])}",
           f"v_permlane16_swap_b32 {vr(vt[8])}, {vr(vt[9])}", f"v_add_f32 {vr(vt[8])}, {vr(vt[8])}, {vr(vt[9])}"]
    red += [f"v_add_f32_dpp {vr(vt[8])}, {vr(vt[8])}, {vr(vt[8])} row_ror:{sh} row_mask:0xf bank_mask:0xf" for sh in (8, 4, 2, 1)]
    lateG = [int(n[1:]) for n in later]
    tl = [t for t in range(9) if 2*t in lateG or 2*t+1 in lateG]
    te = [t for t in range(9) if t not in tl]
    ds_after = 0
    got = []
    for t in range(9):
        while pend and int(pend[0][1:]) // 2 <= t + 2 and (t >= len(te) - 2):
            got.append(int(pend[0][1:])); retire(); ds_after += 2
            if not pend and dat == "post": d_loads(0, dsplit)
        if t in te: c = 8 - t + ds_after
        else: c = 2*sum(1 for j in got if j//2 > t)
        A(f"s_waitcnt lgkmcnt({min(c, 15)})")
        smf(vD, vAf+4*t, vBig+8*t)
        if t >= 1: A(red[t-1])
    assert not pend
    if fneed: bb_once("L_hspin")
    A(f"ds_write_b32 {vr(vVa)}, {vr(vt[8])} offset:{ST}")
    stamp("g_done")
    A(f"v_lshlrev_b32 {vr(vt[8])}, 2, {vr(vL)}")
    A(f"v_mov_b32 {vr(vt[9])}, 0")
    A(f"s_cmp_eq_u32 {sr(sW)}, 3")
    exec_n(32)
    A(f"ds_write_b128 {vr(vt[3])}, {vr(vD,4)} offset:{PART}")
    full_exec()
    if dat == "post": d_loads(dsplit, 4)
    A("s_waitcnt lgkmcnt(0)")
    bar()
    A("s_cbranch_scc1 L_fin")
    A(f"ds_read_b128 {vr(vGa+8,4)}, {vr(vt[9])} offset:{ST}")
    A(f"ds_read_b128 {vr(vGa+12,4)}, {vr(vt[9])} offset:{ST+16}")
    for w in range(4): A(f"ds_read2st64_b32 {vr(vGa+2*w,2)}, {vr(vt[8])} offset0:{PART//256+2*w} offset1:{PART//256+2*w+1}")
    c0 = -2.0 * 0.7978845608028654 * LOG2E
    A(f"s_mov_b32 {sr(st0)}, {hex(f2u(1.0/576))}")
    A(f"s_mov_b32 {sr(st1)}, {hex(f2u(c0*0.044715))}")
    A(f"v_mov_b32 {vr(vt[10])}, {hex(f2u(c0))}")
    A(f"v_mov_b32 {vr(vt[11])}, {hex(f2u(1e-5))}")
    A("s_waitcnt lgkmcnt(4)")
    pk_add4(vGa+8, vGa+8, vGa+12)
    A(f"v_pk_add_f32 {vr(vGa+8,2)}, {vr(vGa+8,2)}, {vr(vGa+10,2)}")
    A(f"v_mul_f32 {vr(vGa+8)}, {sr(st0)}, {vr(vGa+8)}                 ; mean")
    A(f"v_mul_f32 {vr(vGa+9)}, {sr(st0)}, {vr(vGa+9)}")
    A(f"v_fma_f32 {vr(vGa+9)}, -{vr(vGa+8)}, {vr(vGa+8)}, {vr(vGa+9)}")
    A(f"v_max_f32 {vr(vGa+9)}, 0, {vr(vGa+9)}")
    A(f"v_add_f32 {vr(vGa+9)}, {vr(vGa+9)}, {vr(vt[11])}")
    A(f"v_rsq_f32 {vr(vGa+9)}, {vr(vGa+9)}")
    A("s_waitcnt lgkmcnt(0)")
    pk_add4(vGa, vGa, vGa+4)
    A(f"v_pk_add_f32 {vr(vGa,2)}, {vr(vGa,2)}, {vr(vGa+2,2)}")
    A(f"v_fma_f32 {vr(vGa)}, -{vr(vGa+8)}, {vr(vGa+1)}, {vr(vGa)}")
    A(f"v_mul_f32 {vr(vGa)}, {vr(vGa)}, {vr(vGa+9)}")
    A(f"v_mul_f32 {vr(vGa+2)}, {vr(vGa)}, {vr(vGa)}")
    A(f"v_fma_f32 {vr(vGa+2)}, {vr(vGa+2)}, {sr(st1)}, {vr(vt[10])}")
    A(f"v_mul_f32 {vr(vGa+2)}, {vr(vGa+2)}, {vr(vGa)}")
    A(f"v_exp_f32 {vr(vGa+2)}, {vr(vGa+2)}")
    A(f"v_permlane32_swap_b32 {vr(vGa)}, {vr(vGa+1)}")
    A(f"v_add_f32 {vr(vGa+2)}, 1.0, {vr(vGa+2)}")
    A(f"v_rcp_f32 {vr(vGa+2)}, {vr(vGa+2)}")
    A(f"v_mul_f32 {vr(vGa)}, {vr(vGa)}, {vr(vGa+1)}")
    A(f"v_mul_f32 {vr(vGa)}, {vr(vGa)}, {vr(vGa+2)}")
    A(f"v_cvt_pk_bf16_f32 {vr(vGa)}, {vr(vGa)}, 0")
    exec_n(32)
    A(f"ds_write2_b32 {vr(vt[4])}, {vr(vGa)}, {vr(vGa)} offset0:0 offset1:65")
    full_exec()
    for kb in range(2): A(f"ds_read_b128 {vr(vAf+4*kb,4)}, {vr(vt[5])} offset:{128*kb}")
    acc = [vD2, vD3, vD4]
    for kb in range(2):
        A(f"s_waitcnt vmcnt({6 if (kb == 0 and dat == 'post') else 0}) lgkmcnt({1-kb})")
        for tt in range(3): smf(acc[tt], vAf+4*kb, vDn+16*tt+8*kb)
    A(f"s_lshr_b32 {sr(st0)}, {sr(sF)}, 3")
    A(f"s_mul_i32 {sr(st0)}, {sr(st0)}, {144*128}")
    A(f"s_bfe_u32 {sr(st1)}, {sr(sF)}, 0x20001")
    A(f"s_lshl4_add_u32 {sr(st0)}, {sr(st1)}, {sr(st0)}")
    A(f"s_and_b32 {sr(st1)}, {sr(sF)}, 1")
    A(f"s_lshl_b32 {sr(st1)}, {sr(st1)}, 6")
    A(f"s_add_u32 {sr(st0)}, {sr(st0)}, {sr(st1)}")
    A(f"s_add_u32 {sr(st0)}, {sr(st0)}, {YOFF}")
    A(f"v_lshl_add_u32 {vr(vt[0])}, {vr(vL)}, 7, {sr(st0)}")
    for r in range(4): A(f"v_cndmask_b32 {vr(vD2+r)}, {vr(vD3+r)}, {vr(vD2+r)}, {sr(sp1,2)}")
    for r in range(4): A(f"v_permlane32_swap_b32 {vr(vD2+r)}, {vr(vD4+r)}")
    for r in range(4): A(f"v_add_f32_dpp {vr(vD2+r)}, {vr(vD4+r)}, {vr(vD2+r)} row_ror:8 row_mask:0xf bank_mask:0xf")
    A("s_mov_b32 exec_hi, 0x00ff00ff")
    tag_insert(vD2)
    A(f"global_store_dwordx4 {vr(vKa)}, {vr(vD2,4)}, {sr(pWS,2)} sc1")
    full_exec()
    stamp("y_pub")
    A(f"s_cmp_eq_u32 {sr(sW)}, 0")
    A("s_cbranch_scc0 L_fin")
    A(f"v_add_u32 {vr(vt[1])}, {48*128}, {vr(vt[0])}")
    A(f"v_add_u32 {vr(vt[2])}, {96*128}, {vr(vt[0])}")
    A(f"s_mul_i32 {sr(st0)}, {sr(sF)}, 1821")
    A(f"s_lshr_b32 {sr(st0)}, {sr(st0)}, 16")
    A(f"s_mul_i32 {sr(st1)}, {sr(st0)}, 36")
    A(f"s_sub_u32 {sr(st1)}, {sr(sF)}, {sr(st1)}")
    A(f"s_mul_i32 {sr(st2)}, {sr(sP)}, 18")
    A(f"s_add_u32 {sr(st1)}, {sr(st1)}, {sr(st2)}")
    A(f"s_sub_u32 {sr(st2)}, {sr(st1)}, 36")
    A(f"s_min_u32 {sr(st1)}, {sr(st1)}, {sr(st2)}")
    A(f"s_mul_i32 {sr(st0)}, {sr(st0)}, 640")
    A(f"s_lshl4_add_u32 {sr(st0)}, {sr(st1)}, {sr(st0)}")
    A(f"v_lshl_add_u32 {vr(vt[3])}, {vr(vG)}, 2, {sr(st0)}")
    A(f"ds_read_b32 {vr(vt[4])}, {vr(vt[3])} offset:{HT}")
    A(f"s_lshl_b32 {sr(st0)}, {sr(sF)}, 3")
    A(f"v_lshl_add_u32 {vr(vt[3])}, {vr(vG)}, 1, {sr(st0)}")
    zero4(vP)
    A("s_waitcnt lgkmcnt(0)")
    A(f"v_lshlrev_b32 {vr(vt[4])}, 16, {vr(vt[4])}")
    exec_n(48)
    A("s_waitcnt vmcnt(0)")
    if not ymask:
        A("L_rspin:")
        for k in range(3): A(f"global_load_dwordx4 {vr(vGa+4*k,4)}, {vr(vt[k])}, {sr(pWS,2)} sc1")
        A("s_waitcnt vmcnt(2)"); tag_check(vGa, True)
        A("s_waitcnt vmcnt(1)"); pk_add4(vP, vGa, vGa+4); tag_check(vGa+4, False)
        A("s_waitcnt vmcnt(0)"); pk_add4(vP, vP, vGa+8); tag_check(vGa+8, False)
        tag_done()
        loop_tail("L_rspin")
    else:
        A("L_rspin:")
        for k in range(3): A(f"global_load_dwordx4 {vr(vGa+4*k,4)}, {vr(vt[k])}, {sr(pWS,2)} sc1")
        A("s_waitcnt vmcnt(2)"); tag_check(vGa, True)
        A("s_waitcnt vmcnt(1)"); pk_add4(vP, vGa, vGa+4); tag_check(vGa+4, False)
        A("s_waitcnt vmcnt(0)"); pk_add4(vP, vP, vGa+8); tag_check(vGa+8, False)
        tag_done()
        A("s_cbranch_vccz L_rspin_ok")
        A("s_mov_b64 exec, vcc")
        if spin_cap:
            A(f"s_add_u32 {sr(sCnt)}, {sr(sCnt)}, 1")
            A(f"s_cmp_lt_u32 {sr(sCnt)}, 0x40000")
            A("s_cbranch_scc1 L_rspin")
        else: A("s_branch L_rspin")
        A("L_rspin_ok:")
    full_exec()
    stamp("y_gath")
    A(f"v_permlane32_swap_b32 {vr(vP)}, {vr(vP+2)}")
    A(f"v_permlane32_swap_b32 {vr(vP+1)}, {vr(vP+3)}")
    A(f"v_pk_add_f32 {vr(vP,2)}, {vr(vP,2)}, {vr(vP+2,2)}")
    A(f"v_permlane16_swap_b32 {vr(vP)}, {vr(vP+1)}")
    A(f"v_add_f32 {vr(vP)}, {vr(vP)}, {vr(vP+1)}")
    dpp_red("v_add_f32", vP)
    bf16r(vP, vP)
    A(f"v_add_f32 {vr(vP)}, {vr(vP)}, {vr(vt[4])}")
    A(f"v_cvt_pk_bf16_f32 {vr(vP)}, {vr(vP)}, 0")
    A("s_mov_b32 exec_lo, 0x00010001"); A("s_mov_b32 exec_hi, 0x00010001")
    A(f"global_store_short {vr(vt[3])}, {vr(vP)}, {sr(pOUT,2)}")
    A(f"s_cmp_eq_u32 {sr(sF)}, 0")
    A("s_cbranch_scc0 L_fin0")
    exec_n(1)
    A(f"v_mov_b32 {vr(vt[0])}, 0")
    A(f"global_store_dword {vr(vt[0])}, {vr(vT)}, {sr(pWS,2)}")
    if amp or dbg: stamp("end")
    if dbg:
        A("s_waitcnt lgkmcnt(0)")
        for j, (nm, r) in enumerate(stamps):
            A(f"s_sub_u32 {sr(st0)}, {sr(r)}, {sr(stamps[0][1])}")
            A(f"v_mov_b32 {vr(vt[1])}, {sr(st0)}")
            A(f"global_store_dword {vr(vt[0])}, {vr(vt[1])}, s[28:29] offset:{4*j}")
    if amp:
        A(f"s_memrealtime {sr(sp1,2)}"); A("s_waitcnt lgkmcnt(0)")
        d = dict(stamps)
        A(f"s_sub_u32 {sr(st0)}, {sr(d[amp[0]])}, {sr(d['start'])}")
        A(f"s_mul_i32 {sr(st0)}, {sr(st0)}, {amp[1]}")
        A(f"s_min_u32 {sr(st0)}, {sr(st0)}, 100000")
        A(f"s_mov_b32 {sr(st1)}, {sr(sp1)}")
        A("L_amp:")
        A(f"s_memrealtime {sr(sp1,2)}"); A("s_waitcnt lgkmcnt(0)")
        A(f"s_sub_u32 {sr(st2)}, {sr(sp1)}, {sr(st1)}")
        A(f"s_cmp_lt_u32 {sr(st2)}, {sr(st0)}")
        A("s_cbranch_scc1 L_amp")
    A("L_fin0:")
    full_exec()
    A("s_branch L_fin")
    if qfast:
        A("L_toucher:")
        A(f"s_lshl_b32 {sr(st0)}, {sr(sX)}, 5")
        A(f"s_add_u32 {sr(st0)}, {sr(st0)}, {sr(sI)}")
        A(f"s_lshl_b32 {sr(st0)}, {sr(st0)}, 9")
        A(f"s_add_u32 {sr(st0)}, {sr(st0)}, {ADELTA + QOFF}")
        A("s_waitcnt lgkmcnt(0)")
        A(f"s_add_u32 {sr(sp0)}, {sr(pWS)}, {sr(st0)}")
        A(f"s_addc_u32 {sr(sp0+1)}, {sr(pWS+1)}, 0")
        for k in range(8): A(f"s_load_dword {sr(st1)}, {sr(sp0,2)}, {64*k}")
        bar(); bar()
        if diag:
            A(f"s_mov_b32 {sr(sW)}, 5"); A(f"s_mov_b32 {sr(sCnt)}, 0"); A(f"s_mov_b32 {sr(sRole)}, 0"); A("s_branch L_fin")
        else: A("s_endpgm")
    A("L_helper:")
    A(f"s_mov_b32 {sr(sW)}, 4")
    stamp("issued0")
    A(f"v_lshrrev_b32 {vr(vt[6])}, 3, {vr(vL)}")
    A(f"v_add_u32 {vr(vt[6])}, 1, {vr(vt[6])}")
    A(f"v_cmp_gt_u32 vcc, 5, {vr(vt[6])}")
    A(f"v_bfe_u32 {vr(vt[7])}, v0, 1, 2")
    A(f"v_min_u32 {vr(vt[8])}, 1, {vr(vt[7])}")
    A(f"v_cndmask_b32 {vr(vt[6])}, 0, {vr(vt[6])}, vcc")
    A(f"v_lshl_add_u32 {vr(vt[7])}, {vr(vt[7])}, 2, {vr(vt[8])}")
    A(f"v_add_u32 {vr(vt[6])}, {vr(vt[6])}, {vr(vt[7])}")
    A(f"v_and_b32 {vr(vt[7])}, 1, v0")
    A(f"v_lshl_add_u32 {vr(vt[6])}, {vr(vt[6])}, 1, {vr(vt[7])}")
    A(f"s_lshr_b32 {sr(st0)}, {sr(st0)}, 4")
    A(f"v_lshl_add_u32 {vr(vt[9])}, {vr(vt[6])}, 2, {sr(st0)}")
    A(f"v_mov_b32 {vr(vt[10])}, {vr(vt[5])}")
    A(f"s_lshl_b32 {sr(st3)}, {'s2' if wqx else sr(sLI)}, 9")
    A(f"s_add_u32 {sr(st3)}, {sr(st3)}, {QOFF}")
    A(f"v_add_u32 {vr(vUa)}, {sr(st3)}, {vr(vL16)}")
    set_A()
    zero4(vD)
    for k in range(6): A(f"ds_write_b128 {vr(vL16)}, {vr(vD,4)} offset:{PT+1024*k}")
    for k in range(4): A(f"v_mov_b32 {vr(vP+k)}, 0x3f80")
    A(f"ds_write_b128 {vr(vL16)}, {vr(vP,4)} offset:{ONES}")
    common_consts()
    x_frag_addr(vt[0]); qpart_addr(vt[1])
    e = vGa
    vh.wait("xu")
    A(f"ds_write_b128 {vr(vL16)}, {vr(vX4,4)} offset:{OW}")
    A(f"ds_write_b16 {vr(vt[10])}, {vr(vKa)} offset:{OW+1024}")
    A(f"ds_read_b32 {vr(vVa)}, {vr(vt[9])} offset:{OW}")
    for k in range(4):
        A(f"v_lshlrev_b32 {vr(e+2*k)}, 16, {vr(vX4+k)}")
        A(f"v_and_b32 {vr(e+2*k+1)}, {sr(sHi)}, {vr(vX4+k)}")
    A(f"v_lshlrev_b32 {vr(e+8)}, 16, {vr(vKa)}")
    A(f"v_add_f32 {vr(vt[4])}, {vr(e)}, {vr(e+1)}")
    A(f"v_mul_f32 {vr(vt[5])}, {vr(e)}, {vr(e)}")
    for k in range(1, 9):
        if k >= 2: A(f"v_add_f32 {vr(vt[4])}, {vr(vt[4])}, {vr(e+k)}")
        A(f"v_fmac_f32 {vr(vt[5])}, {vr(e+k)}, {vr(e+k)}")
    wave_sum2(vt[4], vt[5], vt[6])
    A(f"v_mul_f32 {vr(vP)}, {hex(f2u(1.0/576))}, {vr(vt[4])}")
    A(f"v_mov_b32 {vr(vP+1)}, {vr(vP)}")
    A("s_waitcnt lgkmcnt(0)")
    A(f"v_lshlrev_b32 {vr(vt[6])}, 16, {vr(vVa)}")
    A(f"v_and_b32 {vr(vt[7])}, {sr(sHi)}, {vr(vVa)}")
    A(f"v_permlane32_swap_b32 {vr(vP)}, {vr(vP+1)}")
    A(f"v_fma_f32 {vr(vP+1)}, -{vr(vP)}, {vr(vP)}, {vr(vP+1)}")
    A(f"v_max_f32 {vr(vP+1)}, 0, {vr(vP+1)}")
    bf16r(vP+1, vP+1)
    A(f"v_add_f32 {vr(vP+1)}, {hex(f2u(1e-5))}, {vr(vP+1)}")
    bf16r(vP+1, vP+1)
    A(f"v_sqrt_f32 {vr(vP+1)}, {vr(vP+1)}")
    bf16r(vP, vP)
    bf16r(vP+1, vP+1)
    A(f"v_rcp_f32 {vr(vP+1)}, {vr(vP+1)}")
    A(f"v_sub_f32 {vr(vt[6])}, {vr(vt[6])}, {vr(vP)}")
    A(f"v_sub_f32 {vr(vt[7])}, {vr(vt[7])}, {vr(vP)}")
    bf16r(vt[6], vt[6]); bf16r(vt[7], vt[7])
    A(f"v_mul_f32 {vr(vt[6])}, {vr(vt[6])}, {vr(vP+1)}")
    A(f"v_mul_f32 {vr(vt[7])}, {vr(vt[7])}, {vr(vP+1)}")
    A(f"v_cvt_pk_bf16_f32 {vr(vt[6])}, {vr(vt[6])}, 0")
    A(f"v_cvt_pk_bf16_f32 {vr(vt[7])}, {vr(vt[7])}, 0")
    A(f"v_add_u32 {vr(vt[8])}, {XE}, {vr(vL16)}")
    exec_n(36)
    A(f"ds_write2_b32 {vr(vt[8])}, {vr(vt[6])}, {vr(vt[7])} offset0:0 offset1:2")
    A(f"ds_write2_b32 {vr(vt[8])}, {vr(vt[6])}, {vr(vt[7])} offset0:{(XO-XE)//4+1} offset1:{(XO-XE)//4+3}")
    full_exec()
    A(f"ds_read_b128 {vr(vAf,4)}, {vr(vt[0])} offset:{XE}")
    A("s_waitcnt lgkmcnt(0)")
    stamp("ln1")
    bar()
    A(f"s_add_u32 {sr(sT)}, {sr(sE)}, 0x01010101")
    A(f"v_mov_b32 {vr(vT)}, {sr(sT)}")
    def prep_lines(base_v, nlanes, nlines, off=0):
        exec_n(nlanes) if nlanes < 64 else None
        vh.issue("pw", f"global_store_dwordx4 {vr(base_v)}, {vr(vP,4)}, {sr(sA,2)} offset:{off} sc1")
        if nlanes < 64: full_exec()
    if prep and ofast and not stouch:
        for k in range(4): A(f"v_mov_b32 {vr(vP+k)}, {sr(sE)}")
    vh.wait("q1")
    stamp("wq_landed")
    smf(vD, vAf, vWq)
    A(f"s_lshl_b32 {sr(st0)}, {sr(sH)}, 13")
    A(f"s_add_u32 {sr(st0)}, {sr(st0)}, {QOFF}")
    A(f"v_lshrrev_b32 {vr(vt[2])}, 5, {vr(vL)}")
    A(f"v_mul_u32_u24 {vr(vt[3])}, {4096-512}, {vr(vt[2])}")
    A(f"v_add3_u32 {vr(vt[3])}, {vr(vt[3])}, {vr(vL16)}, {sr(st0)}")
    A(f"v_lshlrev_b32 {vr(vt[4])}, 3, {vr(vL)}")
    exec_n(32)
    A(f"ds_write_b128 {vr(vt[1])}, {vr(vD,4)} offset:{PART}")
    A("s_waitcnt lgkmcnt(0)")
    bar()
    for w in range(5): A(f"ds_read_b128 {vr(vGa+4*w,4)}, {vr(vL16)} offset:{PART+512*w}")
    for w in range(1, 5):
        A(f"s_waitcnt lgkmcnt({4-w})")
        pk_add4(vD3, vGa if w == 1 else vD3, vGa+4*w)
    tag_insert(vD3)
    A(f"global_store_dwordx4 {vr(vUa)}, {vr(vD3,4)}, " + (f"{sr(sA,2)}" if qfast else f"{sr(pWS,2)} sc1"))
    full_exec()
    def q_through():
        exec_n(32)
        A(f"global_store_dwordx4 {vr(vUa)}, {vr(vD3,4)}, {sr(pWS,2)} sc1")
        full_exec()
    stamp("q_pub")
    A(f"s_mul_i32 {sr(st0)}, {sr(sLI)}, 1152")
    A(f"s_add_u32 {sr(st0)}, {sr(st0)}, {OOFF}")
    A(f"v_add_u32 {vr(vDa)}, {sr(st0)}, {vr(vL16)}")
    A(f"v_lshlrev_b32 {vr(vt[5])}, 4, {vr(vt[2])}")
    if ofast and stouch:
        A(f"s_add_u32 {sr(sp0)}, {sr(sA)}, {sr(st0)}")
        A(f"s_addc_u32 {sr(sp0+1)}, {sr(sA+1)}, 0")
        for k in range(18): A(f"s_load_dword {sr(sMd)}, {sr(sp0,2)}, {64*k}")
    if prep and ofast and not stouch:
        prep_lines(vDa, 64, 8); prep_lines(vDa, 8, 1, 1024)
        A(f"v_lshl_add_u32 {vr(vt[6])}, {vr(vN)}, 7, {sr(st0)}")
    if qbar: bar()
    elif qdelay: A("s_waitcnt vmcnt(0)")
    stamp("q_ack")
    if tlb >= 2:
        A(f"v_lshlrev_b32 {vr(vt[7])}, 21, {vr(vL)}")
        exec_n(3)
        for p_ in (pG, pU, pWO, pD): A(f"global_load_dword {vr(vJunk)}, {vr(vt[7])}, {sr(p_,2)}")
        full_exec()
    if prep and ofast and not stouch:
        exec_n(9)
        A(f"global_load_dword {vr(vJunk)}, {vr(vt[6])}, {sr(sA,2)} sc1")
        full_exec()
    A("L_qspin:")
    if qfast:
        A(f"s_cmp_eq_u32 {sr(sAc)}, {kQ}")
        A("s_cbranch_scc0 L_qnb")
        q_through()
        A("L_qnb:")
    for p in range(8): A(f"global_load_dwordx4 {vr(vGa+4*p,4)}, {vr(vt[3])}, {sr(sA if qfast else pWS,2)} offset:{512*p} sc1")
    for p in range(8):
        A(f"s_waitcnt vmcnt({7-p})")
        if p: pk_add4(vP, vGa if p == 1 else vP, vGa+4*p)
        if p == 7:
            A(f"v_cvt_pk_bf16_f32 {vr(vP)}, {vr(vP)}, {vr(vP+1)}")
            A(f"v_cvt_pk_bf16_f32 {vr(vP+1)}, {vr(vP+2)}, {vr(vP+3)}")
            A(f"ds_write_b64 {vr(vt[4])}, {vr(vP,2)} offset:{QB}")
        tag_check(vGa+4*p, p == 0)
    tag_done()
    loop_tail("L_qspin", qfast)
    A("s_waitcnt lgkmcnt(0)")
    stamp("pollret")
    bar()
    A(f"s_mov_b32 {sr(st1)}, {hex(f2u(LOG2E))}")
    A(f"s_mov_b32 {sr(st2)}, 0x05040100")
    A(f"s_mov_b32 {sr(st3)}, 0x07060302")
    set_A()
    A(f"s_mul_i32 {sr(sMb)}, {sr(sX)}, {9*128}")
    A(f"s_lshl2_add_u32 {sr(sMd)}, {sr(sI)}, {sr(sMb)}")
    A(f"s_add_u32 {sr(sMd)}, {sr(sMd)}, {IBW}")
    A(f"v_lshl_add_u32 {vr(vKa)}, {vr(vN)}, 7, {sr(sMd)}")
    bar()
    A(f"ds_read_b128 {vr(vGa,4)}, {vr(vt[5])} offset:{MM}")
    A(f"ds_read_b128 {vr(vGa+4,4)}, {vr(vt[5])} offset:{LL}")
    A("s_waitcnt lgkmcnt(1)")
    A(f"v_max3_f32 {vr(vP)}, {vr(vGa)}, {vr(vGa+1)}, {vr(vGa+2)}")
    A(f"v_max_f32 {vr(vP)}, {vr(vP)}, {vr(vGa+3)}")
    for w in range(4): A(f"v_sub_f32 {vr(vGa+w)}, {vr(vGa+w)}, {vr(vP)}")
    for w in range(4): A(f"v_mul_f32 {vr(vGa+w)}, {sr(st1)}, {vr(vGa+w)}")
    for w in range(4): A(f"v_exp_f32 {vr(vGa+w)}, {vr(vGa+w)}")
    A("s_waitcnt lgkmcnt(0)")
    A(f"v_mul_f32 {vr(vP+1)}, {vr(vGa)}, {vr(vGa+4)}")
    for w in range(1, 4): A(f"v_fmac_f32 {vr(vP+1)}, {vr(vGa+w)}, {vr(vGa+4+w)}")
    A(f"v_rcp_f32 {vr(vt[6])}, {vr(vP+1)}")
    A(f"v_mov_b32 {vr(vP+2)}, 0")
    A(f"v_mov_b32 {vr(vP+3)}, {vr(vT)}")
    A(f"v_and_b32 {vr(vt[7])}, 3, v0")
    A(f"v_lshl_add_u32 {vr(vt[7])}, {vr(vt[7])}, 5, {vr(vt[5])}")
    A(f"v_add_u32 {vr(vt[7])}, {sr(st0)}, {vr(vt[7])}")
    A("s_mov_b32 exec_lo, 15"); A("s_mov_b32 exec_hi, 15")
    if ofast: A(f"global_store_dwordx4 {vr(vt[7])}, {vr(vP,4)}, {sr(sA,2)} offset:1024")
    if not x_noo and not (ofast and bdefer): A(f"global_store_dwordx4 {vr(vt[7])}, {vr(vP,4)}, {sr(pWS,2)} offset:1024 sc1")
    full_exec()
    def o_flag():
        exec_n(9)
        A(f"global_store_dword {vr(vKa)}, {vr(vT)}, {sr(pWS,2)} sc1")
        full_exec()
    if oflags and oflag == "B2c": o_flag()
    for w in range(4): A(f"v_mul_f32 {vr(vX4+w)}, {vr(vGa+w)}, {vr(vt[6])}")
    if oflags and oflag == "V5": bar(); o_flag()
    bar()
    for w in range(4): A(f"ds_read_b128 {vr(vGa+4*w,4)}, {vr(vL16)} offset:{OW+1024*w}")
    if oflags and oflag == "B3": o_flag()
    for w in range(4):
        A(f"s_waitcnt lgkmcnt({3-w})")
        f = vX4 + (w & ~1); sel = f"op_sel:[0,{w&1}{',0' if w else ''}] op_sel_hi:[1,{w&1}{',1' if w else ''}]"
        for hh in range(2):
            if w == 0: A(f"v_pk_mul_f32 {vr(vD+2*hh,2)}, {vr(vGa+2*hh,2)}, {vr(f,2)} {sel}")
            else: A(f"v_pk_fma_f32 {vr(vD+2*hh,2)}, {vr(vGa+4*w+2*hh,2)}, {vr(f,2)}, {vr(vD+2*hh,2)} {sel}")
    A(f"v_cvt_pk_bf16_f32 {vr(vD+1)}, {vr(vD)}, {vr(vD+1)}")
    A(f"v_cvt_pk_bf16_f32 {vr(vD+2)}, 0, {vr(vD+2)}")
    A(f"v_cvt_pk_bf16_f32 {vr(vD+3)}, 0, {vr(vD+3)}")
    A(f"v_perm_b32 {vr(vD)}, {vr(vD+1)}, {vr(vT)}, {sr(st2)}")
    A(f"v_perm_b32 {vr(vD+1)}, {vr(vD+1)}, {vr(vT)}, {sr(st3)}")
    if ofast: A(f"global_store_dwordx4 {vr(vDa)}, {vr(vD,4)}, {sr(sA,2)}")
    if not x_noo and not (ofast and bdefer): A(f"global_store_dwordx4 {vr(vDa)}, {vr(vD,4)}, {sr(pWS,2)} sc1")
    stamp("o_pub")
    if b3c: bar()
    if ofast and bdefer:
        A(f"v_mov_b32 {vr(vt[0])}, 0")
        A(f"s_cmp_eq_u32 {sr(sRole)}, 2" if bat == "need" else f"s_cmp_lg_u32 {sr(sRole)}, 1")
        bar()
        A("s_cbranch_scc1 L_bst")
        A(f"ds_read_b32 {vr(vt[0])}, {vr(vt[0])} offset:{NEED}")
        A("s_waitcnt lgkmcnt(0)")
        A(f"v_cmp_ne_u32 vcc, 0, {vr(vt[0])}")
        A("s_cbranch_vccz L_nobst")
        A("L_bst:")
        if qfast: q_through()
        A(f"global_store_dwordx4 {vr(vDa)}, {vr(vD,4)}, {sr(pWS,2)} sc1")
        A("s_mov_b32 exec_lo, 15"); A("s_mov_b32 exec_hi, 15")
        A(f"global_store_dwordx4 {vr(vt[7])}, {vr(vP,4)}, {sr(pWS,2)} offset:1024 sc1")
        full_exec()
        A("L_nobst:")
    A(f"s_cmp_eq_u32 {sr(sRole)}, 2")
    A("s_cbranch_scc1 L_fin")
    A(f"s_cmp_eq_u32 {sr(sRole)}, 1")
    A("s_cbranch_scc1 L_hW")
    if flags:
        A(f"s_lshl_b32 {sr(st1)}, {sr(sF)}, 7")
        A(f"s_add_u32 {sr(st1)}, {sr(st1)}, {IBF}")
        A(f"v_lshl_add_u32 {vr(vKa)}, {vr(vN)}, 2, {sr(st1)}")
        A(f"v_mov_b32 {vr(vt[0])}, 0")
        if fstart: bar()
        exec_n(8)
        A("L_ibspin:")
        A(f"global_atomic_add {vr(vt[1])}, {vr(vKa)}, {vr(vt[0])}, {sr(pWS,2)} sc0 sc1")
        A("s_waitcnt vmcnt(0)")
        A(f"v_cmp_ne_u32 vcc, {vr(vt[1])}, {vr(vT)}")
        loop_tail("L_ibspin")
        full_exec()
        bar()
    if ofast and bdefer and bat == "need": bar()
    A("s_branch L_fin")
    A("L_hW:")
    if wD:
        A(f"s_add_u32 {sr(st0)}, {sr(sX)}, 1")
        A(f"s_mul_i32 {sr(st0)}, {sr(st0)}, {5184*128}")
        A(f"s_lshl_b32 {sr(st1)}, {sr(sC)}, 13")
        A(f"s_add_u32 {sr(st0)}, {sr(st0)}, {sr(st1)}")
        A(f"s_sub_u32 {sr(st0)}, {sr(st0)}, {wD*9*8192}")
        A(f"v_lshl_add_u32 {vr(vt[0])}, {vr(vL)}, 7, {sr(st0)}")
        for k in range(wDe):
            A(f"global_load_dword {vr(vJunk)}, {vr(vt[0])}, {sr(pD,2)} {ntP}")
            A(f"v_add_u32 {vr(vt[0])}, {9*8192}, {vr(vt[0])}")
    A(f"s_lshl3_add_u32 {sr(st0)}, {sr(sC)}, {sr(sX)}")
    A(f"s_lshl_b32 {sr(st0)}, {sr(st0)}, 8")
    A(f"s_add_u32 {sr(st0)}, {sr(st0)}, {HREP if hrep else HOFF}")
    if hrep:
        A(f"v_lshlrev_b32 {vr(vt[1])}, 4, {vr(vN)}")
        A(f"v_mul_u32_u24 {vr(vKa)}, 18432, {vr(vG)}")
        A(f"v_add3_u32 {vr(vKa)}, {vr(vKa)}, {vr(vt[1])}, {sr(st0)}")
        A(f"v_add_u32 {vr(vVa)}, {4*18432}, {vr(vKa)}")
    else:
        A(f"v_add_u32 {vr(vKa)}, {sr(st0)}, {vr(vL16)}")
        exec_n(16)
    bar()
    for w in range(4): A(f"ds_read_b128 {vr(vGa+4*w,4)}, {vr(vt[1] if hrep else vL16)} offset:{PART+512*w}")
    for w in range(1, 4):
        A(f"s_waitcnt lgkmcnt({3-w})")
        pk_add4(vD2, vGa if w == 1 else vD2, vGa+4*w)
    tag_insert(vD2)
    A(f"global_store_dwordx4 {vr(vKa)}, {vr(vD2,4)}, {sr(pWS,2)} sc1")
    if hrep: A(f"global_store_dwordx4 {vr(vVa)}, {vr(vD2,4)}, {sr(pWS,2)} sc1")
    else: full_exec()
    stamp("y_pub")
    for k in range(wDe, wD):
        A(f"global_load_dword {vr(vJunk)}, {vr(vt[0])}, {sr(pD,2)} {ntP}")
        if k + 1 < wD: A(f"v_add_u32 {vr(vt[0])}, {9*8192}, {vr(vt[0])}")
    if ytouch:
        A(f"s_mul_i32 {sr(st0)}, {sr(sX)}, 18")
        A(f"s_lshr_b32 {sr(st0)}, {sr(st0)}, 3")
        A(f"s_mul_i32 {sr(st0)}, {sr(st0)}, {144*128}")
        A(f"s_mul_i32 {sr(st1)}, {sr(sC)}, {48*128}")
        A(f"s_add_u32 {sr(st0)}, {sr(st0)}, {sr(st1)}")
        A(f"s_add_u32 {sr(st0)}, {sr(st0)}, {YOFF}")
        A(f"v_lshl_add_u32 {vr(vt[0])}, {vr(vL)}, 7, {sr(st0)}")
        exec_n(48)
        A(f"global_load_dword {vr(vJunk)}, {vr(vt[0])}, {sr(pWS,2)}")
        full_exec()
    if ofast and bdefer:
        if qfast: q_through()
        A(f"global_store_dwordx4 {vr(vDa)}, {vr(vD,4)}, {sr(pWS,2)} sc1")
        A("s_mov_b32 exec_lo, 15"); A("s_mov_b32 exec_hi, 15")
        A(f"global_store_dwordx4 {vr(vt[7])}, {vr(vP,4)}, {sr(pWS,2)} offset:1024 sc1")
        full_exec()
    A("L_fin:")
    if diag:
        stamp("end")
        if clk: A(f"s_memtime {sr(sp0,2)}")
        A("s_waitcnt lgkmcnt(0)")
        if clk: A(f"s_sub_u32 {sr(sCnt)}, {sr(sp0)}, s100")
        A(f"s_mul_i32 {sr(st0)}, s2, {NWV}")
        A(f"s_add_u32 {sr(st0)}, {sr(st0)}, {sr(sW)}")
        A(f"s_lshl_b32 {sr(st0)}, {sr(st0)}, 7")
        A(f"s_add_u32 {sr(st0)}, {sr(st0)}, {DIAGOFF}")
        A(f"v_mov_b32 {vr(vt[0])}, {sr(st0)}")
        exec_n(1)
        for j, (nm, r) in enumerate(stamps + [("cnt", sCnt), ("role", sRole)]):
            A(f"v_mov_b32 {vr(vt[1])}, {sr(r)}")
            A(f"global_store_dword {vr(vt[0])}, {vr(vt[1])}, {sr(pWS,2)} offset:{4*j}")
    A("L_end:")
    A("s_endpgm")
    A("L_code_end:")
    A.raw(f".if (L_code_end - {NAME}_kernel) < {PADTO}\n.fill ({PADTO} - (L_code_end - {NAME}_kernel))/4, 4, 0xbf800000\n.endif")
    nv = V.hi
    out = HEADER
    out += f"; @launch grid=(256,1,1) block=({64*NWV},1,1) lds={LDS_BYTES}\n"
    out += '.amdgcn_target "amdgcn-amd-amdhsa--gfx950"\n.text\n'
    out += f".globl {NAME}_kernel\n.p2align 8\n.type {NAME}_kernel,@function\n{NAME}_kernel:\n"
    out += A.text()
    out += '.section .rodata,"a"\n.p2align 6\n'
    out += f".amdhsa_kernel {NAME}_kernel\n"
    out += f"  .amdhsa_next_free_vgpr {nv}\n  .amdhsa_next_free_sgpr {102 if clk else S.hi}\n  .amdhsa_accum_offset {(nv+3)//4*4}\n"
    out += "  .amdhsa_group_segment_fixed_size 0\n  .amdhsa_kernarg_size 96\n  .amdhsa_user_sgpr_count 2\n"
    out += "  .amdhsa_user_sgpr_kernarg_segment_ptr 1\n  .amdhsa_system_sgpr_workgroup_id_x 1\n"
    out += "  .amdhsa_float_denorm_mode_32 3\n"
    out += ".end_amdhsa_kernel\n"
    return out, [n for n, _ in stamps] + ["cnt", "role"]

if __name__ == "__main__":
    kw = {}
    for a in sys.argv[2:]:
        k, v = a.split("=", 1); kw[k] = eval(v)
    txt, names = gen(**kw)
    open(sys.argv[1], "w").write(txt)
    print("written", sys.argv[1], names)
```
